```python
import torch

def _softmax(x, axis=-1):
    return torch.softmax(x, dim=axis)
def _gelu(x):
    return torch.nn.functional.gelu(x, approximate="tanh")
def _silu(x):
    return torch.nn.functional.silu(x)
def _sigmoid(x):
    return torch.sigmoid(x)
def _layernorm(x, axis=-1, eps=1e-5):
    m = x.mean(dim=axis, keepdim=True)
    v = x.var(dim=axis, keepdim=True, unbiased=False)
    return (x - m) / torch.sqrt(v + eps)
def _scatter_add(tgt, idx, src, axis=0):
    return tgt.clone().index_add_(axis, idx, src)
def _segment_sum(src, seg, n):
    out = torch.zeros((n,) + src.shape[1:], dtype=src.dtype)
    return out.index_add_(0, seg, src)
def _pad(x, pw):
    flat = tuple(v for pair in reversed(pw) for v in pair)
    return torch.nn.functional.pad(x, flat)

kernel_name = 'standalone__edge_featured_mpnn_gatedgcn__graph'

def setup_inputs():

    _w = (lambda a: (lambda t: t.to(torch.bfloat16) if t.is_floating_point() else t)(torch.as_tensor(a)))
    N, deg, D, De = 12500, 64, 64, max(0, 1)
    E = N * deg
    return {
        "x": _w((lambda *s: torch.randn(*s, dtype=torch.bfloat16) * 0.8)(N, D)),
        "e_attr": _w((lambda *s: torch.randn(*s, dtype=torch.bfloat16) * 0.8)(E, De)),
        "src": _w((lambda lo, hi, *s: torch.randint(lo, hi, s))(0, N, E).to(torch.int64)),
        "dst": _w((lambda lo, hi, *s: torch.randint(lo, hi, s))(0, N, E).to(torch.int64)),
        "w_a": _w((lambda *s: torch.randn(*s, dtype=torch.bfloat16) * 0.8)(D, D)),
        "w_b": _w((lambda *s: torch.randn(*s, dtype=torch.bfloat16) * 0.8)(D, D)),
        "w_c": _w((lambda *s: torch.randn(*s, dtype=torch.bfloat16) * 0.8)(De, D)),
        "w_u": _w((lambda *s: torch.randn(*s, dtype=torch.bfloat16) * 0.05)(D, D)),
        "w_v": _w((lambda *s: torch.randn(*s, dtype=torch.bfloat16) * 0.05)(D, D)),
    }

def reference(x, e_attr, src, dst, w_a, w_b, w_c, w_u, w_v):
    N, D = x.shape
    hv = x @ w_v
    g = x[dst] @ w_a + x[src] @ w_b + e_attr @ w_c
    eta = _sigmoid(g)
    denom = _segment_sum(eta, dst, N) + 1e-6
    eta_n = eta / denom[dst]
    agg = _segment_sum(eta_n * hv[src], dst, N)
    z = x @ w_u + agg
    relu_z = torch.where(z > 0, z, 0 * z)
    return x + relu_z
```

```python
import sys, struct
import numpy as np

N=12500; E=800000; NB=49; CH=3128
WS_SEG=0; WS_TAB=8<<20; WS_HDR=12<<20; WS_GF=WS_HDR+4096; WS_SEG2=13<<20; WS_STAMP=16<<20
WS_SIZE=268435456
def f2u(x): return struct.unpack('<I', struct.pack('<f', x))[0]
L2E=1.4426950408889634

class Asm:
    def __init__(s): s.L=[]
    def __call__(s, x):
        for ln in x.strip('\n').split('\n'): s.L.append('    '+ln.strip())
    def label(s, n): s.L.append(n+':')
    def raw(s, x): s.L.append(x)
    def text(s): return '\n'.join(s.L)+'\n'

OPT = dict(stamps=False, segst='', tabst='', prefetch=True, park=True)
for a in sys.argv[2:]:
    k,v=a.split('=')
    OPT[k] = {'0':False,'1':True}.get(v, v)

A=Asm()
SB=66
def stamp_init():
    if OPT['stamps']:
        for i in range(16): A(f's_mov_b64 s[{SB+2*i}:{SB+2*i+1}], 0')
def stamp(i):
    if OPT['stamps']: A(f's_memrealtime s[{SB+2*i}:{SB+2*i+1}]')
def stamp_flush(k, wsreg, wavereg):
    if not OPT['stamps']: return
    A(f'''s_waitcnt lgkmcnt(0)
    s_mov_b64 exec, 1
    s_lshl_b32 s98, s2, 4
    s_add_u32 s98, s98, {wavereg}
    s_lshl_b32 s98, s98, 7
    s_add_u32 s98, s98, {WS_STAMP + k*256*16*128}
    v_mov_b32 v1, s98''')
    for i in range(16):
        A(f'''v_mov_b32 v2, s{SB+2*i}
        v_mov_b32 v3, s{SB+2*i+1}
        global_store_dwordx2 v1, v[2:3], {wsreg} offset:{8*i}
        s_nop 1''')

def gemm_loads(xp, w1, w2, srow, X, R1, R2, t0, t1, t2):
    A(f'''v_and_b32 v{t0}, 15, v0
    v_bfe_u32 v{t1}, v0, 4, 2
    v_add_u32 v{t2}, {srow}, v{t0}
    v_min_u32 v{t2}, {N-1}, v{t2}
    v_lshlrev_b32 v{t2}, 7, v{t2}
    v_lshl_add_u32 v{t2}, v{t1}, 5, v{t2}
    v_lshlrev_b32 v{t0}, 3, v{t0}
    v_lshl_add_u32 v{t0}, v{t1}, 11, v{t0}
    global_load_dwordx4 v[{X}:{X+3}], v{t2}, {xp}
    global_load_dwordx4 v[{X+4}:{X+7}], v{t2}, {xp} offset:16''')
    for R,w in ((R1,w1),(R2,w2)):
        for kk in range(16):
            A(f'global_load_dwordx2 v[{R+2*kk}:{R+2*kk+1}], v{t0}, {w} offset:{kk*128}')

def gemm_mat(X, R, F, ACC, selLo, selHi):
    for t in range(4):
        Fb = F + (t&1)*8
        sel = selHi if (t&1) else selLo
        for s_ in range(2):
            for m in range(4):
                k0 = s_*8+2*m
                A(f'v_perm_b32 v{Fb+s_*4+m}, v{R+2*(k0+1)+(t>>1)}, v{R+2*k0+(t>>1)}, {sel}')
        A(f'''s_nop 1
        v_mfma_f32_16x16x32_bf16 v[{ACC+4*t}:{ACC+4*t+3}], v[{X}:{X+3}], v[{Fb}:{Fb+3}], 0
        v_mfma_f32_16x16x32_bf16 v[{ACC+4*t}:{ACC+4*t+3}], v[{X+4}:{X+7}], v[{Fb+4}:{Fb+7}], v[{ACC+4*t}:{ACC+4*t+3}]''')

K1_CNT=36864; K1_LDS=36864+1024
def k1():
    A.raw('.p2align 8'); A.raw('.type k1_kernel,@function'); A.label('k1_kernel')
    A('''s_cmp_ge_u32 s2, 256
    s_cbranch_scc1 k1_end
    s_load_dwordx8 s[4:11], s[0:1], 0
    s_load_dwordx2 s[12:13], s[0:1], 40
    s_load_dwordx2 s[14:15], s[0:1], 64
    s_load_dwordx2 s[16:17], s[0:1], 88''')
    stamp_init(); stamp(0)
    A(f'''v_lshrrev_b32 v1, 6, v0
    v_lshlrev_b32 v2, 4, v0
    v_readfirstlane_b32 s18, v1
    s_mul_i32 s19, s2, {CH*4}
    v_add_u32 v3, s19, v2
    v_lshrrev_b32 v4, 1, v3
    s_mul_i32 s20, s2, {CH//4}
    s_sub_u32 s20, {E//4}, s20
    s_min_u32 s20, s20, {CH//4}
    v_cmp_gt_u32 vcc, s20, v0
    s_mov_b64 s[22:23], vcc
    s_sub_u32 s24, s18, 13
    s_and_b32 s24, s24, 3
    s_lshl_b32 s24, s24, 8
    s_add_u32 s24, s24, s2
    s_cmp_ge_u32 s18, 12
    s_cselect_b32 s24, s24, 0xffff
    s_mov_b32 s30, {WS_SIZE}
    s_mov_b32 s31, 0x20000
    s_waitcnt lgkmcnt(0)
    s_mov_b32 s28, s16
    s_mov_b32 s29, s17
    s_mov_b64 exec, s[22:23]
    s_cbranch_execz k1_noedge
    global_load_dwordx4 v[12:15], v3, s[10:11]
    global_load_dwordx4 v[16:19], v3, s[8:9]
    global_load_dwordx2 v[20:21], v4, s[6:7]''')
    A.label('k1_noedge')
    A('''s_mov_b64 exec, -1
    s_cmp_ge_u32 s24, 782
    s_cbranch_scc1 k1_nogl
    s_lshl_b32 s25, s24, 4''')
    gemm_loads('s[4:5]','s[12:13]','s[14:15]','s25',104,40,72,5,6,7)
    A.label('k1_nogl')
    stamp(1)
    A(f'''v_mov_b32 v8, 0
    v_mov_b32 v9, 0
    v_mov_b32 v10, 0
    v_mov_b32 v11, 0
    ds_write_b128 v2, v[8:11]
    ds_write_b128 v2, v[8:11] offset:16384
    s_cmp_ge_u32 s18, 4
    s_cbranch_scc1 k1_init_done
    ds_write_b128 v2, v[8:11] offset:32768
    v_mul_u32_u24 v5, 144, v0
    v_lshlrev_b32 v6, 2, v0
    ds_write_b32 v6, v5 offset:{K1_CNT}''')
    A.label('k1_init_done')
    A(f'''v_mov_b32 v22, 4
    s_mov_b32 s32, -49
    s_mov_b32 s33, {(127-113)<<23}
    s_mov_b32 s34, 0x78000000
    s_mov_b32 s35, 0xffff0000
    s_waitcnt lgkmcnt(0)
    s_barrier''')
    stamp(2)
    A('''s_mov_b64 exec, s[22:23]
    s_cbranch_execz k1_bar2
    s_waitcnt vmcnt(2)''')
    stamp(3)
    for i in range(4):
        A(f'''v_mul_u32_u24 v{24+i}, 21400, v{12+i}
        v_lshrrev_b32 v{24+i}, 20, v{24+i}
        v_lshlrev_b32 v{28+i}, 2, v{24+i}
        ds_add_rtn_u32 v{32+i}, v{28+i}, v22 offset:{K1_CNT}''')
    for i in range(4):
        A(f'v_mad_i32_i24 v{12+i}, v{24+i}, s32, v{12+i}')
    A('''s_waitcnt vmcnt(0)
    v_lshlrev_b32 v36, 16, v20
    v_lshlrev_b32 v38, 16, v21
    v_mul_f32 v36, s33, v36
    v_mul_f32 v37, s33, v20
    v_mul_f32 v38, s33, v38
    v_mul_f32 v39, s33, v21''')
    for i in range(4):
        A(f'''v_add_lshl_u32 v{16+i}, v{16+i}, 1, 2
        v_bfi_b32 v{16+i}, 3, v{12+i}, v{16+i}
        v_lshlrev_b32 v{12+i}, 25, v{12+i}
        v_bfi_b32 v{12+i}, s34, v{12+i}, v{36+i}
        v_bfi_b32 v{16+i}, s35, v{12+i}, v{16+i}''')
    A('''v_or3_b32 v36, v36, v37, v38
    v_or_b32 v36, v36, v39
    v_and_b32 v36, s34, v36
    v_cmp_ne_u32 vcc, 0, v36
    s_waitcnt lgkmcnt(0)''')
    for i in range(4):
        A(f'ds_write_b32 v{32+i}, v{16+i}')
    A('s_cbranch_vccnz k1_ebad')
    A.label('k1_bar2')
    A('''s_mov_b64 exec, -1
    s_waitcnt lgkmcnt(0)
    s_barrier''')
    stamp(4)
    A(f'''s_cmp_ge_u32 s18, 8
    s_cbranch_scc1 k1_not_copy
    v_lshrrev_b32 v5, 3, v0
    v_and_b32 v6, 7, v0
    v_lshlrev_b32 v6, 4, v6
    v_mul_u32_u24 v7, 144, v5
    v_add_u32 v7, v7, v6
    ds_read_b128 v[8:11], v7
    ds_read_b128 v[12:15], v7 offset:9216
    ds_read_b128 v[16:19], v7 offset:18432
    ds_read_b128 v[20:23], v7 offset:27648
    v_lshl_add_u32 v5, v5, 15, v6
    s_lshl_b32 s36, s2, 7
    s_add_u32 s37, s36, {2<<20}
    s_add_u32 s38, s36, {4<<20}
    s_add_u32 s39, s36, {6<<20}
    s_waitcnt lgkmcnt(3)
    buffer_store_dwordx4 v[8:11], v5, s[28:31], s36 offen {OPT['segst']}
    s_waitcnt lgkmcnt(2)
    buffer_store_dwordx4 v[12:15], v5, s[28:31], s37 offen {OPT['segst']}
    s_waitcnt lgkmcnt(1)
    buffer_store_dwordx4 v[16:19], v5, s[28:31], s38 offen {OPT['segst']}
    s_waitcnt lgkmcnt(0)
    buffer_store_dwordx4 v[20:23], v5, s[28:31], s39 offen {OPT['segst']}''' .replace('lgkmcnt(3)','lgkmcnt(0)' if OPT['stamps'] else 'lgkmcnt(3)'))
    stamp(5)
    if OPT['stamps']:
        A('s_waitcnt vmcnt(0)'); stamp(6)
    A('s_branch k1_fin')
    A.label('k1_not_copy')
    A(f'''s_cmp_ge_u32 s18, 12
    s_cbranch_scc1 k1_gemm
    v_subrev_u32 v5, 512, v0
    v_lshlrev_b32 v6, 2, v5
    ds_read_b32 v7, v6 offset:{K1_CNT}
    v_mul_u32_u24 v12, 144, v5
    ds_read_b128 v[8:11], v12 offset:128
    s_sub_u32 s36, s18, 8
    s_lshl_b32 s36, s36, 8
    s_add_u32 s36, s36, s2
    s_lshl_b32 s36, s36, 2
    s_add_u32 s36, s36, {WS_HDR}
    s_waitcnt lgkmcnt(0)
    v_sub_u32 v7, v7, v12
    v_cmp_lt_u32 vcc, 144, v7
    s_cmp_lg_u64 vcc, 0
    s_cselect_b32 s37, 2, 0
    v_cmp_lt_u32 vcc, 128, v7
    s_cmp_lg_u64 vcc, 0
    s_cselect_b32 s38, 1, 0
    s_or_b32 s37, s37, s38
    v_mov_b32 v13, s37
    v_lshlrev_b32 v5, 12, v5
    s_lshl_b32 s39, s2, 4
    s_add_u32 s39, s39, {WS_SEG2}
    s_cbranch_vccz k1_noext
    buffer_store_dwordx4 v[8:11], v5, s[28:31], s39 offen''')
    A.label('k1_noext')
    A('''s_mov_b64 exec, 1
    buffer_store_dword v13, off, s[28:31], s36
    s_branch k1_fin''')
    A.label('k1_gemm')
    A(f'''s_cmp_ge_u32 s24, 782
    s_cbranch_scc1 k1_fin
    s_mov_b32 s36, 0x05040100
    s_mov_b32 s37, 0x07060302
    s_mov_b32 s38, {f2u(-L2E):#x}
    s_mov_b32 s39, {f2u(2.0**-100):#x}
    s_mov_b32 s40, 0x07060100
    s_waitcnt vmcnt(16)''')
    stamp(5)
    gemm_mat(104,40,112,8,'s36','s37')
    A('s_waitcnt vmcnt(0)')
    gemm_mat(104,72,112,24,'s36','s37')
    A(f'''v_and_b32 v5, 15, v0
    v_bfe_u32 v6, v0, 4, 2
    v_lshlrev_b32 v5, 4, v5
    v_lshl_add_u32 v5, v6, 10, v5
    s_lshl_b32 s41, s24, 12
    s_add_u32 s41, s41, {WS_TAB+256}''')
    for i in range(16):
        A(f'v_fma_mixlo_f16 v{56+i}, v{8+i}, s38, 0')
    A('v_min3_f32 v72, v8, v9, v10')
    for i in (11,13,15,17,19,21): A(f'v_min3_f32 v72, v72, v{i}, v{i+1}')
    A('v_min_f32 v72, v72, v23')
    for i in range(16):
        A(f'v_add_f32 v{24+i}, s39, v{24+i}')
    A('''v_max3_f32 v73, |v24|, |v25|, |v26|
    v_min3_f32 v74, |v24|, |v25|, |v26|''')
    for i in (27,29,31,33,35,37):
        A(f'''v_max3_f32 v73, v73, |v{i}|, |v{i+1}|
        v_min3_f32 v74, v74, |v{i}|, |v{i+1}|''')
    A('''v_max_f32_e64 v73, v73, |v39|
    v_min_f32_e64 v74, v74, |v39|''')
    for r in range(4):
        for t in range(4):
            i=4*t+r
            A(f'''v_add_u32 v{24+i}, 0x8000, v{24+i}
            v_sub_u32_sdwa v{24+i}, v{24+i}, v{56+i} dst_sel:DWORD dst_unused:UNUSED_PAD src0_sel:DWORD src1_sel:WORD_0
            v_perm_b32 v{40+4*r+t}, v{24+i}, v{56+i}, s40''')
        A(f'buffer_store_dwordx4 v[{40+4*r}:{43+4*r}], v5, s[28:31], s41 offen offset:{r*256} {OPT["tabst"]}')
    A(f'''v_cmp_gt_f32 vcc, {f2u(-50.0/L2E):#x}, v72
    s_mov_b64 s[42:43], vcc
    v_cmp_lt_f32 vcc, {f2u(2.0**50):#x}, v73
    s_or_b64 s[42:43], s[42:43], vcc
    v_cmp_gt_f32 vcc, {f2u(2.0**-120):#x}, v74
    s_or_b64 s[42:43], s[42:43], vcc
    s_cselect_b32 s42, 2, 0
    v_mov_b32 v6, s42
    s_lshl_b32 s43, s24, 2
    s_add_u32 s43, s43, {WS_GF}
    s_cmp_lg_u32 s24, 0
    s_cbranch_scc1 k1_nodummy
    v_and_b32 v7, 63, v0
    v_lshlrev_b32 v7, 2, v7
    v_mov_b32 v8, 0x5510
    s_mov_b32 s44, {WS_TAB}
    buffer_store_dword v8, v7, s[28:31], s44 offen''')
    A.label('k1_nodummy')
    A('''s_mov_b64 exec, 1
    buffer_store_dword v6, off, s[28:31], s43''')
    stamp(6)
    A.label('k1_fin')
    if OPT['stamps']:
        A('s_waitcnt vmcnt(0)'); stamp(7)
    stamp_flush(0,'s[16:17]','s18')
    A.label('k1_end')
    A('s_endpgm')
    A.label('k1_ebad')
    A('''s_mov_b64 exec, vcc
    v_mov_b32 v36, 0x10000''')
    for i in range(4): A(f'ds_add_u32 v{28+i}, v36 offset:{K1_CNT}')
    A('s_branch k1_bar2')

LS=528
K2_FLAG=32000; K2_CNT=32768; K2_EA=33280; K2_U=K2_EA+16384; K2_PART=K2_U+16384; K2_LDS=K2_PART+114*512
K2_RAWA=K2_PART+32768
vWC=4; vEA=8; vDEN=12; vNUM=16; vT=20; vM=28; vSD=32; vSN=36; vIDX=40; vE=48; vA=60; vLB=61; vB=62; vP=63; vD=64
vFIRST=112; vLAST=113
def insert(recs, addr, pos, msk):
    for i,r in enumerate(recs):
        A(f'''v_cmp_ne_u32 s[{msk+2*i}:{msk+2*i+1}], 0, v{r}
        v_alignbit_b32 v{addr+i}, v{r}, v{r}, 25
        v_and_b32 v{addr+i}, 0x1bc, v{addr+i}
        s_mov_b64 exec, s[{msk+2*i}:{msk+2*i+1}]
        ds_add_rtn_u32 v{pos+i}, v{addr+i}, v17 offset:{K2_CNT}
        v_and_b32 v{r}, 0x87fffffc, v{r}
        s_mov_b64 exec, -1''')
def insert2(recs, pos, msk):
    for i,r in enumerate(recs):
        A(f'''s_mov_b64 exec, s[{msk+2*i}:{msk+2*i+1}]
        ds_write_b32 v{pos+i}, v{r}''')
    A('s_mov_b64 exec, -1')

def secF():
    if OPT['park']:
        A('s_setprio 0')
        for i in range(4): A(f'v_fmac_f32 v{vDEN+i}, v{vSD+i}, v{vM+i}')
        for i in range(4): A(f'v_fmac_f32 v{vNUM+i}, v{vSN+i}, v{vM+i}')
        A('s_setprio 1')
    else:
        for i in range(2): A(f'v_pk_fma_f32 v[{vDEN+2*i}:{vDEN+2*i+1}], v[{vSD+2*i}:{vSD+2*i+1}], v[{vM+2*i}:{vM+2*i+1}], v[{vDEN+2*i}:{vDEN+2*i+1}]')
        for i in range(2): A(f'v_pk_fma_f32 v[{vNUM+2*i}:{vNUM+2*i+1}], v[{vSN+2*i}:{vSN+2*i+1}], v[{vM+2*i}:{vM+2*i+1}], v[{vNUM+2*i}:{vNUM+2*i+1}]')
def secM(d0, e0):
    for h in range(2):
        for i in range(4):
            A(f'v_fma_mix_f32 v{vT+4*h+i}, v{e0+h}, v{vWC+i}, v{d0+4*h+i} op_sel_hi:[0,0,1]')
def secRest(d0):
    for i in range(8): A(f'v_exp_f32 v{vT+i}, v{vT+i}')
    for i in range(4):
        A(f'v_pk_fma_f32 v[{vT+2*i}:{vT+2*i+1}], v[{vT+2*i}:{vT+2*i+1}], v[{vEA+2*(i%2)}:{vEA+2*(i%2)+1}], s[40:41]')
    for i in range(2):
        A(f'v_pk_mul_f32 v[{vM+2*i}:{vM+2*i+1}], v[{vT+2*i}:{vT+2*i+1}], v[{vT+4+2*i}:{vT+5+2*i}]')
    for i in range(4): A(f'v_rcp_f32 v{vM+i}, v{vM+i}')
    for i in range(2):
        A(f'v_pk_add_f32 v[{vSD+2*i}:{vSD+2*i+1}], v[{vT+2*i}:{vT+2*i+1}], v[{vT+4+2*i}:{vT+5+2*i}]')
    for i in range(2):
        A(f'v_pk_mul_f32 v[{vSN+2*i}:{vSN+2*i+1}], v[{vT+4+2*i}:{vT+5+2*i}], v[{d0+2*i}:{d0+2*i+1}]')
    for i in range(2):
        A(f'v_pk_fma_f32 v[{vSN+2*i}:{vSN+2*i+1}], v[{vT+2*i}:{vT+2*i+1}], v[{d0+4+2*i}:{d0+5+2*i}], v[{vSN+2*i}:{vSN+2*i+1}]')
def stageR(sub, eset, tag):
    A(f'''s_and_b64 s[46:47], s[44:45], s[48:49]
    s_cbranch_scc1 k2_lchg_{tag}''')
    A.label(f'k2_lback_{tag}')
    A('s_lshr_b64 s[44:45], s[44:45], 1')
    for i in range(4): A(f'ds_read_u16 v{vIDX+2*i}, v{vA} offset:{16*sub+4*i}')
    for i in range(4): A(f'ds_read_u16_d16_hi v{vE+4*eset+i}, v{vA} offset:{16*sub+4*i+2}')
def lchg(sub, tag):
    A.label(f'k2_lchg_{tag}')
    A(f'''s_mul_i32 exec_lo, s46, 0xffff
    s_mul_i32 exec_hi, s47, 0xffff
    v_add_u32 v{vLB}, {LS}, v{vLB}
    v_subrev_u32 v{vA}, {16*sub}, v{vLB}
    s_mov_b64 exec, -1
    s_branch k2_lback_{tag}''')
def stageG(dset):
    for i in range(4):
        A(f'buffer_load_dwordx4 v[{vD+16*dset+4*i}:{vD+16*dset+4*i+3}], v[{vIDX+2*i}:{vIDX+2*i+1}], s[20:23], 0 idxen offen')

def k2():
    A.raw('.p2align 8'); A.raw('.type k2_kernel,@function'); A.label('k2_kernel')
    A("""s_cmp_ge_u32 s2, 256
    s_cbranch_scc1 k2_end
    s_load_dwordx2 s[4:5], s[0:1], 0
    s_load_dwordx2 s[6:7], s[0:1], 32
    s_load_dwordx4 s[8:11], s[0:1], 48
    s_load_dwordx2 s[12:13], s[0:1], 72
    s_load_dwordx2 s[14:15], s[0:1], 88""")
    stamp_init(); stamp(0)
    A(f"""v_lshrrev_b32 v1, 6, v0
    v_lshlrev_b32 v8, 4, v0
    v_readfirstlane_b32 s18, v1
    v_and_b32 v1, 15, v0
    v_lshlrev_b32 v9, 3, v1
    v_lshlrev_b32 v1, 4, v1
    s_mul_i32 s19, s2, {NB}
    s_lshl_b32 s16, s2, 15
    v_add_u32 v10, s16, v8
    s_lshl_b32 s17, s19, 7
    v_lshlrev_b32 v11, 3, v0
    v_add_u32 v11, s17, v11
    v_min_u32 v12, {N*128-8}, v11
    s_lshr_b32 s3, s2, 6
    s_lshl_b32 s3, s3, 10
    s_add_u32 s3, s3, {WS_HDR}
    v_lshlrev_b32 v13, 2, v0
    v_add_u32 v14, s3, v13
    v_min_u32 v13, {781*4}, v13
    v_add_u32 v13, {WS_GF}, v13
    s_mov_b32 s22, {12513*4}
    s_mov_b32 s23, 0x20000
    s_mov_b32 s26, {N*128}
    s_mov_b32 s27, 0x20000
    v_mov_b32 v17, 4
    v_mov_b32 v16, 0
    v_add_u32 v18, 12288, v10
    v_add_u32 v19, 24576, v10
    s_waitcnt lgkmcnt(0)
    s_add_u32 s20, s14, {WS_TAB}
    s_addc_u32 s21, s15, 0
    s_and_b32 s21, s21, 0xffff
    s_or_b32 s21, s21, {64<<16}
    s_mov_b32 s24, s12
    s_mov_b32 s25, s13
    s_cmp_ge_u32 s18, 12
    s_cbranch_scc1 k2_gl
    v_mov_b32 v72, 0
    v_mov_b32 v73, 0
    v_mov_b32 v74, 0
    v_mov_b32 v75, 0
    global_load_dwordx4 v[64:67], v10, s[14:15]
    global_load_dwordx4 v[68:71], v18, s[14:15]
    s_cmp_ge_u32 s18, 8
    s_cbranch_scc1 k2_l3
    global_load_dwordx4 v[72:75], v19, s[14:15]
    s_cmp_ge_u32 s18, 4
    s_cbranch_scc1 k2_l3
    global_load_dword v16, v14, s[14:15]
    s_branch k2_l3""")
    A.label('k2_gl')
    A("""s_sub_u32 s28, s18, 12
    s_lshl_b32 s28, s28, 4
    s_add_u32 s29, s28, s19""")
    gemm_loads('s[4:5]','s[6:7]','s[10:11]','s29',20,64,96,28,29,30)
    A.label('k2_l3')
    A("""global_load_dword v15, v13, s[14:15]
    global_load_dwordx2 v[4:5], v9, s[8:9]
    global_load_dwordx2 v[2:3], v12, s[4:5]""")
    if OPT['prefetch']:
        A(f"""s_lshr_b32 s30, s2, 3
        s_mul_i32 s30, s30, {784*128}
        s_add_u32 s30, s30, {WS_TAB}
        v_min_u32 v18, 783, v0
        v_lshlrev_b32 v18, 7, v18
        v_add_u32 v18, s30, v18
        s_cmp_ge_u32 s18, 13
        s_cbranch_scc1 k2_nopf
        global_load_dword v19, v18, s[14:15]""")
        A.label('k2_nopf')
    stamp(1)
    A(f"""v_mov_b32 v60, 0
    v_mov_b32 v61, 0
    v_mov_b32 v62, 0
    v_mov_b32 v63, 0
    ds_write_b128 v8, v[60:63]
    ds_write_b128 v8, v[60:63] offset:16384
    v_and_b32 v9, 63, v0
    v_and_b32 v10, 3, v9
    v_and_b32 v12, 60, v9
    v_lshl_add_u32 v12, v10, 7, v12
    v_mul_u32_u24 v13, {LS}, v9
    s_cmp_lg_u32 s18, 0
    s_cbranch_scc1 k2_i2
    ds_write_b32 v12, v13 offset:{K2_CNT}""")
    A.label('k2_i2')
    A("""s_waitcnt lgkmcnt(0)
    s_barrier""")
    stamp(2)
    A("""s_cmp_ge_u32 s18, 12
    s_cbranch_scc1 k2_gemm""")
    npf = 4 if OPT['prefetch'] else 3
    A(f's_waitcnt vmcnt({npf+1})')
    stamp(3)
    insert(list(range(64,68)),76,88,40)
    A(f's_waitcnt vmcnt({npf})')
    insert(list(range(68,76)),80,92,48)
    A('s_waitcnt lgkmcnt(0)')
    insert2(list(range(64,76)),88,40)
    A(f"""s_waitcnt vmcnt({npf-1})
    v_or_b32 v15, v15, v16
    v_cmp_ne_u32 vcc, 0, v15
    s_cbranch_vccnz k2_rare""")
    A.label('k2_rare_back')
    A('s_branch k2_bar2')
    A.label('k2_gemm')
    A(f"""s_mov_b32 s36, 0x05040100
    s_mov_b32 s37, 0x07060302
    s_mov_b32 s38, {f2u(-L2E):#x}
    v_mov_b32 v60, {f2u(-62.0):#x}
    v_bfe_u32 v61, v0, 4, 2
    v_lshl_add_u32 v61, v61, 10, v1
    s_lshl_b32 s28, s28, 8
    v_add_u32 v61, s28, v61
    v_add_u32 v62, {K2_U}, v61
    v_add_u32 v63, {K2_RAWA}, v61
    s_waitcnt vmcnt(19)""")
    gemm_mat(20,64,28,44,'s36','s37')
    A('s_waitcnt vmcnt(3)')
    gemm_mat(20,96,28,64,'s36','s37')
    A('v_max3_f32 v18, |v44|, |v45|, |v46|')
    for i in (47,49,51,53,55,57): A(f'v_max3_f32 v18, v18, |v{i}|, |v{i+1}|')
    A('v_max_f32_e64 v18, v18, |v59|')
    for r in range(4):
        for t in range(4): A(f'v_fma_f32 v{80+4*r+t}, v{44+4*t+r}, s38, v60')
    for i in range(16): A(f'v_exp_f32 v{80+i}, v{80+i}')
    for r in range(4):
        A(f"""ds_write2_b32 v63, v{44+r}, v{48+r} offset0:{64*r} offset1:{64*r+1}
        ds_write2_b32 v63, v{52+r}, v{56+r} offset0:{64*r+2} offset1:{64*r+3}
        ds_write2_b32 v62, v{64+r}, v{68+r} offset0:{64*r} offset1:{64*r+1}
        ds_write2_b32 v62, v{72+r}, v{76+r} offset0:{64*r+2} offset1:{64*r+3}
        ds_write_b128 v61, v[{80+4*r}:{83+4*r}] offset:{K2_EA+256*r}""")
    A(f"""s_waitcnt vmcnt(2)
    v_cmp_nge_f32 vcc, {f2u(51.0/L2E):#x}, v18
    v_cmp_ne_u32 s[40:41], 0, v15
    s_or_b64 vcc, vcc, s[40:41]
    s_cbranch_scc0 k2_bar2
    v_mov_b32 v18, 2
    v_mov_b32 v10, {K2_FLAG}
    ds_write_b32 v10, v18""")
    A.label('k2_bar2')
    stamp(4)
    A(f"""s_waitcnt vmcnt(0)
    s_mov_b32 s38, {f2u(-L2E*2.0**113):#x}
    v_and_b32 v7, 0xffff0000, v5
    v_lshlrev_b32 v6, 16, v5
    v_and_b32 v5, 0xffff0000, v4
    v_lshlrev_b32 v4, 16, v4
    v_mul_f32 v4, s38, v4
    v_mul_f32 v5, s38, v5
    v_mul_f32 v6, s38, v6
    v_mul_f32 v7, s38, v7
    v_max3_f32 v18, |v4|, |v5|, |v6|
    v_max_f32_e64 v18, v18, |v7|
    v_cmp_nge_f32 vcc, {f2u(2.0**115):#x}, v18
    s_mov_b64 s[52:53], vcc
    v_mov_b32 v10, {K2_FLAG}
    s_waitcnt lgkmcnt(0)
    s_barrier""")
    stamp(5)
    A(f"""ds_read_b32 v14, v12 offset:{K2_CNT}
    ds_read_b32 v15, v10
    s_mov_b32 s50, -1
    s_mov_b32 s51, 0x1ffff
    s_mov_b32 s48, 0x00010001
    s_mov_b32 s49, 0x00010001
    s_mov_b32 s40, {f2u(2.0**-62):#x}
    s_mov_b32 s41, {f2u(2.0**-62):#x}
    v_mov_b32 v{vIDX+1}, v1
    v_mov_b32 v{vIDX+3}, v1
    v_mov_b32 v{vIDX+5}, v1
    v_mov_b32 v{vIDX+7}, v1
    s_waitcnt lgkmcnt(0)
    v_sub_u32 v14, v14, v13
    v_cmp_lt_u32 vcc, 512, v14
    s_or_b64 s[52:53], s[52:53], vcc
    v_cmp_ne_u32 vcc, 0, v15
    s_or_b64 s[52:53], s[52:53], vcc
    s_cbranch_scc1 k2_slow
    v_add_u32 v14, 12, v14
    v_lshrrev_b32 v14, 4, v14
    v_max_u32 v14, 1, v14
    v_cndmask_b32 v14, 0, v14, s[50:51]
    v_mov_b32 v15, v14
    s_nop 1
    v_add_u32_dpp v15, v15, v15 row_shr:1 row_mask:0xf bank_mask:0xf bound_ctrl:0
    s_nop 1
    v_add_u32_dpp v15, v15, v15 row_shr:2 row_mask:0xf bank_mask:0xf bound_ctrl:0
    s_nop 1
    v_add_u32_dpp v15, v15, v15 row_shr:4 row_mask:0xf bank_mask:0xf bound_ctrl:0
    s_nop 1
    v_add_u32_dpp v15, v15, v15 row_shr:8 row_mask:0xf bank_mask:0xf bound_ctrl:0
    s_nop 1
    v_add_u32_dpp v15, v15, v15 row_bcast:15 row_mask:0xa bank_mask:0xf
    s_nop 1
    v_add_u32_dpp v15, v15, v15 row_bcast:31 row_mask:0xc bank_mask:0xf
    s_nop 0
    v_readlane_b32 s30, v15, 63
    v_sub_u32 v14, v15, v14
    s_nop 0
    s_cmp_gt_u32 s30, 1024
    s_cbranch_scc1 k2_slow
    s_add_u32 s30, s30, 3
    s_lshr_b32 s30, s30, 2
    s_lshr_b32 s31, s30, 4
    s_and_b32 s32, s30, 15
    s_cmp_lt_u32 s18, s32
    s_addc_u32 s33, s31, 0
    s_mul_i32 s34, s18, s31
    s_min_u32 s35, s18, s32
    s_add_u32 s34, s34, s35
    s_lshl_b32 s34, s34, 2
    s_lshl_b32 s35, s33, 2
    v_subrev_u32 v16, s34, v14
    v_cmp_gt_u32 vcc, s35, v16
    s_and_b64 vcc, vcc, s[50:51]
    v_lshlrev_b32 v16, 2, v16
    v_mov_b32 v18, 1
    v_cndmask_b32 v16, 0, v16, vcc
    ds_permute_b32 v19, v16, v18
    v_lshlrev_b32 v16, 4, v14
    v_sub_u32 v16, v13, v16""")
    for g in range(4):
        if g: A(f's_add_u32 s34, s34, s33')
        A(f"""v_cmp_ge_u32 vcc, s34, v15
        s_and_b64 vcc, vcc, s[50:51]
        s_bcnt1_i32_b64 s{54+g}, vcc
        s_lshl_b32 s{58+g}, s34, 4
        v_readlane_b32 s36, v16, s{54+g}
        s_nop 1
        s_add_u32 s{58+g}, s{58+g}, s36""")
    A(f"""v_mov_b32 v{vLB}, s54
    v_mov_b32 v{vA}, s58
    s_mov_b32 exec_lo, 0xffff0000
    v_mov_b32 v{vLB}, s55
    v_mov_b32 v{vA}, s59
    s_mov_b32 exec_lo, 0
    v_mov_b32 v{vLB}, s56
    v_mov_b32 v{vA}, s60
    s_mov_b32 exec_hi, 0xffff0000
    v_mov_b32 v{vLB}, s57
    v_mov_b32 v{vA}, s61
    s_mov_b64 exec, -1
    v_lshl_add_u32 v{vB}, v{vLB}, 8, v1
    v_lshrrev_b32 v{vP}, 4, v0
    v_add_u32 v{vP}, v{vP}, v{vLB}
    v_lshl_add_u32 v{vP}, v{vP}, 9, v1
    v_add_u32 v{vP}, {K2_PART}, v{vP}
    v_mul_u32_u24 v{vLB}, {LS}, v{vLB}
    s_waitcnt lgkmcnt(0)
    v_cmp_ne_u32 s[42:43], 0, v19
    ds_read_b128 v[{vEA}:{vEA+3}], v{vB} offset:{K2_EA}
    v_mov_b32 v{vFIRST}, v14
    v_mov_b32 v{vLAST}, v15
    s_lshr_b64 s[44:45], s[42:43], s33
    s_lshr_b64 s[46:47], s[44:45], s33
    s_lshr_b64 s[36:37], s[46:47], s33
    s_pack_ll_b32_b16 s42, s42, s44
    s_pack_ll_b32_b16 s43, s46, s36
    s_andn2_b64 s[42:43], s[42:43], s[48:49]
    s_mov_b64 s[44:45], s[42:43]
    s_cmp_eq_u32 s33, 0
    s_cbranch_scc1 k2_done""")
    for i in range(vE, vE+12): A(f'v_mov_b32 v{i}, 0')
    stageR(0,0,'p0')
    for i in range(vDEN, vDEN+8): A(f'v_mov_b32 v{i}, 0')
    for i in range(vM, vM+12): A(f'v_mov_b32 v{i}, 0')
    A('s_waitcnt lgkmcnt(0)')
    stageG(0)
    stageR(1,1,'p1')
    A("""s_cmp_lt_u32 s33, 2
    s_cbranch_scc1 k2_p2
    s_waitcnt lgkmcnt(0)""")
    stageG(1)
    A.label('k2_p2')
    stageR(2,2,'p2')
    A(f'v_add_u32 v{vA}, 48, v{vA}')
    stamp(6)
    A('s_setprio 1' if OPT['park'] else 's_nop 0')
    A.label('k2_loop')
    for s_ in range(3):
        A(f"""s_cmp_lt_u32 s33, 3
        s_cbranch_scc1 k2_tail_{s_}
        s_waitcnt lgkmcnt(0)""")
        stageG((s_+2)%3)
        secF()
        A('s_waitcnt vmcnt(8)')
        A.label(f'k2_tback_{s_}')
        A(f"""s_and_b64 s[46:47], s[42:43], s[48:49]
        s_cbranch_scc1 k2_flush_{s_}""")
        A.label(f'k2_fback_{s_}')
        A('s_lshr_b64 s[42:43], s[42:43], 1')
        secM(vD+16*s_, vE+4*s_)
        secRest(vD+16*s_)
        secF()
        secM(vD+16*s_+8, vE+4*s_+2)
        stageR(s_, s_, f'l{s_}')
        if s_==2: A(f'v_add_u32 v{vA}, 48, v{vA}')
        secRest(vD+16*s_+8)
        A('s_sub_u32 s33, s33, 1')
        if s_==2: A('s_branch k2_loop')
    for s_ in range(3):
        A.label(f'k2_tail_{s_}')
        secF()
        A(f"""s_cmp_eq_u32 s33, 0
        s_cbranch_scc1 k2_exit
        s_waitcnt lgkmcnt(0) vmcnt(4)
        s_cmp_eq_u32 s33, 2
        s_cbranch_scc1 k2_tback_{s_}
        s_waitcnt vmcnt(0)
        s_branch k2_tback_{s_}""")
    for s_ in range(3):
        A.label(f'k2_flush_{s_}')
        A(f"""s_mul_i32 exec_lo, s46, 0xffff
        s_mul_i32 exec_hi, s47, 0xffff
        v_add_u32 v{vB}, 256, v{vB}
        ds_write_b128 v{vP}, v[{vNUM}:{vNUM+3}]
        ds_write_b128 v{vP}, v[{vDEN}:{vDEN+3}] offset:256
        ds_read_b128 v[{vEA}:{vEA+3}], v{vB} offset:{K2_EA}
        s_waitcnt lgkmcnt(0)
        v_add_u32 v{vP}, 512, v{vP}""")
        for i in range(vDEN, vDEN+8): A(f'v_mov_b32 v{i}, 0')
        A(f"""s_mov_b64 exec, -1
        s_branch k2_fback_{s_}""")
    lchg(0,'p0'); lchg(1,'p1'); lchg(2,'p2')
    for s_ in range(3): lchg(s_, f'l{s_}')
    A.label('k2_exit')
    A(f"""s_setprio 0
    ds_write_b128 v{vP}, v[{vNUM}:{vNUM+3}]
    ds_write_b128 v{vP}, v[{vDEN}:{vDEN+3}] offset:256""")
    A.label('k2_done')
    stamp(7)
    A(f"""s_add_u32 s34, s31, 1
    s_mul_i32 s35, s34, s32
    s_lshl_b32 s35, s35, 2
    s_lshl_b32 s36, s32, 2
    v_cvt_f32_u32 v20, s34
    v_cvt_f32_u32 v21, s31
    v_rcp_f32 v20, v20
    v_rcp_f32 v21, v21
    v_add_u32 v{vLAST}, -1, v{vLAST}""")
    for r in (vFIRST, vLAST):
        A(f"""v_subrev_u32 v22, s35, v{r}
        v_cvt_f32_u32 v23, v{r}
        v_cvt_f32_u32 v22, v22
        v_add_f32 v23, 0.5, v23
        v_add_f32 v22, 0.5, v22
        v_mul_f32 v23, v23, v20
        v_mul_f32 v22, v22, v21
        v_cvt_u32_f32 v23, v23
        v_cvt_u32_f32 v22, v22
        v_cmp_gt_u32 vcc, s35, v{r}
        v_add_u32 v22, s36, v22
        s_nop 0
        v_cndmask_b32 v{r}, v22, v23, vcc""")
    A(f"""v_lshrrev_b32 v24, 4, v0
    v_lshlrev_b32 v25, 2, v24
    ds_bpermute_b32 v26, v25, v{vFIRST}
    ds_bpermute_b32 v27, v25, v{vLAST}
    s_mov_b32 s38, {f2u(1e-6*2.0**62):#x}""")
    A.label('k2_epi')
    A(f"""v_lshl_add_u32 v29, v24, 8, v1
    v_lshlrev_b32 v30, 3, v0
    s_waitcnt lgkmcnt(0)
    v_add_u32 v28, v26, v24
    v_lshl_add_u32 v28, v28, 9, v1
    v_add_u32 v28, {K2_PART}, v28
    v_sub_u32 v27, v27, v26
    v_min_u32 v27, 63, v27
    s_barrier""")
    stamp(8)
    A(f"""v_cmp_gt_u32 vcc, {NB*16}, v0
    s_and_saveexec_b64 s[46:47], vcc
    s_cbranch_execz k2_fin
    s_mov_b64 s[46:47], exec
    ds_read_b128 v[32:35], v28
    ds_read_b128 v[36:39], v28 offset:256
    ds_read_b128 v[40:43], v29 offset:{K2_U}""")
    A.label('k2_el')
    A(f"""v_cmp_lt_u32 vcc, 0, v27
    s_and_b64 exec, exec, vcc
    s_cbranch_execz k2_el_done
    ds_read_b128 v[44:47], v28 offset:512
    ds_read_b128 v[48:51], v28 offset:768
    v_add_u32 v28, 512, v28
    v_add_u32 v27, -1, v27
    s_waitcnt lgkmcnt(0)
    v_pk_add_f32 v[32:33], v[32:33], v[44:45]
    v_pk_add_f32 v[34:35], v[34:35], v[46:47]
    v_pk_add_f32 v[36:37], v[36:37], v[48:49]
    v_pk_add_f32 v[38:39], v[38:39], v[50:51]
    s_branch k2_el""")
    A.label('k2_el_done')
    A("""s_mov_b64 exec, s[46:47]
    s_waitcnt lgkmcnt(0)""")
    for i in range(4): A(f'v_add_f32 v{36+i}, s38, v{36+i}')
    for i in range(4): A(f'v_rcp_f32 v{36+i}, v{36+i}')
    A("""v_lshlrev_b32 v44, 16, v2
    v_and_b32 v45, 0xffff0000, v2
    v_lshlrev_b32 v46, 16, v3
    v_and_b32 v47, 0xffff0000, v3""")
    for i in range(4): A(f'v_fmac_f32 v{40+i}, v{32+i}, v{36+i}')
    for i in range(4): A(f'v_mul_f32 v{32+i}, 0, v{40+i}')
    for i in range(4): A(f'v_max_f32 v{40+i}, v{40+i}, v{32+i}')
    for i in range(4): A(f'v_add_f32 v{40+i}, v{40+i}, v{44+i}')
    A("""v_cvt_pk_bf16_f32 v40, v40, v41
    v_cvt_pk_bf16_f32 v41, v42, v43
    buffer_store_dwordx2 v[40:41], v30, s[24:27], s17 offen""")
    A.label('k2_fin')
    if OPT['stamps']:
        A('s_waitcnt vmcnt(0)'); stamp(9)
    stamp_flush(1,'s[14:15]','s18')
    A.label('k2_end')
    A('s_endpgm')
    A.label('k2_rare')
    A(f"""v_and_b32 v18, 2, v15
    v_cmp_ne_u32 vcc, 0, v18
    s_cbranch_vccz k2_rare2
    v_mov_b32 v18, 2
    v_mov_b32 v10, {K2_FLAG}
    ds_write_b32 v10, v18""")
    A.label('k2_rare2')
    A(f"""v_and_b32 v18, 1, v16
    v_cmp_ne_u32 vcc, 0, v18
    s_cbranch_vccz k2_rare_back
    s_lshl_b32 s30, s2, 12
    s_add_u32 s30, s30, {WS_SEG2}
    v_add_u32 v18, s30, v8
    v_mov_b32 v100, 0
    v_mov_b32 v101, 0
    v_mov_b32 v102, 0
    v_mov_b32 v103, 0
    s_mov_b64 exec, vcc
    global_load_dwordx4 v[100:103], v18, s[14:15]
    s_mov_b64 exec, -1
    s_waitcnt vmcnt(0)""")
    insert(list(range(100,104)),104,108,40)
    A('s_waitcnt lgkmcnt(0)')
    insert2(list(range(100,104)),108,40)
    A('s_branch k2_rare_back')
    A.label('k2_slow')
    A(f"""s_load_dwordx2 s[28:29], s[0:1], 8
    s_load_dwordx4 s[32:35], s[0:1], 16
    s_load_dwordx2 s[36:37], s[0:1], 40
    s_load_dwordx2 s[30:31], s[0:1], 64
    v_lshlrev_b32 v10, 3, v0
    v_lshlrev_b32 v11, 1, v9
    v_mov_b32 v60, 0
    v_mov_b32 v61, 0
    v_mov_b32 v62, 0
    v_mov_b32 v63, 0
    v_add_u32 v16, {K2_PART}, v8
    s_mov_b32 s42, 0x05040100
    s_mov_b32 s43, 0x07060302
    s_waitcnt lgkmcnt(0)
    s_barrier
    global_load_dwordx2 v[20:21], v10, s[36:37]
    global_load_dwordx2 v[22:23], v10, s[30:31]
    global_load_ushort v4, v11, s[8:9]
    ds_write_b128 v16, v[60:63]
    ds_write_b128 v16, v[60:63] offset:16384
    s_waitcnt vmcnt(0)
    v_perm_b32 v24, v22, v20, s42
    v_perm_b32 v25, v22, v20, s43
    v_perm_b32 v26, v23, v21, s42
    v_perm_b32 v27, v23, v21, s43
    ds_write_b128 v8, v[24:27]
    v_lshlrev_b32 v4, 16, v4
    v_lshlrev_b32 v12, 2, v9
    s_waitcnt lgkmcnt(0)
    s_barrier""")
    for k in range(64): A(f'ds_read_b32 v{64+k}, v12 offset:{256*k}')
    A(f"""s_mul_i32 s44, s18, {E//16}
    s_add_u32 s45, s44, {E//16}
    s_mov_b32 s39, {f2u(-L2E):#x}
    s_waitcnt lgkmcnt(0)""")
    A.label('k2_s_scan')
    A(f"""v_add_u32 v14, s44, v9
    v_cmp_gt_u32 s[46:47], s45, v14
    v_min_u32 v14, {E-1}, v14
    v_lshlrev_b32 v15, 2, v14
    v_lshlrev_b32 v14, 1, v14
    global_load_dword v16, v15, s[34:35]
    global_load_dword v18, v15, s[32:33]
    global_load_ushort v19, v14, s[28:29]
    s_waitcnt vmcnt(0)
    v_subrev_u32 v16, s19, v16
    v_cmp_gt_u32 vcc, {NB}, v16
    v_min_u32 v18, {N-1}, v18
    v_lshlrev_b32 v19, 16, v19
    s_and_b64 s[46:47], s[46:47], vcc""")
    A.label('k2_s_edge')
    A(f"""s_cmp_eq_u64 s[46:47], 0
    s_cbranch_scc1 k2_s_next
    s_ff1_i32_b64 s48, s[46:47]
    s_bitset0_b64 s[46:47], s48
    v_readlane_b32 s49, v16, s48
    v_readlane_b32 s50, v18, s48
    v_readlane_b32 s51, v19, s48
    s_nop 1
    s_lshl_b32 s50, s50, 7
    v_add_u32 v20, s50, v11
    global_load_ushort v21, v20, s[4:5]
    s_lshl_b32 s50, s49, 8
    s_add_u32 s50, s50, {K2_RAWA}
    v_add_u32 v22, s50, v12
    ds_read_b32 v23, v22
    s_lshl_b32 s50, s49, 9
    s_add_u32 s50, s50, {K2_PART}
    v_add_u32 v22, s50, v12
    v_mov_b32 v24, 0
    v_mov_b32 v25, 0
    s_waitcnt vmcnt(0) lgkmcnt(0)
    v_lshlrev_b32 v21, 16, v21
    v_fmac_f32 v23, s51, v4""")
    for k in range(64):
        A(f"""v_readlane_b32 s52, v21, {k}
        v_lshlrev_b32 v26, 16, v{64+k}
        v_and_b32 v27, 0xffff0000, v{64+k}
        v_fmac_f32 v24, s52, v26
        v_fmac_f32 v25, s52, v27""")
    A("""v_add_f32 v23, v23, v24
    v_mul_f32 v23, s39, v23
    v_exp_f32 v23, v23
    s_nop 0
    v_add_f32 v23, 1.0, v23
    v_rcp_f32 v23, v23
    s_nop 0
    v_mul_f32 v25, v25, v23
    ds_add_f32 v22, v25
    ds_add_f32 v22, v23 offset:256
    s_branch k2_s_edge""")
    A.label('k2_s_next')
    A(f"""s_add_u32 s44, s44, 64
    s_cmp_lt_u32 s44, s45
    s_cbranch_scc1 k2_s_scan
    v_lshrrev_b32 v24, 4, v0
    v_mov_b32 v26, 0
    v_mov_b32 v27, 0
    s_mov_b32 s38, {f2u(1e-6):#x}
    s_branch k2_epi""")

def kd(name, vgpr, sgpr):
    return f""".amdhsa_kernel {name}
  .amdhsa_next_free_vgpr {vgpr}
  .amdhsa_next_free_sgpr {sgpr}
  .amdhsa_accum_offset {vgpr}
  .amdhsa_group_segment_fixed_size 0
  .amdhsa_kernarg_size 96
  .amdhsa_user_sgpr_count 2
  .amdhsa_user_sgpr_kernarg_segment_ptr 1
  .amdhsa_system_sgpr_workgroup_id_x 1
  .amdhsa_float_denorm_mode_32 3
.end_amdhsa_kernel
"""
hdr = open('standalone__edge_featured_mpnn_gatedgcn__graph.s.ref').read().split('; Override launch')[0]
k1(); k2()
out = hdr + f"""; @launch kernel=k1_kernel grid=(256,1,1) block=(1024,1,1) lds={K1_LDS}
; @launch kernel=k2_kernel grid=(256,1,1) block=(1024,1,1) lds={K2_LDS}
.amdgcn_target "amdgcn-amd-amdhsa--gfx950"
.text
.globl k1_kernel
.globl k2_kernel
""" + A.text() + '.section .rodata,"a"\n.p2align 6\n' + kd('k1_kernel',128,100) + '.p2align 6\n' + kd('k2_kernel',128,100)
open(sys.argv[1],'w').write(out)
```

```python
import sys, struct
import numpy as np

N=12500; E=800000; NB=49; CH=3128
WS_SEG=0; WS_TAB=8<<20; WS_HDR=12<<20; WS_GF=WS_HDR+4096; WS_SEG2=13<<20; WS_STAMP=16<<20
WS_SIZE=268435456
def f2u(x): return struct.unpack('<I', struct.pack('<f', x))[0]
L2E=1.4426950408889634

class Asm:
    def __init__(s): s.L=[]
    def __call__(s, x):
        for ln in x.strip('\n').split('\n'): s.L.append('    '+ln.strip())
    def label(s, n): s.L.append(n+':')
    def raw(s, x): s.L.append(x)
    def text(s): return '\n'.join(s.L)+'\n'

OPT = dict(stamps=False, segst='', tabst='', prefetch=True, park=True)
for a in sys.argv[2:]:
    k,v=a.split('=')
    OPT[k] = {'0':False,'1':True}.get(v, v)

A=Asm()
SB=66
def stamp_init():
    if OPT['stamps']:
        for i in range(16): A(f's_mov_b64 s[{SB+2*i}:{SB+2*i+1}], 0')
def stamp(i, cyc=None):
    if OPT['stamps']:
        A(f's_memrealtime s[{SB+2*i}:{SB+2*i+1}]')
        if cyc is not None: A(f's_memtime s[{SB+2*cyc}:{SB+2*cyc+1}]')
def stamp_flush(k, wsreg, wavereg):
    if not OPT['stamps']: return
    A(f'''s_waitcnt lgkmcnt(0)
    s_mov_b64 exec, 1
    s_lshl_b32 s98, s2, 4
    s_add_u32 s98, s98, {wavereg}
    s_lshl_b32 s98, s98, 7
    s_add_u32 s98, s98, {WS_STAMP + k*256*16*128}
    v_mov_b32 v1, s98''')
    for i in range(16):
        A(f'''v_mov_b32 v2, s{SB+2*i}
        v_mov_b32 v3, s{SB+2*i+1}
        global_store_dwordx2 v1, v[2:3], {wsreg} offset:{8*i}
        s_nop 1''')

def gemm_loads(xp, w1, w2, srow, X, R1, R2, t0, t1, t2):
    A(f'''v_and_b32 v{t0}, 15, v0
    v_bfe_u32 v{t1}, v0, 4, 2
    v_add_u32 v{t2}, {srow}, v{t0}
    v_min_u32 v{t2}, {N-1}, v{t2}
    v_lshlrev_b32 v{t2}, 7, v{t2}
    v_lshl_add_u32 v{t2}, v{t1}, 5, v{t2}
    v_lshlrev_b32 v{t0}, 3, v{t0}
    v_lshl_add_u32 v{t0}, v{t1}, 11, v{t0}
    global_load_dwordx4 v[{X}:{X+3}], v{t2}, {xp}
    global_load_dwordx4 v[{X+4}:{X+7}], v{t2}, {xp} offset:16''')
    for R,w in ((R1,w1),(R2,w2)):
        for kk in range(16):
            A(f'global_load_dwordx2 v[{R+2*kk}:{R+2*kk+1}], v{t0}, {w} offset:{kk*128}')

def gemm_mat(X, R, F, ACC, selLo, selHi):
    for t in range(4):
        Fb = F + (t&1)*8
        sel = selHi if (t&1) else selLo
        for s_ in range(2):
            for m in range(4):
                k0 = s_*8+2*m
                A(f'v_perm_b32 v{Fb+s_*4+m}, v{R+2*(k0+1)+(t>>1)}, v{R+2*k0+(t>>1)}, {sel}')
        A(f'''s_nop 1
        v_mfma_f32_16x16x32_bf16 v[{ACC+4*t}:{ACC+4*t+3}], v[{X}:{X+3}], v[{Fb}:{Fb+3}], 0
        v_mfma_f32_16x16x32_bf16 v[{ACC+4*t}:{ACC+4*t+3}], v[{X+4}:{X+7}], v[{Fb+4}:{Fb+7}], v[{ACC+4*t}:{ACC+4*t+3}]''')

K1_CNT=36864; K1_LDS=36864+1024
def k1():
    A.raw('.p2align 8'); A.raw('.type k1_kernel,@function'); A.label('k1_kernel')
    A('''s_cmp_ge_u32 s2, 256
    s_cbranch_scc1 k1_end
    s_load_dwordx8 s[4:11], s[0:1], 0
    s_load_dwordx2 s[12:13], s[0:1], 40
    s_load_dwordx2 s[14:15], s[0:1], 64
    s_load_dwordx2 s[16:17], s[0:1], 88''')
    stamp_init(); stamp(0)
    A(f'''v_lshrrev_b32 v1, 6, v0
    v_lshlrev_b32 v2, 4, v0
    v_readfirstlane_b32 s18, v1
    s_mul_i32 s19, s2, {CH*4}
    v_add_u32 v3, s19, v2
    v_lshrrev_b32 v4, 1, v3
    s_mul_i32 s20, s2, {CH//4}
    s_sub_u32 s20, {E//4}, s20
    s_min_u32 s20, s20, {CH//4}
    v_cmp_gt_u32 vcc, s20, v0
    s_mov_b64 s[22:23], vcc
    s_sub_u32 s24, s18, 13
    s_and_b32 s24, s24, 3
    s_lshl_b32 s24, s24, 8
    s_add_u32 s24, s24, s2
    s_cmp_ge_u32 s18, 12
    s_cselect_b32 s24, s24, 0xffff
    s_mov_b32 s30, {WS_SIZE}
    s_mov_b32 s31, 0x20000
    s_waitcnt lgkmcnt(0)
    s_mov_b32 s28, s16
    s_mov_b32 s29, s17
    s_mov_b64 exec, s[22:23]
    s_cbranch_execz k1_noedge
    global_load_dwordx4 v[12:15], v3, s[10:11]
    global_load_dwordx4 v[16:19], v3, s[8:9]
    global_load_dwordx2 v[20:21], v4, s[6:7]''')
    A.label('k1_noedge')
    A('s_mov_b64 exec, -1')
    stamp(1)
    A(f'''v_mov_b32 v8, 0
    v_mov_b32 v9, 0
    v_mov_b32 v10, 0
    v_mov_b32 v11, 0
    ds_write_b128 v2, v[8:11]
    ds_write_b128 v2, v[8:11] offset:16384
    s_cmp_ge_u32 s18, 4
    s_cbranch_scc1 k1_init_done
    ds_write_b128 v2, v[8:11] offset:32768
    v_mul_u32_u24 v5, 144, v0
    v_lshlrev_b32 v6, 2, v0
    ds_write_b32 v6, v5 offset:{K1_CNT}''')
    A.label('k1_init_done')
    A(f'''v_mov_b32 v22, 4
    s_mov_b32 s32, -49
    s_mov_b32 s33, {(127-113)<<23}
    s_mov_b32 s34, 0x78000000
    s_mov_b32 s35, 0xffff0000
    s_waitcnt lgkmcnt(0)
    s_barrier''')
    stamp(2)
    A('''s_cmp_ge_u32 s24, 782
    s_cbranch_scc1 k1_nogl
    s_lshl_b32 s25, s24, 4''')
    gemm_loads('s[4:5]','s[12:13]','s[14:15]','s25',104,40,72,5,6,7)
    stamp(8)
    A.label('k1_nogl')
    A('''s_mov_b64 exec, s[22:23]
    s_cbranch_execz k1_bar2
    s_waitcnt vmcnt(2)''')
    stamp(3)
    for i in range(4):
        A(f'''v_mul_u32_u24 v{24+i}, 21400, v{12+i}
        v_lshrrev_b32 v{24+i}, 20, v{24+i}
        v_lshlrev_b32 v{28+i}, 2, v{24+i}
        ds_add_rtn_u32 v{32+i}, v{28+i}, v22 offset:{K1_CNT}''')
    for i in range(4):
        A(f'v_mad_i32_i24 v{12+i}, v{24+i}, s32, v{12+i}')
    A('''s_waitcnt vmcnt(0)
    v_lshlrev_b32 v36, 16, v20
    v_lshlrev_b32 v38, 16, v21
    v_mul_f32 v36, s33, v36
    v_mul_f32 v37, s33, v20
    v_mul_f32 v38, s33, v38
    v_mul_f32 v39, s33, v21''')
    for i in range(4):
        A(f'''v_add_lshl_u32 v{16+i}, v{16+i}, 1, 2
        v_bfi_b32 v{16+i}, 3, v{12+i}, v{16+i}
        v_lshlrev_b32 v{12+i}, 25, v{12+i}
        v_bfi_b32 v{12+i}, s34, v{12+i}, v{36+i}
        v_bfi_b32 v{16+i}, s35, v{12+i}, v{16+i}''')
    A('''v_or3_b32 v36, v36, v37, v38
    v_or_b32 v36, v36, v39
    v_and_b32 v36, s34, v36
    v_cmp_ne_u32 vcc, 0, v36
    s_waitcnt lgkmcnt(0)''')
    for i in range(4):
        A(f'ds_write_b32 v{32+i}, v{16+i}')
    A('s_cbranch_vccnz k1_ebad')
    A.label('k1_bar2')
    A('''s_mov_b64 exec, -1
    s_waitcnt lgkmcnt(0)
    s_barrier''')
    stamp(4)
    A(f'''s_cmp_ge_u32 s18, 8
    s_cbranch_scc1 k1_not_copy
    v_lshrrev_b32 v5, 3, v0
    v_and_b32 v6, 7, v0
    v_lshlrev_b32 v6, 4, v6
    v_mul_u32_u24 v7, 144, v5
    v_add_u32 v7, v7, v6
    ds_read_b128 v[8:11], v7
    ds_read_b128 v[12:15], v7 offset:9216
    ds_read_b128 v[16:19], v7 offset:18432
    ds_read_b128 v[20:23], v7 offset:27648
    s_lshr_b32 s36, s2, 3
    v_add_u32 v24, s36, v5
    v_and_b32 v24, 31, v24
    v_lshl_add_u32 v6, v24, 7, v6
    v_lshl_add_u32 v5, v5, 15, v6
    s_and_b32 s36, s2, 7
    s_lshl_b32 s36, s36, 12
    s_add_u32 s37, s36, {2<<20}
    s_add_u32 s38, s36, {4<<20}
    s_add_u32 s39, s36, {6<<20}
    s_waitcnt lgkmcnt(3)
    buffer_store_dwordx4 v[8:11], v5, s[28:31], s36 offen {OPT['segst']}
    s_waitcnt lgkmcnt(2)
    buffer_store_dwordx4 v[12:15], v5, s[28:31], s37 offen {OPT['segst']}
    s_waitcnt lgkmcnt(1)
    buffer_store_dwordx4 v[16:19], v5, s[28:31], s38 offen {OPT['segst']}
    s_waitcnt lgkmcnt(0)
    buffer_store_dwordx4 v[20:23], v5, s[28:31], s39 offen {OPT['segst']}''' .replace('lgkmcnt(3)','lgkmcnt(0)' if OPT['stamps'] else 'lgkmcnt(3)'))
    stamp(5)
    if OPT['stamps']:
        A('s_waitcnt vmcnt(0)'); stamp(6)
    A('s_branch k1_fin')
    A.label('k1_not_copy')
    A(f'''s_cmp_ge_u32 s18, 12
    s_cbranch_scc1 k1_gemm
    v_subrev_u32 v5, 512, v0
    v_lshlrev_b32 v6, 2, v5
    ds_read_b32 v7, v6 offset:{K1_CNT}
    v_mul_u32_u24 v12, 144, v5
    ds_read_b128 v[8:11], v12 offset:128
    s_sub_u32 s36, s18, 8
    s_lshl_b32 s36, s36, 8
    s_add_u32 s36, s36, s2
    s_lshl_b32 s36, s36, 2
    s_add_u32 s36, s36, {WS_HDR}
    s_waitcnt lgkmcnt(0)
    v_sub_u32 v7, v7, v12
    v_cmp_lt_u32 vcc, 144, v7
    s_cmp_lg_u64 vcc, 0
    s_cselect_b32 s37, 2, 0
    v_cmp_lt_u32 vcc, 128, v7
    s_cmp_lg_u64 vcc, 0
    s_cselect_b32 s38, 1, 0
    s_or_b32 s37, s37, s38
    v_mov_b32 v13, s37
    v_lshlrev_b32 v5, 12, v5
    s_lshl_b32 s39, s2, 4
    s_add_u32 s39, s39, {WS_SEG2}
    s_cbranch_vccz k1_noext
    buffer_store_dwordx4 v[8:11], v5, s[28:31], s39 offen''')
    A.label('k1_noext')
    A('''s_mov_b64 exec, 1
    buffer_store_dword v13, off, s[28:31], s36
    s_branch k1_fin''')
    A.label('k1_gemm')
    A(f'''s_cmp_ge_u32 s24, 782
    s_cbranch_scc1 k1_fin
    s_mov_b32 s36, 0x05040100
    s_mov_b32 s37, 0x07060302
    s_mov_b32 s38, {f2u(-L2E):#x}
    s_mov_b32 s39, {f2u(2.0**-100):#x}
    s_mov_b32 s40, 0x07060100
    s_waitcnt vmcnt(16)''')
    stamp(5)
    gemm_mat(104,40,112,8,'s36','s37')
    A('s_waitcnt vmcnt(0)')
    gemm_mat(104,72,112,24,'s36','s37')
    A(f'''v_and_b32 v5, 15, v0
    v_bfe_u32 v6, v0, 4, 2
    v_lshlrev_b32 v5, 4, v5
    v_lshl_add_u32 v5, v6, 10, v5
    s_lshl_b32 s41, s24, 12
    s_add_u32 s41, s41, {WS_TAB+256}''')
    for i in range(16):
        A(f'v_fma_mixlo_f16 v{56+i}, v{8+i}, s38, 0')
    A('v_min3_f32 v72, v8, v9, v10')
    for i in (11,13,15,17,19,21): A(f'v_min3_f32 v72, v72, v{i}, v{i+1}')
    A('v_min_f32 v72, v72, v23')
    for i in range(16):
        A(f'v_add_f32 v{24+i}, s39, v{24+i}')
    A('''v_max3_f32 v73, |v24|, |v25|, |v26|
    v_min3_f32 v74, |v24|, |v25|, |v26|''')
    for i in (27,29,31,33,35,37):
        A(f'''v_max3_f32 v73, v73, |v{i}|, |v{i+1}|
        v_min3_f32 v74, v74, |v{i}|, |v{i+1}|''')
    A('''v_max_f32_e64 v73, v73, |v39|
    v_min_f32_e64 v74, v74, |v39|''')
    for r in range(4):
        for t in range(4):
            i=4*t+r
            A(f'''v_add_u32 v{24+i}, 0x8000, v{24+i}
            v_sub_u32_sdwa v{24+i}, v{24+i}, v{56+i} dst_sel:DWORD dst_unused:UNUSED_PAD src0_sel:DWORD src1_sel:WORD_0
            v_perm_b32 v{40+4*r+t}, v{24+i}, v{56+i}, s40''')
        A(f'buffer_store_dwordx4 v[{40+4*r}:{43+4*r}], v5, s[28:31], s41 offen offset:{r*256} {OPT["tabst"]}')
    A(f'''v_cmp_gt_f32 vcc, {f2u(-50.0/L2E):#x}, v72
    s_mov_b64 s[42:43], vcc
    v_cmp_lt_f32 vcc, {f2u(2.0**50):#x}, v73
    s_or_b64 s[42:43], s[42:43], vcc
    v_cmp_gt_f32 vcc, {f2u(2.0**-120):#x}, v74
    s_or_b64 s[42:43], s[42:43], vcc
    s_cselect_b32 s42, 2, 0
    v_mov_b32 v6, s42
    s_lshl_b32 s43, s24, 2
    s_add_u32 s43, s43, {WS_GF}
    s_cmp_lg_u32 s24, 0
    s_cbranch_scc1 k1_nodummy
    v_and_b32 v7, 63, v0
    v_lshlrev_b32 v7, 2, v7
    v_mov_b32 v8, 0x5510
    s_mov_b32 s44, {WS_TAB}
    buffer_store_dword v8, v7, s[28:31], s44 offen''')
    A.label('k1_nodummy')
    A('''s_mov_b64 exec, 1
    buffer_store_dword v6, off, s[28:31], s43''')
    stamp(6)
    A.label('k1_fin')
    if OPT['stamps']:
        A('s_waitcnt vmcnt(0)'); stamp(7)
    stamp_flush(0,'s[16:17]','s18')
    A.label('k1_end')
    A('s_endpgm')
    A.label('k1_ebad')
    A('''s_mov_b64 exec, vcc
    v_mov_b32 v36, 0x10000''')
    for i in range(4): A(f'ds_add_u32 v{28+i}, v36 offset:{K1_CNT}')
    A('s_branch k1_bar2')

LS=528
K2_FLAG=32000; K2_CNT=32768; K2_EA=33280; K2_U=K2_EA+16384; K2_PART=K2_U+16384; K2_LDS=K2_PART+114*512
K2_RAWA=K2_PART+32768
vWC=4; vEA=8; vDEN=12; vNUM=16; vT=20; vM=28; vSD=32; vSN=36; vIDX=40; vE=48; vA=60; vLB=61; vB=62; vP=63; vD=64
vFIRST=112; vLAST=113
def insert(recs, addr, pos, msk):
    for i,r in enumerate(recs):
        A(f'''v_cmp_ne_u32 s[{msk+2*i}:{msk+2*i+1}], 0, v{r}
        v_alignbit_b32 v{addr+i}, v{r}, v{r}, 25
        v_and_b32 v{addr+i}, 0x1bc, v{addr+i}
        s_mov_b64 exec, s[{msk+2*i}:{msk+2*i+1}]
        ds_add_rtn_u32 v{pos+i}, v{addr+i}, v17 offset:{K2_CNT}
        v_and_b32 v{r}, 0x87fffffc, v{r}
        s_mov_b64 exec, -1''')
def insert2(recs, pos, msk):
    for i,r in enumerate(recs):
        A(f'''s_mov_b64 exec, s[{msk+2*i}:{msk+2*i+1}]
        ds_write_b32 v{pos+i}, v{r}''')
    A('s_mov_b64 exec, -1')

def secF():
    if OPT['park']:
        A('s_setprio 0')
        for i in range(4): A(f'v_fmac_f32 v{vDEN+i}, v{vSD+i}, v{vM+i}')
        for i in range(4): A(f'v_fmac_f32 v{vNUM+i}, v{vSN+i}, v{vM+i}')
        A('s_setprio 1')
    else:
        for i in range(2): A(f'v_pk_fma_f32 v[{vDEN+2*i}:{vDEN+2*i+1}], v[{vSD+2*i}:{vSD+2*i+1}], v[{vM+2*i}:{vM+2*i+1}], v[{vDEN+2*i}:{vDEN+2*i+1}]')
        for i in range(2): A(f'v_pk_fma_f32 v[{vNUM+2*i}:{vNUM+2*i+1}], v[{vSN+2*i}:{vSN+2*i+1}], v[{vM+2*i}:{vM+2*i+1}], v[{vNUM+2*i}:{vNUM+2*i+1}]')
def secM(d0, e0):
    for h in range(2):
        for i in range(4):
            A(f'v_fma_mix_f32 v{vT+4*h+i}, v{e0+h}, v{vWC+i}, v{d0+4*h+i} op_sel_hi:[0,0,1]')
def secRest(d0):
    for i in range(8): A(f'v_exp_f32 v{vT+i}, v{vT+i}')
    for i in range(4):
        A(f'v_pk_fma_f32 v[{vT+2*i}:{vT+2*i+1}], v[{vT+2*i}:{vT+2*i+1}], v[{vEA+2*(i%2)}:{vEA+2*(i%2)+1}], s[40:41]')
    for i in range(2):
        A(f'v_pk_mul_f32 v[{vM+2*i}:{vM+2*i+1}], v[{vT+2*i}:{vT+2*i+1}], v[{vT+4+2*i}:{vT+5+2*i}]')
    for i in range(4): A(f'v_rcp_f32 v{vM+i}, v{vM+i}')
    for i in range(2):
        A(f'v_pk_add_f32 v[{vSD+2*i}:{vSD+2*i+1}], v[{vT+2*i}:{vT+2*i+1}], v[{vT+4+2*i}:{vT+5+2*i}]')
    for i in range(2):
        A(f'v_pk_mul_f32 v[{vSN+2*i}:{vSN+2*i+1}], v[{vT+4+2*i}:{vT+5+2*i}], v[{d0+2*i}:{d0+2*i+1}]')
    for i in range(2):
        A(f'v_pk_fma_f32 v[{vSN+2*i}:{vSN+2*i+1}], v[{vT+2*i}:{vT+2*i+1}], v[{d0+4+2*i}:{d0+5+2*i}], v[{vSN+2*i}:{vSN+2*i+1}]')
def stageR(sub, eset, tag):
    A(f'''s_and_b64 s[46:47], s[44:45], s[48:49]
    s_cbranch_scc1 k2_lchg_{tag}''')
    A.label(f'k2_lback_{tag}')
    A('s_lshr_b64 s[44:45], s[44:45], 1')
    for i in range(4): A(f'ds_read_u16 v{vIDX+2*i}, v{vA} offset:{16*sub+4*i}')
    for i in range(4): A(f'ds_read_u16_d16_hi v{vE+4*eset+i}, v{vA} offset:{16*sub+4*i+2}')
def lchg(sub, tag):
    A.label(f'k2_lchg_{tag}')
    A(f'''s_mul_i32 exec_lo, s46, 0xffff
    s_mul_i32 exec_hi, s47, 0xffff
    v_add_u32 v{vLB}, {LS}, v{vLB}
    v_subrev_u32 v{vA}, {16*sub}, v{vLB}
    s_mov_b64 exec, -1
    s_branch k2_lback_{tag}''')
def stageG(dset):
    for i in range(4):
        A(f'buffer_load_dwordx4 v[{vD+16*dset+4*i}:{vD+16*dset+4*i+3}], v[{vIDX+2*i}:{vIDX+2*i+1}], s[20:23], 0 idxen offen')

def k2():
    A.raw('.p2align 8'); A.raw('.type k2_kernel,@function'); A.label('k2_kernel')
    A("""s_cmp_ge_u32 s2, 256
    s_cbranch_scc1 k2_end
    s_load_dwordx2 s[4:5], s[0:1], 0
    s_load_dwordx2 s[6:7], s[0:1], 32
    s_load_dwordx4 s[8:11], s[0:1], 48
    s_load_dwordx2 s[12:13], s[0:1], 72
    s_load_dwordx2 s[14:15], s[0:1], 88""")
    stamp_init(); stamp(0)
    A(f"""v_lshrrev_b32 v1, 6, v0
    v_lshlrev_b32 v8, 4, v0
    v_readfirstlane_b32 s18, v1
    v_and_b32 v1, 15, v0
    v_lshlrev_b32 v9, 3, v1
    v_lshlrev_b32 v1, 4, v1
    s_mul_i32 s19, s2, {NB}
    s_lshl_b32 s16, s2, 15
    v_add_u32 v10, s16, v8
    s_lshl_b32 s17, s19, 7
    v_lshlrev_b32 v11, 3, v0
    v_add_u32 v11, s17, v11
    v_min_u32 v12, {N*128-8}, v11
    s_lshr_b32 s3, s2, 6
    s_lshl_b32 s3, s3, 10
    s_add_u32 s3, s3, {WS_HDR}
    v_lshlrev_b32 v13, 2, v0
    v_add_u32 v14, s3, v13
    v_min_u32 v13, {781*4}, v13
    v_add_u32 v13, {WS_GF}, v13
    s_mov_b32 s22, {12513*4}
    s_mov_b32 s23, 0x20000
    s_mov_b32 s26, {N*128}
    s_mov_b32 s27, 0x20000
    v_mov_b32 v17, 4
    v_mov_b32 v16, 0
    v_add_u32 v18, 12288, v10
    v_add_u32 v19, 24576, v10
    s_waitcnt lgkmcnt(0)
    s_add_u32 s20, s14, {WS_TAB}
    s_addc_u32 s21, s15, 0
    s_and_b32 s21, s21, 0xffff
    s_or_b32 s21, s21, {64<<16}
    s_mov_b32 s24, s12
    s_mov_b32 s25, s13
    s_cmp_ge_u32 s18, 12
    s_cbranch_scc1 k2_gl
    v_mov_b32 v72, 0
    v_mov_b32 v73, 0
    v_mov_b32 v74, 0
    v_mov_b32 v75, 0
    global_load_dwordx4 v[64:67], v10, s[14:15]
    global_load_dwordx4 v[68:71], v18, s[14:15]
    s_cmp_ge_u32 s18, 8
    s_cbranch_scc1 k2_l3
    global_load_dwordx4 v[72:75], v19, s[14:15]
    s_cmp_ge_u32 s18, 4
    s_cbranch_scc1 k2_l3
    global_load_dword v16, v14, s[14:15]
    s_branch k2_l3""")
    A.label('k2_gl')
    A("""s_sub_u32 s28, s18, 12
    s_lshl_b32 s28, s28, 4
    s_add_u32 s29, s28, s19""")
    gemm_loads('s[4:5]','s[6:7]','s[10:11]','s29',20,64,96,28,29,30)
    A.label('k2_l3')
    A("""global_load_dword v15, v13, s[14:15]
    global_load_dwordx2 v[4:5], v9, s[8:9]
    global_load_dwordx2 v[2:3], v12, s[4:5]""")
    if OPT['prefetch']:
        A(f"""s_lshr_b32 s30, s2, 3
        s_mul_i32 s30, s30, {784*128}
        s_add_u32 s30, s30, {WS_TAB}
        v_min_u32 v18, 783, v0
        v_lshlrev_b32 v18, 7, v18
        v_add_u32 v18, s30, v18
        s_cmp_ge_u32 s18, 13
        s_cbranch_scc1 k2_nopf
        global_load_dword v19, v18, s[14:15]""")
        A.label('k2_nopf')
    stamp(1)
    A(f"""v_mov_b32 v60, 0
    v_mov_b32 v61, 0
    v_mov_b32 v62, 0
    v_mov_b32 v63, 0
    ds_write_b128 v8, v[60:63]
    ds_write_b128 v8, v[60:63] offset:16384
    v_and_b32 v9, 63, v0
    v_and_b32 v10, 3, v9
    v_and_b32 v12, 60, v9
    v_lshl_add_u32 v12, v10, 7, v12
    v_mul_u32_u24 v13, {LS}, v9
    s_cmp_lg_u32 s18, 0
    s_cbranch_scc1 k2_i2
    ds_write_b32 v12, v13 offset:{K2_CNT}""")
    A.label('k2_i2')
    A("""s_waitcnt lgkmcnt(0)
    s_barrier""")
    stamp(2)
    A("""s_cmp_ge_u32 s18, 12
    s_cbranch_scc1 k2_gemm""")
    npf = 4 if OPT['prefetch'] else 3
    A(f's_waitcnt vmcnt({npf+1})')
    stamp(3)
    insert(list(range(64,68)),76,88,40)
    A(f's_waitcnt vmcnt({npf})')
    insert(list(range(68,76)),80,92,48)
    A('s_waitcnt lgkmcnt(0)')
    insert2(list(range(64,76)),88,40)
    A(f"""s_waitcnt vmcnt({npf-1})
    v_or_b32 v15, v15, v16
    v_cmp_ne_u32 vcc, 0, v15
    s_cbranch_vccnz k2_rare""")
    A.label('k2_rare_back')
    A('s_branch k2_bar2')
    A.label('k2_gemm')
    A(f"""s_mov_b32 s36, 0x05040100
    s_mov_b32 s37, 0x07060302
    s_mov_b32 s38, {f2u(-L2E):#x}
    v_mov_b32 v60, {f2u(-62.0):#x}
    v_bfe_u32 v61, v0, 4, 2
    v_lshl_add_u32 v61, v61, 10, v1
    s_lshl_b32 s28, s28, 8
    v_add_u32 v61, s28, v61
    v_add_u32 v62, {K2_U}, v61
    v_add_u32 v63, {K2_RAWA}, v61
    s_waitcnt vmcnt(19)""")
    gemm_mat(20,64,28,44,'s36','s37')
    A('s_waitcnt vmcnt(3)')
    gemm_mat(20,96,28,64,'s36','s37')
    A('v_max3_f32 v18, |v44|, |v45|, |v46|')
    for i in (47,49,51,53,55,57): A(f'v_max3_f32 v18, v18, |v{i}|, |v{i+1}|')
    A('v_max_f32_e64 v18, v18, |v59|')
    for r in range(4):
        for t in range(4): A(f'v_fma_f32 v{80+4*r+t}, v{44+4*t+r}, s38, v60')
    for i in range(16): A(f'v_exp_f32 v{80+i}, v{80+i}')
    for r in range(4):
        A(f"""ds_write2_b32 v63, v{44+r}, v{48+r} offset0:{64*r} offset1:{64*r+1}
        ds_write2_b32 v63, v{52+r}, v{56+r} offset0:{64*r+2} offset1:{64*r+3}
        ds_write2_b32 v62, v{64+r}, v{68+r} offset0:{64*r} offset1:{64*r+1}
        ds_write2_b32 v62, v{72+r}, v{76+r} offset0:{64*r+2} offset1:{64*r+3}
        ds_write_b128 v61, v[{80+4*r}:{83+4*r}] offset:{K2_EA+256*r}""")
    A(f"""s_waitcnt vmcnt(2)
    v_cmp_nge_f32 vcc, {f2u(51.0/L2E):#x}, v18
    v_cmp_ne_u32 s[40:41], 0, v15
    s_or_b64 vcc, vcc, s[40:41]
    s_cbranch_scc0 k2_bar2
    v_mov_b32 v18, 2
    v_mov_b32 v10, {K2_FLAG}
    ds_write_b32 v10, v18""")
    A.label('k2_bar2')
    stamp(4)
    A(f"""s_waitcnt vmcnt(0)
    s_mov_b32 s38, {f2u(-L2E*2.0**113):#x}
    v_and_b32 v7, 0xffff0000, v5
    v_lshlrev_b32 v6, 16, v5
    v_and_b32 v5, 0xffff0000, v4
    v_lshlrev_b32 v4, 16, v4
    v_mul_f32 v4, s38, v4
    v_mul_f32 v5, s38, v5
    v_mul_f32 v6, s38, v6
    v_mul_f32 v7, s38, v7
    v_max3_f32 v18, |v4|, |v5|, |v6|
    v_max_f32_e64 v18, v18, |v7|
    v_cmp_nge_f32 vcc, {f2u(2.0**115):#x}, v18
    s_mov_b64 s[52:53], vcc
    v_mov_b32 v10, {K2_FLAG}
    s_waitcnt lgkmcnt(0)
    s_barrier""")
    stamp(5)
    A('s_setprio 3')
    A(f"""ds_read_b32 v14, v12 offset:{K2_CNT}
    ds_read_b32 v15, v10
    s_mov_b32 s50, -1
    s_mov_b32 s51, 0x1ffff
    s_mov_b32 s48, 0x00010001
    s_mov_b32 s49, 0x00010001
    s_mov_b32 s40, {f2u(2.0**-62):#x}
    s_mov_b32 s41, {f2u(2.0**-62):#x}
    v_mov_b32 v{vIDX+1}, v1
    v_mov_b32 v{vIDX+3}, v1
    v_mov_b32 v{vIDX+5}, v1
    v_mov_b32 v{vIDX+7}, v1
    s_waitcnt lgkmcnt(0)
    v_sub_u32 v14, v14, v13
    v_cmp_lt_u32 vcc, 512, v14
    s_or_b64 s[52:53], s[52:53], vcc
    v_cmp_ne_u32 vcc, 0, v15
    s_or_b64 s[52:53], s[52:53], vcc
    s_cbranch_scc1 k2_slow
    v_add_u32 v14, 12, v14
    v_lshrrev_b32 v14, 4, v14
    v_max_u32 v14, 1, v14
    v_cndmask_b32 v14, 0, v14, s[50:51]
    v_mov_b32 v15, v14
    s_nop 1
    v_add_u32_dpp v15, v15, v15 row_shr:1 row_mask:0xf bank_mask:0xf bound_ctrl:0
    s_nop 1
    v_add_u32_dpp v15, v15, v15 row_shr:2 row_mask:0xf bank_mask:0xf bound_ctrl:0
    s_nop 1
    v_add_u32_dpp v15, v15, v15 row_shr:4 row_mask:0xf bank_mask:0xf bound_ctrl:0
    s_nop 1
    v_add_u32_dpp v15, v15, v15 row_shr:8 row_mask:0xf bank_mask:0xf bound_ctrl:0
    s_nop 1
    v_add_u32_dpp v15, v15, v15 row_bcast:15 row_mask:0xa bank_mask:0xf
    s_nop 1
    v_add_u32_dpp v15, v15, v15 row_bcast:31 row_mask:0xc bank_mask:0xf
    s_nop 0
    v_readlane_b32 s30, v15, 63
    v_sub_u32 v14, v15, v14
    s_nop 0
    s_cmp_gt_u32 s30, 1024
    s_cbranch_scc1 k2_slow
    s_add_u32 s30, s30, 3
    s_lshr_b32 s30, s30, 2
    s_lshr_b32 s31, s30, 4
    s_and_b32 s32, s30, 15
    s_cmp_lt_u32 s18, s32
    s_addc_u32 s33, s31, 0
    s_mul_i32 s34, s18, s31
    s_min_u32 s35, s18, s32
    s_add_u32 s34, s34, s35
    s_lshl_b32 s34, s34, 2
    s_lshl_b32 s35, s33, 2
    v_subrev_u32 v16, s34, v14
    v_cmp_gt_u32 vcc, s35, v16
    s_and_b64 vcc, vcc, s[50:51]
    v_lshlrev_b32 v16, 2, v16
    v_mov_b32 v18, 1
    v_cndmask_b32 v16, 0, v16, vcc
    ds_permute_b32 v19, v16, v18
    v_lshlrev_b32 v16, 4, v14
    v_sub_u32 v16, v13, v16""")
    for g in range(4):
        if g: A(f's_add_u32 s34, s34, s33')
        A(f"""v_cmp_ge_u32 vcc, s34, v15
        s_and_b64 vcc, vcc, s[50:51]
        s_bcnt1_i32_b64 s{54+g}, vcc
        s_lshl_b32 s{58+g}, s34, 4
        v_readlane_b32 s36, v16, s{54+g}
        s_nop 1
        s_add_u32 s{58+g}, s{58+g}, s36""")
    A(f"""v_mov_b32 v{vLB}, s54
    v_mov_b32 v{vA}, s58
    s_mov_b32 exec_lo, 0xffff0000
    v_mov_b32 v{vLB}, s55
    v_mov_b32 v{vA}, s59
    s_mov_b32 exec_lo, 0
    v_mov_b32 v{vLB}, s56
    v_mov_b32 v{vA}, s60
    s_mov_b32 exec_hi, 0xffff0000
    v_mov_b32 v{vLB}, s57
    v_mov_b32 v{vA}, s61
    s_mov_b64 exec, -1
    v_lshl_add_u32 v{vB}, v{vLB}, 8, v1
    v_lshrrev_b32 v{vP}, 4, v0
    v_add_u32 v{vP}, v{vP}, v{vLB}
    v_lshl_add_u32 v{vP}, v{vP}, 9, v1
    v_add_u32 v{vP}, {K2_PART}, v{vP}
    v_mul_u32_u24 v{vLB}, {LS}, v{vLB}
    s_waitcnt lgkmcnt(0)
    v_cmp_ne_u32 s[42:43], 0, v19
    ds_read_b128 v[{vEA}:{vEA+3}], v{vB} offset:{K2_EA}
    v_mov_b32 v{vFIRST}, v14
    v_mov_b32 v{vLAST}, v15
    s_lshr_b64 s[44:45], s[42:43], s33
    s_lshr_b64 s[46:47], s[44:45], s33
    s_lshr_b64 s[36:37], s[46:47], s33
    s_pack_ll_b32_b16 s42, s42, s44
    s_pack_ll_b32_b16 s43, s46, s36
    s_andn2_b64 s[42:43], s[42:43], s[48:49]
    s_mov_b64 s[44:45], s[42:43]
    s_cmp_eq_u32 s33, 0
    s_cbranch_scc1 k2_done""")
    for i in range(vE, vE+12): A(f'v_mov_b32 v{i}, 0')
    stageR(0,0,'p0')
    for i in range(vDEN, vDEN+8): A(f'v_mov_b32 v{i}, 0')
    for i in range(vM, vM+12): A(f'v_mov_b32 v{i}, 0')
    A('s_waitcnt lgkmcnt(0)')
    stageG(0)
    stageR(1,1,'p1')
    A("""s_cmp_lt_u32 s33, 2
    s_cbranch_scc1 k2_p2
    s_waitcnt lgkmcnt(0)""")
    stageG(1)
    A.label('k2_p2')
    stageR(2,2,'p2')
    A(f'v_add_u32 v{vA}, 48, v{vA}')
    stamp(6,14)
    A('s_setprio 1' if OPT['park'] else 's_setprio 0')
    A.label('k2_loop')
    for s_ in range(3):
        A(f"""s_cmp_lt_u32 s33, 3
        s_cbranch_scc1 k2_tail_{s_}
        s_waitcnt lgkmcnt(0)""")
        stageG((s_+2)%3)
        secF()
        A('s_waitcnt vmcnt(8)')
        A.label(f'k2_tback_{s_}')
        A(f"""s_and_b64 s[46:47], s[42:43], s[48:49]
        s_cbranch_scc1 k2_flush_{s_}""")
        A.label(f'k2_fback_{s_}')
        A('s_lshr_b64 s[42:43], s[42:43], 1')
        secM(vD+16*s_, vE+4*s_)
        secRest(vD+16*s_)
        secF()
        secM(vD+16*s_+8, vE+4*s_+2)
        stageR(s_, s_, f'l{s_}')
        if s_==2: A(f'v_add_u32 v{vA}, 48, v{vA}')
        secRest(vD+16*s_+8)
        A('s_sub_u32 s33, s33, 1')
        if s_==2: A('s_branch k2_loop')
    for s_ in range(3):
        A.label(f'k2_tail_{s_}')
        secF()
        A(f"""s_cmp_eq_u32 s33, 0
        s_cbranch_scc1 k2_exit
        s_waitcnt lgkmcnt(0) vmcnt(4)
        s_cmp_eq_u32 s33, 2
        s_cbranch_scc1 k2_tback_{s_}
        s_waitcnt vmcnt(0)
        s_branch k2_tback_{s_}""")
    for s_ in range(3):
        A.label(f'k2_flush_{s_}')
        A(f"""s_mul_i32 exec_lo, s46, 0xffff
        s_mul_i32 exec_hi, s47, 0xffff
        v_add_u32 v{vB}, 256, v{vB}
        ds_write_b128 v{vP}, v[{vNUM}:{vNUM+3}]
        ds_write_b128 v{vP}, v[{vDEN}:{vDEN+3}] offset:256
        ds_read_b128 v[{vEA}:{vEA+3}], v{vB} offset:{K2_EA}
        s_waitcnt lgkmcnt(0)
        v_add_u32 v{vP}, 512, v{vP}""")
        for i in range(vDEN, vDEN+8): A(f'v_mov_b32 v{i}, 0')
        A(f"""s_mov_b64 exec, -1
        s_branch k2_fback_{s_}""")
    lchg(0,'p0'); lchg(1,'p1'); lchg(2,'p2')
    for s_ in range(3): lchg(s_, f'l{s_}')
    A.label('k2_exit')
    A(f"""s_setprio 0
    ds_write_b128 v{vP}, v[{vNUM}:{vNUM+3}]
    ds_write_b128 v{vP}, v[{vDEN}:{vDEN+3}] offset:256""")
    A.label('k2_done')
    stamp(7,15)
    A(f"""s_add_u32 s34, s31, 1
    s_mul_i32 s35, s34, s32
    s_lshl_b32 s35, s35, 2
    s_lshl_b32 s36, s32, 2
    v_cvt_f32_u32 v20, s34
    v_cvt_f32_u32 v21, s31
    v_rcp_f32 v20, v20
    v_rcp_f32 v21, v21
    v_add_u32 v{vLAST}, -1, v{vLAST}""")
    for r in (vFIRST, vLAST):
        A(f"""v_subrev_u32 v22, s35, v{r}
        v_cvt_f32_u32 v23, v{r}
        v_cvt_f32_u32 v22, v22
        v_add_f32 v23, 0.5, v23
        v_add_f32 v22, 0.5, v22
        v_mul_f32 v23, v23, v20
        v_mul_f32 v22, v22, v21
        v_cvt_u32_f32 v23, v23
        v_cvt_u32_f32 v22, v22
        v_cmp_gt_u32 vcc, s35, v{r}
        v_add_u32 v22, s36, v22
        s_nop 0
        v_cndmask_b32 v{r}, v22, v23, vcc""")
    A(f"""v_lshrrev_b32 v24, 4, v0
    v_lshlrev_b32 v25, 2, v24
    ds_bpermute_b32 v26, v25, v{vFIRST}
    ds_bpermute_b32 v27, v25, v{vLAST}
    s_mov_b32 s38, {f2u(1e-6*2.0**62):#x}""")
    A.label('k2_epi')
    A(f"""v_lshl_add_u32 v29, v24, 8, v1
    v_lshlrev_b32 v30, 3, v0
    s_waitcnt lgkmcnt(0)
    v_add_u32 v28, v26, v24
    v_lshl_add_u32 v28, v28, 9, v1
    v_add_u32 v28, {K2_PART}, v28
    v_sub_u32 v27, v27, v26
    v_min_u32 v27, 63, v27
    s_barrier""")
    stamp(8)
    A(f"""v_cmp_gt_u32 vcc, {NB*16}, v0
    s_and_saveexec_b64 s[46:47], vcc
    s_cbranch_execz k2_fin
    s_mov_b64 s[46:47], exec
    ds_read_b128 v[32:35], v28
    ds_read_b128 v[36:39], v28 offset:256
    ds_read_b128 v[40:43], v29 offset:{K2_U}""")
    A.label('k2_el')
    A(f"""v_cmp_lt_u32 vcc, 0, v27
    s_and_b64 exec, exec, vcc
    s_cbranch_execz k2_el_done
    ds_read_b128 v[44:47], v28 offset:512
    ds_read_b128 v[48:51], v28 offset:768
    v_add_u32 v28, 512, v28
    v_add_u32 v27, -1, v27
    s_waitcnt lgkmcnt(0)
    v_pk_add_f32 v[32:33], v[32:33], v[44:45]
    v_pk_add_f32 v[34:35], v[34:35], v[46:47]
    v_pk_add_f32 v[36:37], v[36:37], v[48:49]
    v_pk_add_f32 v[38:39], v[38:39], v[50:51]
    s_branch k2_el""")
    A.label('k2_el_done')
    A("""s_mov_b64 exec, s[46:47]
    s_waitcnt lgkmcnt(0)""")
    for i in range(4): A(f'v_add_f32 v{36+i}, s38, v{36+i}')
    for i in range(4): A(f'v_rcp_f32 v{36+i}, v{36+i}')
    A("""v_lshlrev_b32 v44, 16, v2
    v_and_b32 v45, 0xffff0000, v2
    v_lshlrev_b32 v46, 16, v3
    v_and_b32 v47, 0xffff0000, v3""")
    for i in range(4): A(f'v_fmac_f32 v{40+i}, v{32+i}, v{36+i}')
    for i in range(4): A(f'v_mul_f32 v{32+i}, 0, v{40+i}')
    for i in range(4): A(f'v_max_f32 v{40+i}, v{40+i}, v{32+i}')
    for i in range(4): A(f'v_add_f32 v{40+i}, v{40+i}, v{44+i}')
    A("""v_cvt_pk_bf16_f32 v40, v40, v41
    v_cvt_pk_bf16_f32 v41, v42, v43
    buffer_store_dwordx2 v[40:41], v30, s[24:27], s17 offen""")
    A.label('k2_fin')
    if OPT['stamps']:
        A('s_waitcnt vmcnt(0)'); stamp(9)
    stamp_flush(1,'s[14:15]','s18')
    A.label('k2_end')
    A('s_endpgm')
    A.label('k2_rare')
    A(f"""v_and_b32 v18, 2, v15
    v_cmp_ne_u32 vcc, 0, v18
    s_cbranch_vccz k2_rare2
    v_mov_b32 v18, 2
    v_mov_b32 v10, {K2_FLAG}
    ds_write_b32 v10, v18""")
    A.label('k2_rare2')
    A(f"""v_and_b32 v18, 1, v16
    v_cmp_ne_u32 vcc, 0, v18
    s_cbranch_vccz k2_rare_back
    s_lshl_b32 s30, s2, 12
    s_add_u32 s30, s30, {WS_SEG2}
    v_add_u32 v18, s30, v8
    v_mov_b32 v100, 0
    v_mov_b32 v101, 0
    v_mov_b32 v102, 0
    v_mov_b32 v103, 0
    s_mov_b64 exec, vcc
    global_load_dwordx4 v[100:103], v18, s[14:15]
    s_mov_b64 exec, -1
    s_waitcnt vmcnt(0)""")
    insert(list(range(100,104)),104,108,40)
    A('s_waitcnt lgkmcnt(0)')
    insert2(list(range(100,104)),108,40)
    A('s_branch k2_rare_back')
    A.label('k2_slow')
    A(f"""s_load_dwordx2 s[28:29], s[0:1], 8
    s_load_dwordx4 s[32:35], s[0:1], 16
    s_load_dwordx2 s[36:37], s[0:1], 40
    s_load_dwordx2 s[30:31], s[0:1], 64
    v_lshlrev_b32 v10, 3, v0
    v_lshlrev_b32 v11, 1, v9
    v_mov_b32 v60, 0
    v_mov_b32 v61, 0
    v_mov_b32 v62, 0
    v_mov_b32 v63, 0
    v_add_u32 v16, {K2_PART}, v8
    s_mov_b32 s42, 0x05040100
    s_mov_b32 s43, 0x07060302
    s_waitcnt lgkmcnt(0)
    s_barrier
    global_load_dwordx2 v[20:21], v10, s[36:37]
    global_load_dwordx2 v[22:23], v10, s[30:31]
    global_load_ushort v4, v11, s[8:9]
    ds_write_b128 v16, v[60:63]
    ds_write_b128 v16, v[60:63] offset:16384
    s_waitcnt vmcnt(0)
    v_perm_b32 v24, v22, v20, s42
    v_perm_b32 v25, v22, v20, s43
    v_perm_b32 v26, v23, v21, s42
    v_perm_b32 v27, v23, v21, s43
    ds_write_b128 v8, v[24:27]
    v_lshlrev_b32 v4, 16, v4
    v_lshlrev_b32 v12, 2, v9
    s_waitcnt lgkmcnt(0)
    s_barrier""")
    for k in range(64): A(f'ds_read_b32 v{64+k}, v12 offset:{256*k}')
    A(f"""s_mul_i32 s44, s18, {E//16}
    s_add_u32 s45, s44, {E//16}
    s_mov_b32 s39, {f2u(-L2E):#x}
    s_waitcnt lgkmcnt(0)""")
    A.label('k2_s_scan')
    A(f"""v_add_u32 v14, s44, v9
    v_cmp_gt_u32 s[46:47], s45, v14
    v_min_u32 v14, {E-1}, v14
    v_lshlrev_b32 v15, 2, v14
    v_lshlrev_b32 v14, 1, v14
    global_load_dword v16, v15, s[34:35]
    global_load_dword v18, v15, s[32:33]
    global_load_ushort v19, v14, s[28:29]
    s_waitcnt vmcnt(0)
    v_subrev_u32 v16, s19, v16
    v_cmp_gt_u32 vcc, {NB}, v16
    v_min_u32 v18, {N-1}, v18
    v_lshlrev_b32 v19, 16, v19
    s_and_b64 s[46:47], s[46:47], vcc""")
    A.label('k2_s_edge')
    A(f"""s_cmp_eq_u64 s[46:47], 0
    s_cbranch_scc1 k2_s_next
    s_ff1_i32_b64 s48, s[46:47]
    s_bitset0_b64 s[46:47], s48
    v_readlane_b32 s49, v16, s48
    v_readlane_b32 s50, v18, s48
    v_readlane_b32 s51, v19, s48
    s_nop 1
    s_lshl_b32 s50, s50, 7
    v_add_u32 v20, s50, v11
    global_load_ushort v21, v20, s[4:5]
    s_lshl_b32 s50, s49, 8
    s_add_u32 s50, s50, {K2_RAWA}
    v_add_u32 v22, s50, v12
    ds_read_b32 v23, v22
    s_lshl_b32 s50, s49, 9
    s_add_u32 s50, s50, {K2_PART}
    v_add_u32 v22, s50, v12
    v_mov_b32 v24, 0
    v_mov_b32 v25, 0
    s_waitcnt vmcnt(0) lgkmcnt(0)
    v_lshlrev_b32 v21, 16, v21
    v_fmac_f32 v23, s51, v4""")
    for k in range(64):
        A(f"""v_readlane_b32 s52, v21, {k}
        v_lshlrev_b32 v26, 16, v{64+k}
        v_and_b32 v27, 0xffff0000, v{64+k}
        v_fmac_f32 v24, s52, v26
        v_fmac_f32 v25, s52, v27""")
    A("""v_add_f32 v23, v23, v24
    v_mul_f32 v23, s39, v23
    v_exp_f32 v23, v23
    s_nop 0
    v_add_f32 v23, 1.0, v23
    v_rcp_f32 v23, v23
    s_nop 0
    v_mul_f32 v25, v25, v23
    ds_add_f32 v22, v25
    ds_add_f32 v22, v23 offset:256
    s_branch k2_s_edge""")
    A.label('k2_s_next')
    A(f"""s_add_u32 s44, s44, 64
    s_cmp_lt_u32 s44, s45
    s_cbranch_scc1 k2_s_scan
    v_lshrrev_b32 v24, 4, v0
    v_mov_b32 v26, 0
    v_mov_b32 v27, 0
    s_mov_b32 s38, {f2u(1e-6):#x}
    s_branch k2_epi""")

def kd(name, vgpr, sgpr):
    return f""".amdhsa_kernel {name}
  .amdhsa_next_free_vgpr {vgpr}
  .amdhsa_next_free_sgpr {sgpr}
  .amdhsa_accum_offset {vgpr}
  .amdhsa_group_segment_fixed_size 0
  .amdhsa_kernarg_size 96
  .amdhsa_user_sgpr_count 2
  .amdhsa_user_sgpr_kernarg_segment_ptr 1
  .amdhsa_system_sgpr_workgroup_id_x 1
  .amdhsa_float_denorm_mode_32 3
.end_amdhsa_kernel
"""
hdr = open('standalone__edge_featured_mpnn_gatedgcn__graph.s.ref').read().split('; Override launch')[0]
k1(); k2()
out = hdr + f"""; @launch kernel=k1_kernel grid=(256,1,1) block=(1024,1,1) lds={K1_LDS}
; @launch kernel=k2_kernel grid=(256,1,1) block=(1024,1,1) lds={K2_LDS}
.amdgcn_target "amdgcn-amd-amdhsa--gfx950"
.text
.globl k1_kernel
.globl k2_kernel
""" + A.text() + '.section .rodata,"a"\n.p2align 6\n' + kd('k1_kernel',128,100) + '.p2align 6\n' + kd('k2_kernel',128,100)
open(sys.argv[1],'w').write(out)
```

```python
import sys, struct
N=12500; E=800000; NB=49; CH=3128
WS_SEG=0; WS_TAB=8<<20; WS_FLG=12<<20; WS_SEG2=13<<20; WS_STAMP=16<<20
WS_SIZE=268435456
KN="standalone__edge_featured_mpnn_gatedgcn__graph_kernel"
def f2u(x): return struct.unpack('<I', struct.pack('<f', x))[0]
L2E=1.4426950408889634
KSH=11.0; HS=64.0
class Asm:
    def __init__(s): s.L=[]
    def __call__(s, x):
        for ln in x.strip('\n').split('\n'): s.L.append('    '+ln.strip())
    def label(s, n): s.L.append(n+':')
    def raw(s, x): s.L.append(x)
    def text(s): return '\n'.join(s.L)+'\n'
OPT = dict(stamps=0, fp=4, pfa=1, pfb=0, park=0, gsc='sc1', slp=2, nogather=0, tmo=20000, cpf=1, unr=1)
for a in sys.argv[2:]:
    k,v=a.split('=')
    assert k in OPT, k
    OPT[k] = int(v) if v.lstrip('-').isdigit() else v
A=Asm()
SB=66
def stamp_init():
    if OPT['stamps']:
        for i in range(16): A(f's_mov_b64 s[{SB+2*i}:{SB+2*i+1}], 0')
def stamp(i, cyc=None):
    if OPT['stamps']:
        A(f's_memrealtime s[{SB+2*i}:{SB+2*i+1}]')
        if cyc is not None: A(f's_memtime s[{SB+2*cyc}:{SB+2*cyc+1}]')
def stamp_flush():
    if not OPT['stamps']: return
    A(f'''s_waitcnt lgkmcnt(0)
    s_mov_b64 exec, 1
    s_lshl_b32 s98, s2, 4
    s_add_u32 s98, s98, s3
    s_lshl_b32 s98, s98, 7
    s_add_u32 s98, s98, {WS_STAMP + 256*16*128}
    v_mov_b32 v1, s98''')
    for i in range(16):
        A(f'''v_mov_b32 v2, s{SB+2*i}
        v_mov_b32 v3, s{SB+2*i+1}
        global_store_dwordx2 v1, v[2:3], s[26:27] offset:{8*i}
        s_nop 1''')
def W(n): return 0 if OPT['stamps'] else n

CNT1=0; CNT2=1024; FLAGP=1536; FLAGC=1540; TCNT=1544; ACNT=1548; ZERO=1552
FL=1792
XS=2688; XST=136
T1=11520; T2=T1+32768
EA=T2+256
UU=T2+256+64*512
MID=T2+65536
LISTS=MID+50*512
LS=528
LDS=LISTS+50*LS+64
WROW=160; WMAT=64*WROW
WBV=T1; SLOT=WBV+2*WMAT; WAU=SLOT+36864+12544
VB0=EA+512
FIN=T1; RAWA=T1
assert XS+64*XST<=T1 and WAU+2*WMAT<=MID and LDS<=163840 and MID+256-VB0<=65535-16
assert SLOT%16==0 and LISTS%16==0 and WAU%16==0
sROW='s60'
vWC=4; vEA=8; vDEN=12; vNUM=16; vT=20; vM=28; vSD=32; vSN=36; vR=40; vX=44; vTT=48; vD=64
vA=80; vLB=81; vB=82; vG=84
vZ=112; vOLD=113; vNEW=114; vFA=115; vLANE=116; vCA=117; vLL=118; vFOUR=119; vMAG=126
ACC0=96

def secF():
    if OPT['park']:
        A('s_setprio 0')
        for i in range(4): A(f'v_fmac_f32 v{vDEN+i}, v{vSD+i}, v{vM+i}')
        for i in range(4): A(f'v_fmac_f32 v{vNUM+i}, v{vSN+i}, v{vM+i}')
        A('s_setprio 1')
    else:
        for i in range(2): A(f'v_pk_fma_f32 v[{vDEN+2*i}:{vDEN+2*i+1}], v[{vSD+2*i}:{vSD+2*i+1}], v[{vM+2*i}:{vM+2*i+1}], v[{vDEN+2*i}:{vDEN+2*i+1}]')
        for i in range(2): A(f'v_pk_fma_f32 v[{vNUM+2*i}:{vNUM+2*i+1}], v[{vSN+2*i}:{vSN+2*i+1}], v[{vM+2*i}:{vM+2*i+1}], v[{vNUM+2*i}:{vNUM+2*i+1}]')
def secPE():
    for i in range(4): A(f'v_pk_mul_f32 v[{vT+2*i}:{vT+2*i+1}], v[{vTT+2*i}:{vTT+2*i+1}], v[{vTT+8+2*i}:{vTT+9+2*i}]')
def readT(r0):
    A(f'''v_and_or_b32 v{vX}, v{r0}, s40, v1
    v_and_or_b32 v{vX+1}, v{r0+1}, s40, v1
    v_perm_b32 v{vX+2}, v{r0}, v1, s41
    v_perm_b32 v{vX+3}, v{r0+1}, v1, s41
    ds_read_b128 v[{vTT}:{vTT+3}], v{vX} offset:{T1}
    ds_read_b128 v[{vTT+4}:{vTT+7}], v{vX+1} offset:{T1}
    ds_read_b128 v[{vTT+8}:{vTT+11}], v{vX+2} offset:{T2}
    ds_read_b128 v[{vTT+12}:{vTT+15}], v{vX+3} offset:{T2}''')
def secRest(d0):
    for i in range(4):
        A(f'v_pk_fma_f32 v[{vT+2*i}:{vT+2*i+1}], v[{vT+2*i}:{vT+2*i+1}], v[{d0+2*i}:{d0+2*i+1}], v[{vEA+2*(i%2)}:{vEA+2*(i%2)+1}]')
    for i in range(2):
        A(f'v_pk_mul_f32 v[{vM+2*i}:{vM+2*i+1}], v[{vT+2*i}:{vT+2*i+1}], v[{vT+4+2*i}:{vT+5+2*i}]')
    for i in range(4): A(f'v_fma_mix_f32 v{vSN+i}, v{vT+4+i}, v{d0+i}, 0 op_sel_hi:[0,1,0]')
    for i in range(4): A(f'v_fma_mix_f32 v{vSN+i}, v{vT+i}, v{d0+4+i}, v{vSN+i} op_sel_hi:[0,1,0]')
def secTail():
    for i in range(4): A(f'v_rcp_f32 v{vM+i}, v{vM+i}')
    for i in range(2):
        A(f'v_pk_add_f32 v[{vSD+2*i}:{vSD+2*i+1}], v[{vT+2*i}:{vT+2*i+1}], v[{vT+4+2*i}:{vT+5+2*i}]')
def gpair(h):
    A(f'''v_perm_b32 v{vG}, v{vR+2*h}, v1, s44
    v_perm_b32 v{vG+1}, v{vR+2*h+1}, v1, s44''')
    if OPT['nogather']: return
    for i in range(2):
        A(f'buffer_load_dwordx4 v[{vD+8*h+4*i}:{vD+8*h+4*i+3}], v{vG+i}, s[32:35], 0 offen {OPT["gsc"]}')

def insert(recs, addr, pos, msk):
    for i,r in enumerate(recs):
        A(f'''v_cmp_ne_u32 s[{msk+2*i}:{msk+2*i+1}], 0, v{r}
        v_alignbit_b32 v{addr+i}, v{r}, v{r}, 25
        v_and_b32 v{addr+i}, 0x1bc, v{addr+i}
        s_mov_b64 exec, s[{msk+2*i}:{msk+2*i+1}]
        ds_add_rtn_u32 v{pos+i}, v{addr+i}, v{vFOUR} offset:{CNT2}
        s_mov_b64 exec, -1''')
    for i,r in enumerate(recs): A(f'v_and_b32 v{addr+i}, 0x87ff0000, v{r}')
    for i,r in enumerate(recs): A(f'v_fma_f32 v{addr+i}, v{addr+i}, s64, v{vMAG}')
    for i,r in enumerate(recs): A(f'v_and_b32 v{addr+i}, 0x7ffe, v{addr+i}')
    for i,r in enumerate(recs): A(f'v_lshrrev_b32_sdwa v{addr+i}, s65, v{r} dst_sel:WORD_1 dst_unused:UNUSED_PRESERVE src0_sel:DWORD src1_sel:WORD_0')
def insert2(n, data, pos, msk):
    for i in range(n):
        A(f'''s_mov_b64 exec, s[{msk+2*i}:{msk+2*i+1}]
        ds_write_b32 v{pos+i}, v{data+i}''')
    A('s_mov_b64 exec, -1')

def part_a(D, B, Aa, P):
    for i in range(4):
        A(f'''v_mul_u32_u24 v{B+i}, 21400, v{D+i}
        v_lshrrev_b32 v{B+i}, 20, v{B+i}
        v_lshlrev_b32 v{Aa+i}, 2, v{B+i}
        ds_add_rtn_u32 v{P+i}, v{Aa+i}, v{vFOUR} offset:{CNT1}''')
    for i in range(4):
        A(f'v_mad_i32_i24 v{D+i}, v{B+i}, s44, v{D+i}')
def part_b(D, S, Ee, T, P):
    A(f'''v_lshlrev_b32 v{T}, 16, v{Ee}
    v_lshlrev_b32 v{T+2}, 16, v{Ee+1}
    v_mul_f32 v{T}, s45, v{T}
    v_mul_f32 v{T+1}, s45, v{Ee}
    v_mul_f32 v{T+2}, s45, v{T+2}
    v_mul_f32 v{T+3}, s45, v{Ee+1}''')
    for i in range(4):
        A(f'''v_add_lshl_u32 v{S+i}, v{S+i}, 1, 2
        v_bfi_b32 v{S+i}, 3, v{D+i}, v{S+i}
        v_lshlrev_b32 v{D+i}, 25, v{D+i}
        v_bfi_b32 v{D+i}, s46, v{D+i}, v{T+i}
        v_bfi_b32 v{S+i}, s47, v{D+i}, v{S+i}''')
    A(f'''v_or3_b32 v{T}, v{T}, v{T+1}, v{T+2}
    v_or_b32 v{T}, v{T}, v{T+3}
    v_and_b32 v{T}, s46, v{T}
    v_cmp_ne_u32 vcc, 0, v{T}
    s_or_b64 s[52:53], s[52:53], vcc
    s_waitcnt lgkmcnt(0)''')
    for i in range(4): A(f'ds_write_b32 v{P+i}, v{S+i}')

def gemm_run(ACC1):
    A("""ds_read2_b64 v[84:87], v13 offset0:0 offset1:4
    ds_read2_b64 v[88:91], v13 offset0:8 offset1:12""")
    def rd(m,t):
        for mm in range(4):
            r=20+32*m+8*t+2*mm
            A(f'ds_read_b64_tr_b16 v[{r}:{r+1}], v12 offset:{m*WMAT+mm*16*WROW+t*32}')
    seq=[(m,t) for m in range(2) for t in range(4)]
    rd(*seq[0]); rd(*seq[1]); rd(*seq[2])
    for n,(m,t) in enumerate(seq):
        rem=min(len(seq)-1-n,2)
        A(f's_waitcnt lgkmcnt({0 if OPT["stamps"] and n==0 else 4*rem})')
        acc=(ACC0 if m==0 else ACC1)+4*t; f=20+32*m+8*t
        A(f"""v_mfma_f32_16x16x32_bf16 v[{acc}:{acc+3}], v[84:87], v[{f}:{f+3}], 0
        v_mfma_f32_16x16x32_bf16 v[{acc}:{acc+3}], v[88:91], v[{f+4}:{f+7}], v[{acc}:{acc+3}]""")
        if n+3<len(seq): rd(*seq[n+3])
def stageW(R, addr):
    A(f"""v_perm_b32 v40, v{R+2}, v{R}, s48
    v_perm_b32 v41, v{R+2}, v{R}, s49
    v_perm_b32 v42, v{R+3}, v{R+1}, s48
    v_perm_b32 v43, v{R+3}, v{R+1}, s49
    ds_write2_b32 v{addr}, v40, v41 offset0:0 offset1:8
    ds_write2_b32 v{addr}, v42, v43 offset0:16 offset1:24""")
def flagaddr(dst, src, tmp):
    FP=OPT['fp']; lgfp={1:0,2:1,4:2,8:3,16:4,32:5}[FP]
    A(f"""v_lshrrev_b32 v{tmp}, {lgfp}, v{src}
    v_and_b32 v{dst}, {FP-1}, v{src}
    v_lshlrev_b32 v{dst}, 2, v{dst}
    v_lshl_add_u32 v{dst}, v{tmp}, 7, v{dst}
    v_add_u32 v{dst}, {WS_FLG}, v{dst}""")
def setslow(addr):
    A(f"""v_mov_b32 v16, {addr}
    v_mov_b32 v17, 16
    ds_or_b32 v16, v17""")

def kernel():
    ACC1=20
    A.raw('.p2align 8'); A.raw(f'.type {KN},@function'); A.label(KN)
    A("""s_cmp_ge_u32 s2, 256
    s_cbranch_scc1 L_end
    s_load_dwordx16 s[4:19], s[0:1], 0
    s_load_dwordx8 s[20:27], s[0:1], 64""")
    stamp_init(); stamp(0)
    A(f"""v_lshrrev_b32 v1, 6, v0
    v_and_b32 v{vLANE}, 63, v0
    v_readfirstlane_b32 s3, v1
    v_and_b32 v2, 511, v0
    v_lshlrev_b32 v3, 4, v2
    s_mul_i32 {sROW}, s2, {NB}
    s_cmp_ge_u32 s3, 8
    s_cbranch_scc1 L_e0""")
    if OPT['cpf']:
        A(f"""s_cmp_lg_u32 s3, 0
        s_cbranch_scc1 L_g1
        s_getpc_b64 s[42:43]""")
        A.label('L_pc')
        A(f"""s_sub_u32 s42, s42, L_pc-{KN}
        s_subb_u32 s43, s43, 0
        s_lshr_b32 s40, s2, 3
        s_mul_i32 s40, s40, 384
        v_lshlrev_b32 v10, 7, v{vLANE}
        v_add_u32 v10, s40, v10
        s_mov_b64 exec, 7
        global_load_dword v60, v10, s[42:43]
        s_mov_b64 exec, -1""")
        A.label('L_g1')
    A(f"""v_lshrrev_b32 v12, 3, v2
    v_and_b32 v13, 7, v2
    v_add_u32 v14, {sROW}, v12
    v_min_u32 v14, {N-1}, v14
    v_lshlrev_b32 v14, 7, v14
    v_lshl_add_u32 v14, v13, 4, v14
    s_waitcnt lgkmcnt(0)
    global_load_dwordx4 v[20:23], v3, s[14:15]
    global_load_dwordx4 v[24:27], v3, s[20:21]
    global_load_dwordx4 v[36:39], v14, s[4:5]
    s_branch L_common""")
    A.label('L_e0')
    A(f"""s_mul_i32 s40, s2, {CH*4}
    v_add_u32 v12, s40, v3
    v_add_u32 v13, 8192, v12
    v_lshrrev_b32 v14, 1, v12
    v_lshrrev_b32 v15, 1, v13
    s_mul_i32 s41, s2, {CH//4}
    s_sub_u32 s41, {E//4}, s41
    s_min_u32 s41, s41, {CH//4}
    s_sub_u32 s41, s41, 512
    v_cmp_gt_u32 s[50:51], s41, v2
    s_waitcnt lgkmcnt(0)
    global_load_dwordx4 v[20:23], v12, s[10:11]
    s_mov_b64 exec, s[50:51]
    s_cbranch_execz L_e1
    global_load_dwordx4 v[40:43], v13, s[10:11]""")
    A.label('L_e1')
    A("""s_mov_b64 exec, -1
    global_load_dwordx4 v[24:27], v12, s[8:9]
    global_load_dwordx2 v[28:29], v14, s[6:7]
    s_mov_b64 exec, s[50:51]
    s_cbranch_execz L_e2
    global_load_dwordx4 v[44:47], v13, s[8:9]
    global_load_dwordx2 v[48:49], v15, s[6:7]""")
    A.label('L_e2')
    A('s_mov_b64 exec, -1')
    A.label('L_common')
    stamp(1)
    A(f"""v_and_b32 v1, 15, v0
    s_lshl_b32 s40, s3, 4
    v_add_u32 v16, s40, v1""")
    flagaddr(vFA,16,17)
    A(f"""v_lshlrev_b32 v11, 3, v1
    v_lshlrev_b32 v1, 4, v1
    v_mov_b32 v{vFOUR}, 4
    v_and_b32 v17, 3, v{vLANE}
    v_and_b32 v{vCA}, 60, v{vLANE}
    v_lshl_add_u32 v{vCA}, v17, 7, v{vCA}
    v_mul_u32_u24 v{vLL}, {LS}, v{vLANE}
    v_add_u32 v{vLL}, {LISTS}, v{vLL}
    v_mov_b32 v{vZ}, {ZERO}
    s_mov_b32 s48, 0x05040100
    s_mov_b32 s49, 0x07060302
    s_mov_b32 s30, {WS_SIZE}
    s_mov_b32 s31, 0x20000
    s_mov_b32 s34, {12560*256}
    s_mov_b32 s35, 0x20000
    s_mov_b32 s38, {N*128}
    s_mov_b32 s39, 0x20000
    s_mov_b32 s28, s26
    s_mov_b32 s29, s27
    s_add_u32 s32, s26, {WS_TAB}
    s_addc_u32 s33, s27, 0
    s_mov_b32 s36, s22
    s_mov_b32 s37, s23
    s_cmp_ge_u32 s3, 8
    s_cbranch_scc1 L_b1
    v_mov_b32 v56, 0
    v_mov_b32 v57, 0
    v_mov_b32 v58, 0
    v_mov_b32 v59, 0
    v_add_u32 v16, {MID}, v3""")
    for r in range(5): A(f'ds_write_b128 v3, v[56:59] offset:{SLOT+8192*r}')
    for r in range(7): A(f'ds_write_b128 v16, v[56:59] offset:{8192*r}')
    A(f"""s_cmp_ge_u32 s3, 4
    s_cbranch_scc1 L_i1
    v_mul_u32_u24 v17, 144, v0
    v_add_u32 v17, {SLOT}, v17
    v_lshlrev_b32 v18, 2, v0
    ds_write_b32 v18, v17 offset:{CNT1}
    s_cmp_lg_u32 s3, 0
    s_cbranch_scc1 L_i1
    ds_write_b32 v{vCA}, v{vLL} offset:{CNT2}
    ds_write_b32 v18, v56 offset:{FLAGP}
    v_mov_b32 v57, -1
    v_lshlrev_b32 v18, 3, v0
    ds_write_b64 v18, v[56:57] offset:{FL}""")
    A.label('L_i1')
    A(f"""v_mul_u32_u24 v16, {WROW}, v12
    v_lshl_add_u32 v16, v13, 2, v16
    v_add_u32 v16, {WBV}, v16
    v_add_u32 v18, {WMAT}, v16
    v_mul_u32_u24 v17, {XST}, v12
    v_lshl_add_u32 v17, v13, 4, v17
    v_add_u32 v17, {XS}, v17
    s_and_b32 s54, s3, 3
    v_bfe_u32 v12, v0, 2, 4
    v_and_b32 v13, 3, v0
    v_mul_u32_u24 v12, {WROW}, v12
    v_lshl_add_u32 v12, v13, 3, v12
    v_add_u32 v12, {WBV}, v12
    v_and_b32 v13, 15, v0
    v_bfe_u32 v14, v0, 4, 2
    v_mul_u32_u24 v13, {XST}, v13
    v_lshl_add_u32 v13, v14, 3, v13
    s_mul_i32 s56, s54, {16*XST}
    s_add_u32 s56, s56, {XS}
    v_add_u32 v13, s56, v13
    s_lshl_b32 s56, s54, 2
    v_add_u32 v14, s56, v14
    s_waitcnt vmcnt(2)""")
    stageW(20,16)
    A('s_waitcnt vmcnt(1)')
    stageW(24,18)
    A("""s_waitcnt vmcnt(0)
    ds_write2_b64 v17, v[36:37], v[38:39] offset0:0 offset1:1""")
    A.label('L_b1')
    A("""s_waitcnt lgkmcnt(0)
    s_barrier""")
    stamp(2)
    A(f"""s_cmp_lt_u32 s3, 4
    s_cbranch_scc1 L_tab
    s_cmp_lt_u32 s3, 8
    s_cbranch_scc1 L_au
    global_load_dword v{vOLD}, v{vFA}, s[26:27] sc1
    global_load_dwordx2 v[4:5], v11, s[16:17]
    s_mov_b32 s44, -49
    s_mov_b32 s45, {(127-113)<<23}
    s_mov_b32 s46, 0x78000000
    s_mov_b32 s47, 0xffff0000
    s_mov_b64 s[52:53], 0
    s_cmp_eq_u64 s[50:51], 0
    s_cbranch_scc1 L_one
    s_waitcnt vmcnt(7)""")
    stamp(3)
    part_a(20,30,34,64)
    A("""s_waitcnt vmcnt(6)
    s_mov_b64 exec, s[50:51]""")
    part_a(40,50,54,68)
    A("""s_mov_b64 exec, -1
    s_waitcnt vmcnt(4)""")
    part_b(20,24,28,30,64)
    A("""s_waitcnt vmcnt(2)
    s_mov_b64 exec, s[50:51]""")
    part_b(40,44,48,50,68)
    A("""s_mov_b64 exec, -1
    s_branch L_pdone""")
    A.label('L_one')
    A('s_waitcnt vmcnt(4)')
    stamp(3)
    part_a(20,30,34,64)
    A('s_waitcnt vmcnt(2)')
    part_b(20,24,28,30,64)
    A.label('L_pdone')
    A(f"""s_cmp_lg_u64 s[52:53], 0
    s_cbranch_scc1 L_ebad""")
    A.label('L_ebad_back')
    stamp(4)
    A(f"""s_mov_b32 s57, {SLOT}
    v_lshrrev_b32 v12, 3, v2
    v_and_b32 v13, 7, v2
    v_lshlrev_b32 v13, 4, v13
    v_mul_u32_u24 v14, 144, v12
    v_add3_u32 v14, v14, v13, s57
    v_and_b32 v15, 15, v12
    v_xor_b32 v15, s2, v15
    v_lshl_add_u32 v13, v15, 7, v13
    v_lshl_add_u32 v12, v12, 15, v13
    v_lshlrev_b32 v18, 2, v2
    s_mov_b32 s54, {2<<20}
    s_mov_b32 s55, {4<<20}
    s_mov_b32 s56, {6<<20}
    s_waitcnt lgkmcnt(0)
    s_barrier""")
    stamp(5)
    A(f"""ds_read_b128 v[20:23], v14
    ds_read_b128 v[24:27], v14 offset:9216
    ds_read_b128 v[28:31], v14 offset:18432
    ds_read_b128 v[32:35], v14 offset:27648
    ds_read_b32 v19, v18 offset:{CNT1}
    s_waitcnt lgkmcnt({W(4)})
    buffer_store_dwordx4 v[20:23], v12, s[28:31], 0 offen sc1
    s_waitcnt lgkmcnt({W(3)})
    buffer_store_dwordx4 v[24:27], v12, s[28:31], s54 offen sc1
    s_waitcnt lgkmcnt({W(2)})
    buffer_store_dwordx4 v[28:31], v12, s[28:31], s55 offen sc1
    s_waitcnt lgkmcnt({W(1)})
    buffer_store_dwordx4 v[32:35], v12, s[28:31], s56 offen sc1
    s_cmp_ge_u32 s3, 12
    s_cbranch_scc1 L_drain
    v_mul_u32_u24 v16, 144, v2
    v_add_u32 v16, {SLOT+128}, v16
    s_waitcnt lgkmcnt(0)
    v_cmp_gt_u32 vcc, v19, v16
    s_cbranch_vccnz L_ext""")
    A.label('L_drain')
    A("""s_waitcnt vmcnt(0)
    s_branch L_b3""")
    A.label('L_tab')
    A('s_setprio 2')
    gemm_run(ACC1)
    A(f"""s_mov_b32 s44, {f2u(-L2E):#x}
    s_mov_b32 s45, {f2u(HS):#x}
    s_mov_b32 s46, 0x07060100
    s_lshl_b32 s47, {sROW}, 8
    s_add_u32 s47, s47, {WS_TAB+256}
    v_lshl_add_u32 v14, v14, 10, v1""")
    for i in range(16): A(f'v_mul_f32 v{ACC0+i}, s44, v{ACC0+i}')
    A("""s_cmp_eq_u32 s54, 3
    s_cselect_b32 exec_lo, 0xffff, -1
    s_cselect_b32 exec_hi, 0, -1""")
    for r in range(4):
        for t in range(4): A(f'v_exp_f32 v{64+4*r+t}, v{ACC0+4*t+r}')
        for t in range(4): A(f'v_fma_mixlo_f16 v{36+t}, v{ACC1+4*t+r}, s45, 0')
        for t in range(4): A(f'v_add_u32 v{64+4*r+t}, 0x8000, v{64+4*r+t}')
        for t in range(4): A(f'v_sub_u32_sdwa v{64+4*r+t}, v{64+4*r+t}, v{36+t} clamp dst_sel:DWORD dst_unused:UNUSED_PAD src0_sel:DWORD src1_sel:WORD_0')
        for t in range(4): A(f'v_perm_b32 v{64+4*r+t}, v{64+4*r+t}, v{36+t}, s46')
        A(f'buffer_store_dwordx4 v[{64+4*r}:{67+4*r}], v14, s[28:31], s47 offen offset:{r*256} sc1')
        if r==0: A('s_cbranch_scc1 L_tdone')
    A.label('L_tdone')
    A(f"""s_mov_b64 exec, -1
    s_setprio 0
    s_or_b32 s56, s2, s54
    s_cmp_lg_u32 s56, 0
    s_cbranch_scc1 L_nodummy
    v_lshlrev_b32 v44, 2, v{vLANE}
    v_mov_b32 v45, {(127+81)<<23:#x}
    s_mov_b32 s56, {WS_TAB}
    buffer_store_dword v45, v44, s[28:31], s56 offen sc1""")
    A.label('L_nodummy')
    A('v_mov_b32 v46, s2')
    flagaddr(47,46,48)
    flagaddr(49,0,48)
    A(f"""global_load_dword v50, v47, s[26:27] sc1
    global_load_dword v51, v49, s[26:27] sc1
    global_load_dword v{vOLD}, v{vFA}, s[26:27] sc1
    global_load_dwordx2 v[4:5], v11, s[16:17]
    v_max3_f32 v15, v{ACC0}, v{ACC0+1}, v{ACC0+2}
    v_max3_f32 v16, |v{ACC1}|, |v{ACC1+1}|, |v{ACC1+2}|""")
    for i in (3,5,7,9,11,13,14):
        A(f"""v_max3_f32 v15, v15, v{ACC0+i}, v{ACC0+i+1}
        v_max3_f32 v16, v16, |v{ACC1+i}|, |v{ACC1+i+1}|""")
    A(f"""v_cmp_lt_f32 vcc, {f2u(50.0):#x}, v15
    s_mov_b64 s[42:43], vcc
    v_cmp_lt_f32 vcc, {f2u(1000.0):#x}, v16
    s_or_b64 s[42:43], s[42:43], vcc
    s_cbranch_scc0 L_tok""")
    setslow(FLAGP)
    A.label('L_tok')
    stamp(3)
    A('s_waitcnt vmcnt(0)')
    stamp(4)
    A("""s_waitcnt lgkmcnt(0)
    s_barrier""")
    stamp(5)
    A('s_branch L_b3')
    A.label('L_au')
    A(f"""v_subrev_u32 v15, 4096, v3
    global_load_dwordx4 v[20:23], v15, s[12:13]
    global_load_dwordx4 v[24:27], v3, s[12:13]
    global_load_dwordx4 v[28:31], v15, s[18:19]
    global_load_dwordx4 v[32:35], v3, s[18:19]
    global_load_dword v{vOLD}, v{vFA}, s[26:27] sc1
    global_load_dwordx2 v[4:5], v11, s[16:17]
    v_add_u32 v15, {WAU-WBV-32*WROW}, v16
    v_add_u32 v16, {WAU-WBV}, v16
    v_add_u32 v17, {WMAT}, v15
    v_add_u32 v18, {WMAT}, v16
    v_add_u32 v12, {WAU-WBV}, v12
    v_mov_b32 v19, {ACNT}""")
    stamp(4)
    A("""s_barrier""")
    stamp(5)
    A('s_waitcnt vmcnt(0)')
    stageW(20,15); stageW(24,16); stageW(28,17); stageW(32,18)
    A(f"""s_waitcnt lgkmcnt(0)
    ds_add_u32 v19, v{vFOUR}""")
    A.label('L_mb')
    A(f"""ds_read_b32 v15, v19
    s_waitcnt lgkmcnt(0)
    v_cmp_gt_u32 vcc, 1024, v15
    s_cbranch_vccnz L_mb""")
    gemm_run(ACC1)
    A(f"""s_mov_b32 s44, {f2u(L2E):#x}
    v_mov_b32 v15, {f2u(-KSH):#x}
    v_lshl_add_u32 v120, v14, 10, v1
    v_lshl_add_u32 v14, v14, 11, v1
    v_add_u32 v13, {UU}, v14""")
    for r in range(4):
        for t in range(4): A(f'v_fma_f32 v{64+4*r+t}, v{ACC0+4*t+r}, s44, v15')
    for i in range(16): A(f'v_exp_f32 v{64+i}, v{64+i}')
    for r in range(4):
        for t in range(4): A(f'v_mov_b32 v{40+4*r+t}, v{ACC1+4*t+r}')
    A(f'v_max3_f32 v16, |v{ACC0}|, |v{ACC0+1}|, |v{ACC0+2}|')
    for i in (3,5,7,9,11,13,14): A(f'v_max3_f32 v16, v16, |v{ACC0+i}|, |v{ACC0+i+1}|')
    A(f"""v_cmp_nge_f32 vcc, {f2u(51.0/L2E):#x}, v16
    s_cbranch_vccz L_b3""")
    setslow(FLAGC)
    A.label('L_b3')
    A("""s_waitcnt lgkmcnt(0)
    s_barrier""")
    stamp(10)
    A(f"""s_lshr_b32 s42, s2, 4
    s_cmp_lg_u32 s42, s3
    s_cbranch_scc1 L_nosig
    v_mov_b32 v16, {FLAGP}
    ds_read_b32 v17, v16
    s_and_b32 s42, s2, 15
    s_lshl_b32 exec_lo, 1, s42
    s_mov_b32 exec_hi, 0
    v_and_b32 v16, 0xffffffc0, v{vOLD}
    v_add_u32 v16, 64, v16
    s_waitcnt lgkmcnt(0)
    v_or_b32 v16, v16, v17
    global_store_dword v{vFA}, v16, s[26:27] sc1
    s_mov_b64 exec, -1""")
    A.label('L_nosig')
    A("""s_lshr_b32 s42, s3, 2
    s_cmp_lg_u32 s42, 1
    s_cbranch_scc1 L_prep""")
    for r in range(4):
        A(f"""ds_write_b128 v14, v[{64+4*r}:{67+4*r}] offset:{EA+512*r}
        ds_write_b128 v13, v[{40+4*r}:{43+4*r}] offset:{512*r}""")
    A.label('L_prep')
    A(f"""s_mov_b32 s44, {f2u(-L2E):#x}
    v_and_b32 v7, 0xffff0000, v5
    v_lshlrev_b32 v6, 16, v5
    v_and_b32 v5, 0xffff0000, v4
    v_lshlrev_b32 v4, 16, v4
    v_mul_f32 v4, s44, v4
    v_mul_f32 v5, s44, v5
    v_mul_f32 v6, s44, v6
    v_mul_f32 v7, s44, v7
    v_lshrrev_b32 v8, 4, v0
    v_cvt_f32_u32 v9, v8
    v_mul_f32 v10, {f2u(1/16.0):#x}, v9
    v_add_f32 v11, -4.0, v10
    v_mul_f32 v15, {f2u(1/2048.0):#x}, v9
    v_add_f32 v16, {f2u(64/2048.0):#x}, v15
    v_mov_b32 v17, {f2u(-KSH):#x}
    v_lshlrev_b32 v9, 4, v0
    v_lshl_add_u32 v8, v8, 9, v1
    v_add_u32 v8, {T2}, v8""")
    for i in range(4): A(f'v_fma_f32 v{20+i}, v{4+i}, v10, v17')
    for i in range(4): A(f'v_fma_f32 v{24+i}, v{4+i}, v11, v17')
    for i in range(4): A(f'v_mul_f32 v{28+i}, v{4+i}, v15')
    for i in range(4): A(f'v_mul_f32 v{32+i}, v{4+i}, v16')
    for i in range(16): A(f'v_exp_f32 v{20+i}, v{20+i}')
    A(f"""v_max3_f32 v18, |v4|, |v5|, |v6|
    ds_write_b128 v9, v[20:23] offset:{T1}
    ds_write_b128 v9, v[24:27] offset:{T1+16384}
    ds_write_b128 v8, v[28:31]
    ds_write_b128 v8, v[32:35] offset:32768
    v_max_f32_e64 v18, v18, |v7|
    v_cmp_nge_f32 vcc, 4.0, v18
    s_mov_b64 s[62:63], vcc
    s_lshl_b32 s42, s2, 15
    s_lshl_b32 s43, s3, 11
    s_add_u32 s42, s42, s43
    v_lshlrev_b32 v10, 4, v{vLANE}
    v_add_u32 v10, s42, v10
    v_mov_b32 v{vMAG}, {f2u(1.5*2**23):#x}
    s_mov_b32 s64, {f2u(2.0**125):#x}
    s_mov_b32 s65, 2
    s_mov_b32 s43, 0""")
    for i in list(range(vDEN,vDEN+8))+list(range(vM,vM+12)): A(f'v_mov_b32 v{i}, 0')
    A.label('L_poll')
    A(f"""global_load_dword v{vNEW}, v{vFA}, s[26:27] sc1
    s_add_u32 s43, s43, 1
    s_waitcnt vmcnt(0)
    v_xor_b32 v11, v{vNEW}, v{vOLD}
    v_cmp_gt_u32 vcc, 64, v11
    s_cbranch_vccz L_ready
    s_cmp_gt_u32 s43, {OPT['tmo']}
    s_cbranch_scc1 L_timeout
    s_sleep {OPT['slp']}
    s_branch L_poll""")
    A.label('L_ready')
    A("""global_load_dwordx4 v[64:67], v10, s[26:27] sc1
    global_load_dwordx4 v[68:71], v10, s[26:27] offset:1024 sc1""")
    stamp(11)
    A(f"""v_and_b32 v11, 31, v{vNEW}
    v_cmp_ne_u32 vcc, 0, v11
    s_cbranch_vccnz L_rare""")
    A.label('L_rare_back')
    A('s_waitcnt vmcnt(1)')
    insert(list(range(64,68)),72,80,44)
    A('s_waitcnt vmcnt(0)')
    stamp(12)
    insert(list(range(68,72)),76,84,52)
    A('s_waitcnt lgkmcnt(0)')
    insert2(8,72,80,44)
    A.label('L_b4')
    A(f"""v_mov_b32 v10, {FLAGC}
    s_mov_b32 s50, -1
    s_mov_b32 s51, 0x1ffff
    s_mov_b32 s48, 0x00010001
    s_mov_b32 s49, 0x00010001
    s_mov_b32 s40, 0x7f00
    s_mov_b32 s41, 0x0c0c0400
    s_setprio 3
    s_waitcnt lgkmcnt(0)
    s_barrier""")
    stamp(13)
    A(f'''ds_read_b32 v121, v{vCA} offset:{CNT2}
    ds_read_b32 v122, v10
    s_waitcnt lgkmcnt(0)
    v_sub_u32 v121, v121, v{vLL}
    v_cmp_lt_u32 vcc, 512, v121
    s_or_b64 s[62:63], s[62:63], vcc
    v_cmp_ne_u32 vcc, 0, v122
    v_add_u32 v121, 12, v121
    v_lshrrev_b32 v121, 4, v121
    v_max_u32 v121, 1, v121
    s_or_b64 s[62:63], s[62:63], vcc
    s_cbranch_scc1 L_slow
    v_cndmask_b32 v121, 0, v121, s[50:51]
    s_nop 1
    v_add_u32_dpp v122, v121, v121 row_shr:1 row_mask:0xf bank_mask:0xf bound_ctrl:0
    s_nop 1
    v_add_u32_dpp v122, v122, v122 row_shr:2 row_mask:0xf bank_mask:0xf bound_ctrl:0
    s_nop 1
    v_add_u32_dpp v122, v122, v122 row_shr:4 row_mask:0xf bank_mask:0xf bound_ctrl:0
    s_nop 1
    v_add_u32_dpp v122, v122, v122 row_shr:8 row_mask:0xf bank_mask:0xf bound_ctrl:0
    s_nop 1
    v_add_u32_dpp v122, v122, v122 row_bcast:15 row_mask:0xa bank_mask:0xf
    s_nop 1
    v_add_u32_dpp v122, v122, v122 row_bcast:31 row_mask:0xc bank_mask:0xf
    s_nop 0
    v_readlane_b32 s42, v122, 63
    v_sub_u32 v121, v122, v121
    v_lshlrev_b32 v124, 4, v121
    v_sub_u32 v124, v{vLL}, v124
    s_cmp_gt_u32 s42, 1024
    s_cbranch_scc1 L_slow
    s_add_u32 s42, s42, 3
    s_lshr_b32 s43, s42, 6
    s_bfe_u32 s44, s42, 0x40002
    s_cmp_lt_u32 s3, s44
    s_addc_u32 s45, s43, 0
    s_mul_i32 s46, s3, s43
    s_min_u32 s47, s3, s44
    s_add_u32 s46, s46, s47
    s_lshl_b32 s46, s46, 2
    s_lshl_b32 s47, s45, 2
    v_subrev_u32 v123, s46, v121
    v_cmp_gt_u32 vcc, s47, v123
    v_lshlrev_b32 v123, 2, v123
    s_and_b64 vcc, vcc, s[50:51]
    v_cndmask_b32 v123, 0, v123, vcc
    ds_permute_b32 v125, v123, v{vFOUR}''')
    for g in range(4):
        if g: A('s_add_u32 s46, s46, s45')
        A(f"""v_cmp_ge_u32 vcc, s46, v122
        s_lshl_b32 s{56+g}, s46, 4
        s_and_b64 vcc, vcc, s[50:51]
        s_bcnt1_i32_b64 s{52+g}, vcc
        v_readlane_b32 s47, v124, s{52+g}
        s_add_u32 s{56+g}, s{56+g}, s47""")
    A(f"""v_mov_b32 v{vA}, s56
    v_mov_b32 v{vLB}, s52
    s_mov_b32 exec_lo, 0xffff0000
    v_mov_b32 v{vA}, s57
    v_mov_b32 v{vLB}, s53
    s_mov_b32 exec_lo, 0
    v_mov_b32 v{vA}, s58
    v_mov_b32 v{vLB}, s54
    s_mov_b32 exec_hi, 0xffff0000
    v_mov_b32 v{vA}, s59
    v_mov_b32 v{vLB}, s55
    s_mov_b64 exec, -1
    s_cmp_eq_u32 s45, 0
    s_cbranch_scc1 L_done
    ds_read_b128 v[{vR}:{vR+3}], v{vA}
    v_lshl_add_u32 v{vB}, v{vLB}, 9, v1
    s_mov_b32 s44, 0x0c070600
    ds_read_b128 v[{vEA}:{vEA+3}], v{vB} offset:{EA}
    v_mul_u32_u24 v{vLB}, {LS}, v{vLB}
    v_add_u32 v{vLB}, {LISTS}, v{vLB}
    v_add_u32 v{vB}, {VB0}, v{vB}
    s_waitcnt lgkmcnt({W(1)})""")
    gpair(0); gpair(1)
    readT(vR)
    A(f"""v_cmp_ne_u32 s[42:43], 0, v125
    s_mov_b32 s50, 0x00030003
    s_mov_b32 s51, 0x00030003
    s_lshr_b64 s[52:53], s[42:43], s45
    s_lshr_b64 s[54:55], s[52:53], s45
    s_lshr_b64 s[56:57], s[54:55], s45
    s_pack_ll_b32_b16 s42, s42, s52
    s_pack_ll_b32_b16 s43, s54, s56
    s_andn2_b64 s[42:43], s[42:43], s[48:49]""")
    stamp(6,14)
    A('s_setprio 1' if OPT['park'] else 's_setprio 0')
    def body(tag, last, sub, adv):
        secF()
        A(f"""s_and_b64 s[46:47], s[42:43], s[50:51]
        s_cbranch_scc1 L_evt_{tag}""")
        A.label(f'L_eback_{tag}')
        if not last: A('s_lshr_b64 s[42:43], s[42:43], 1')
        A('s_waitcnt lgkmcnt(0)')
        secPE()
        readT(vR+2)
        if not last: A(f'ds_read_b128 v[{vR}:{vR+3}], v{vA} offset:{16*sub}')
        A('s_waitcnt vmcnt(2)')
        secRest(vD)
        A('s_waitcnt lgkmcnt(0)')
        if not last: gpair(0)
        secTail()
        secF()
        secPE()
        if not last:
            readT(vR)
            if adv: A(f'v_add_u32 v{vA}, {adv}, v{vA}')
        A(f's_waitcnt vmcnt({0 if last else 2})')
        secRest(vD+8)
        if not last: gpair(1)
        secTail()
    U_=OPT['unr']
    A("""s_sub_u32 s45, s45, 2
    s_cbranch_scc1 L_last""")
    A.label('L_loop')
    for u in range(U_):
        body(f'b{u}', False, u+1, 16*U_ if u==U_-1 else 0)
        A('s_sub_u32 s45, s45, 1')
        A('s_cbranch_scc0 L_loop' if u==U_-1 else 's_cbranch_scc1 L_last')
    A.label('L_last')
    body('z', True, 0, 0)
    secF()
    A(f"""s_setprio 0
    v_subrev_u32 v20, {VB0}, v{vB}
    v_lshrrev_b32 v20, 6, v20
    v_lshlrev_b32 v21, 5, v0
    v_add_u32 v21, {FIN}, v21
    s_mov_b64 exec, s[48:49]
    ds_max_u32 v20, v21 offset:{FL}
    ds_min_u32 v20, v21 offset:{FL+4}
    s_mov_b64 exec, -1""")
    A.label('L_done')
    stamp(7,15)
    A.label('L_epi')
    A(f"""v_lshrrev_b32 v24, 4, v0
    v_lshl_add_u32 v25, v24, 9, v1
    v_add_u32 v26, {UU}, v25
    v_lshlrev_b32 v30, 3, v0
    v_lshlrev_b32 v24, 3, v24
    v_add_u32 v31, v24, v30
    s_lshl_b32 s45, {sROW}, 7
    ds_read_b64 v[2:3], v31 offset:{XS}
    ds_read_b128 v[40:43], v26
    ds_read_b128 v[56:59], v25 offset:{EA}
    v_add_u32 v26, {MID}, v25
    s_mov_b32 s44, {f2u(1e-6*HS):#x}
    s_mov_b32 s43, {f2u(HS):#x}
    s_waitcnt lgkmcnt(0)
    s_barrier""")
    stamp(8)
    A(f"""ds_write_b128 v25, v[{vNUM}:{vNUM+3}] offset:{FIN}
    ds_write_b128 v25, v[{vDEN}:{vDEN+3}] offset:{FIN+256}
    ds_read_b64 v[28:29], v24 offset:{FL}
    ds_read_b128 v[32:35], v26
    ds_read_b128 v[36:39], v26 offset:256""")
    for i in range(4): A(f'v_rcp_f32 v{56+i}, v{56+i}')
    A(f"""v_lshlrev_b32 v44, 16, v2
    v_and_b32 v45, 0xffff0000, v2
    v_lshlrev_b32 v46, 16, v3
    v_and_b32 v47, 0xffff0000, v3""")
    for i in range(4): A(f'v_mul_f32 v{56+i}, s44, v{56+i}')
    A(f"""v_cmp_gt_u32 vcc, {NB*16}, v0
    s_and_b64 exec, exec, vcc
    s_mov_b64 s[46:47], exec
    s_waitcnt lgkmcnt(0)
    v_min_u32 v28, {FIN+63*512}, v28
    v_add_u32 v27, v29, v1
    s_barrier
    s_cbranch_execz L_fin""")
    A.label('L_el')
    A(f"""v_cmp_le_u32 vcc, v29, v28
    s_and_b64 exec, exec, vcc
    s_cbranch_execz L_el_done
    ds_read_b128 v[48:51], v27
    ds_read_b128 v[52:55], v27 offset:256
    v_add_u32 v27, 512, v27
    v_add_u32 v29, 512, v29
    s_waitcnt lgkmcnt(0)
    v_pk_add_f32 v[32:33], v[32:33], v[48:49]
    v_pk_add_f32 v[34:35], v[34:35], v[50:51]
    v_pk_add_f32 v[36:37], v[36:37], v[52:53]
    v_pk_add_f32 v[38:39], v[38:39], v[54:55]
    s_branch L_el""")
    A.label('L_el_done')
    A('s_mov_b64 exec, s[46:47]')
    for i in range(4): A(f'v_fma_f32 v{36+i}, v{36+i}, s43, v{56+i}')
    for i in range(4): A(f'v_rcp_f32 v{36+i}, v{36+i}')
    A('s_nop 0')
    for i in range(4): A(f'v_fmac_f32 v{40+i}, v{32+i}, v{36+i}')
    for i in range(4): A(f'v_mul_f32 v{32+i}, 0, v{40+i}')
    for i in range(4): A(f'v_max_f32 v{40+i}, v{40+i}, v{32+i}')
    for i in range(4): A(f'v_add_f32 v{40+i}, v{40+i}, v{44+i}')
    A("""v_cvt_pk_bf16_f32 v40, v40, v41
    v_cvt_pk_bf16_f32 v41, v42, v43
    buffer_store_dwordx2 v[40:41], v30, s[36:39], s45 offen""")
    A.label('L_fin')
    if OPT['stamps']:
        A('s_waitcnt vmcnt(0)'); stamp(9)
    stamp_flush()
    A.label('L_end')
    A('s_endpgm')
    for tag,sub in [(f'b{u}',u+1) for u in range(U_)]+[('z',None)]:
        A.label(f'L_evt_{tag}')
        A(f"""s_and_b64 s[52:53], s[46:47], s[48:49]
        s_cbranch_scc0 L_ev2_{tag}
        s_mul_i32 exec_lo, s52, 0xffff
        s_mul_i32 exec_hi, s53, 0xffff
        ds_write_b128 v{vB}, v[{vNUM}:{vNUM+3}] offset:{MID-VB0}
        ds_write_b128 v{vB}, v[{vDEN}:{vDEN+3}] offset:{MID-VB0+256}
        ds_read_b128 v[{vEA}:{vEA+3}], v{vB}
        ds_read_b128 v[{vNUM}:{vNUM+3}], v{vZ}
        ds_read_b128 v[{vDEN}:{vDEN+3}], v{vZ}
        v_add_u32 v{vB}, 512, v{vB}
        s_mov_b64 exec, -1""")
        A.label(f'L_ev2_{tag}')
        if sub is not None:
            A(f"""s_lshr_b64 s[46:47], s[46:47], 1
            s_and_b64 s[46:47], s[46:47], s[48:49]
            s_cbranch_scc0 L_eback_{tag}
            s_mul_i32 exec_lo, s46, 0xffff
            s_mul_i32 exec_hi, s47, 0xffff
            v_add_u32 v{vLB}, {LS}, v{vLB}
            v_subrev_u32 v{vA}, {16*sub}, v{vLB}
            s_mov_b64 exec, -1""")
        A(f's_branch L_eback_{tag}')
    A.label('L_ext')
    A(f"""ds_read_b128 v[36:39], v16
    v_add_u32 v16, 16, v16
    v_cmp_gt_u32 vcc, v19, v16
    s_cmp_lg_u64 vcc, 0
    s_cselect_b32 s42, 16, 0
    s_and_b32 s43, s3, 3
    s_lshl_b32 s43, 1, s43
    s_or_b32 s42, s42, s43
    v_mov_b32 v17, s42
    v_mov_b32 v16, {FLAGP}
    ds_or_b32 v16, v17
    v_lshlrev_b32 v18, 12, v2
    s_lshl_b32 s43, s2, 4
    s_add_u32 s43, s43, {WS_SEG2}
    s_waitcnt lgkmcnt(0)
    buffer_store_dwordx4 v[36:39], v18, s[28:31], s43 offen sc1
    s_branch L_drain""")
    A.label('L_ebad')
    setslow(FLAGP)
    A('s_branch L_ebad_back')
    A.label('L_timeout')
    A(f"""v_mov_b32 v10, {FLAGC}
    v_mov_b32 v11, 16
    ds_or_b32 v10, v11
    s_branch L_b4""")
    A.label('L_rare')
    A(f"""v_and_b32 v11, 16, v{vNEW}
    v_mov_b32 v9, {FLAGC}
    ds_or_b32 v9, v11
    s_lshr_b32 s42, s2, 6
    v_lshrrev_b32 v11, s42, v{vNEW}
    v_and_b32 v11, 1, v11
    v_cmp_ne_u32 vcc, 0, v11
    s_and_b32 vcc_lo, vcc_lo, 0xffff
    s_mov_b32 vcc_hi, 0
    s_cbranch_scc0 L_rare_back
    s_lshl_b32 s42, s2, 12
    s_lshl_b32 s43, s3, 8
    s_add_u32 s42, s42, s43
    s_add_u32 s42, s42, {WS_SEG2}
    v_add_u32 v11, s42, v1
    v_mov_b32 v88, 0
    v_mov_b32 v89, 0
    v_mov_b32 v90, 0
    v_mov_b32 v91, 0
    s_mov_b64 exec, vcc
    global_load_dwordx4 v[88:91], v11, s[26:27] sc1
    s_mov_b64 exec, -1
    s_waitcnt vmcnt(0)""")
    insert(list(range(88,92)),72,80,44)
    A('s_waitcnt lgkmcnt(0)')
    insert2(4,72,80,44)
    A('s_branch L_rare_back')
    A.label('L_slow')
    A(f"""s_setprio 0
    v_lshlrev_b32 v8, 4, v0
    v_lshlrev_b32 v10, 3, v0
    v_lshlrev_b32 v11, 1, v{vLANE}
    v_lshlrev_b32 v5, 2, v{vLANE}
    v_mov_b32 v9, v{vLANE}
    v_mov_b32 v60, 1.0
    v_mov_b32 v61, 1.0
    v_mov_b32 v62, 1.0
    v_mov_b32 v63, 1.0
    v_add_u32 v7, {LISTS}, v8
    s_mov_b32 s42, 0x05040100
    s_mov_b32 s43, 0x07060302
    global_load_dwordx2 v[20:21], v10, s[14:15]
    global_load_dwordx2 v[22:23], v10, s[20:21]
    global_load_ushort v4, v11, s[16:17]
    v_lshrrev_b32 v28, 4, v0
    v_lshl_add_u32 v28, v28, 9, v1
    ds_write_b128 v28, v[60:63] offset:{EA}
    s_lshr_b32 s44, s3, 2
    s_cmp_lg_u32 s44, 1
    s_cbranch_scc1 L_s_noa
    v_add_u32 v120, {RAWA}, v120""")
    for r in range(4):
        A(f"""ds_write2_b32 v120, v{96+r}, v{100+r} offset0:{64*r} offset1:{64*r+1}
        ds_write2_b32 v120, v{104+r}, v{108+r} offset0:{64*r+2} offset1:{64*r+3}""")
    A.label('L_s_noa')
    A(f"""s_waitcnt vmcnt(0)
    v_perm_b32 v24, v22, v20, s42
    v_perm_b32 v25, v22, v20, s43
    v_perm_b32 v26, v23, v21, s42
    v_perm_b32 v27, v23, v21, s43
    ds_write_b128 v7, v[24:27]
    v_lshlrev_b32 v4, 16, v4
    v_add_u32 v6, {LISTS}, v5
    s_waitcnt lgkmcnt(0)
    s_barrier""")
    for k in range(64): A(f'ds_read_b32 v{64+k}, v6 offset:{256*k}')
    A(f"""s_mul_i32 s44, s3, {E//16}
    s_add_u32 s45, s44, {E//16}
    s_mov_b32 s53, {f2u(-L2E):#x}
    s_mov_b32 s54, {f2u(HS):#x}
    s_waitcnt lgkmcnt(0)""")
    A.label('L_s_scan')
    A(f"""v_add_u32 v30, s44, v9
    v_cmp_gt_u32 s[46:47], s45, v30
    v_min_u32 v30, {E-1}, v30
    v_lshlrev_b32 v31, 2, v30
    v_lshlrev_b32 v30, 1, v30
    global_load_dword v32, v31, s[10:11]
    global_load_dword v33, v31, s[8:9]
    global_load_ushort v34, v30, s[6:7]
    s_waitcnt vmcnt(0)
    v_subrev_u32 v32, {sROW}, v32
    v_cmp_gt_u32 vcc, {NB}, v32
    v_min_u32 v33, {N-1}, v33
    v_lshlrev_b32 v34, 16, v34
    s_and_b64 s[46:47], s[46:47], vcc""")
    A.label('L_s_edge')
    A(f"""s_cmp_eq_u64 s[46:47], 0
    s_cbranch_scc1 L_s_next
    s_ff1_i32_b64 s48, s[46:47]
    s_bitset0_b64 s[46:47], s48
    v_readlane_b32 s49, v32, s48
    v_readlane_b32 s50, v33, s48
    v_readlane_b32 s51, v34, s48
    s_nop 1
    s_lshl_b32 s50, s50, 7
    v_add_u32 v20, s50, v11
    global_load_ushort v21, v20, s[4:5]
    s_lshl_b32 s50, s49, 8
    s_add_u32 s50, s50, {RAWA}
    v_add_u32 v22, s50, v5
    ds_read_b32 v23, v22
    s_lshl_b32 s50, s49, 9
    s_add_u32 s50, s50, {MID}
    v_add_u32 v22, s50, v5
    v_mov_b32 v24, 0
    v_mov_b32 v25, 0
    s_waitcnt vmcnt(0) lgkmcnt(0)
    v_lshlrev_b32 v21, 16, v21
    v_fmac_f32 v23, s51, v4""")
    for k in range(64):
        A(f"""v_readlane_b32 s52, v21, {k}
        v_lshlrev_b32 v26, 16, v{64+k}
        v_and_b32 v27, 0xffff0000, v{64+k}
        v_fmac_f32 v24, s52, v26
        v_fmac_f32 v25, s52, v27""")
    A("""v_add_f32 v23, v23, v24
    v_mul_f32 v23, s53, v23
    v_exp_f32 v23, v23
    v_mul_f32 v25, s54, v25
    v_add_f32 v23, 1.0, v23
    v_rcp_f32 v23, v23
    s_nop 0
    v_mul_f32 v25, v25, v23
    ds_add_f32 v22, v25
    ds_add_f32 v22, v23 offset:256
    s_branch L_s_edge""")
    A.label('L_s_next')
    A(f"""s_add_u32 s44, s44, 64
    s_cmp_lt_u32 s44, s45
    s_cbranch_scc1 L_s_scan
    s_branch L_epi""")

hdr = open('standalone__edge_featured_mpnn_gatedgcn__graph.s.ref').read().split('; Override launch')[0]
kernel()
out = hdr + f"""; @launch grid=(256,1,1) block=(1024,1,1) lds={LDS}
.amdgcn_target "amdgcn-amd-amdhsa--gfx950"
.text
.globl {KN}
""" + A.text() + f""".section .rodata,"a"
.p2align 6
.amdhsa_kernel {KN}
  .amdhsa_next_free_vgpr 128
  .amdhsa_next_free_sgpr 100
  .amdhsa_accum_offset 128
  .amdhsa_group_segment_fixed_size 0
  .amdhsa_kernarg_size 96
  .amdhsa_user_sgpr_count 2
  .amdhsa_user_sgpr_kernarg_segment_ptr 1
  .amdhsa_system_sgpr_workgroup_id_x 1
  .amdhsa_float_denorm_mode_32 3
.end_amdhsa_kernel
"""
open(sys.argv[1],'w').write(out)
```

```python
import sys, struct
N=12500; E=800000; NB=49; CH=3128
WS_SEG=0; WS_TAB=8<<20; WS_FLG=12<<20; WS_SEG2=13<<20; WS_STAMP=16<<20
WS_SIZE=268435456
KN="standalone__edge_featured_mpnn_gatedgcn__graph_kernel"
def f2u(x): return struct.unpack('<I', struct.pack('<f', x))[0]
L2E=1.4426950408889634
KSH=11.0; HS=64.0
class Asm:
    def __init__(s): s.L=[]
    def __call__(s, x):
        for ln in x.strip('\n').split('\n'): s.L.append('    '+ln.strip())
    def label(s, n): s.L.append(n+':')
    def raw(s, x): s.L.append(x)
    def text(s): return '\n'.join(s.L)+'\n'
OPT = dict(stamps=0, fp=4, pfb=0, park=1, gsc='', slp=2, nogather=0, tmo=20000, cpf=1, unr=1, x='')
for a in sys.argv[2:]:
    k,v=a.split('=')
    assert k in OPT, k
    OPT[k] = int(v) if v.lstrip('-').isdigit() else v
A=Asm()
SB=66
def stamp_init():
    if OPT['stamps']:
        for i in range(16): A(f's_mov_b64 s[{SB+2*i}:{SB+2*i+1}], 0')
def stamp(i, cyc=None):
    if OPT['stamps']:
        A(f's_memrealtime s[{SB+2*i}:{SB+2*i+1}]')
        if cyc is not None: A(f's_memtime s[{SB+2*cyc}:{SB+2*cyc+1}]')
def stamp_flush():
    if not OPT['stamps']: return
    A(f'''s_waitcnt lgkmcnt(0)
    s_mov_b64 exec, 1
    s_lshl_b32 s98, s2, 4
    s_add_u32 s98, s98, s3
    s_lshl_b32 s98, s98, 7
    s_add_u32 s98, s98, {WS_STAMP + 256*16*128}
    v_mov_b32 v1, s98''')
    for i in range(16):
        A(f'''v_mov_b32 v2, s{SB+2*i}
        v_mov_b32 v3, s{SB+2*i+1}
        global_store_dwordx2 v1, v[2:3], s[26:27] offset:{8*i}
        s_nop 1''')
def W(n): return 0 if OPT['stamps'] else n

CNT1=0; CNT2=1024; FLAGP=1536; FLAGC=1540; TCNT=1544; SCNT=1548; ZERO=1552; DCNT=1568; FLAGT=1572; NONCE=1576
FL=1792
XS=2688; XST=136
T1=11520; T2=T1+32768
EA=T2+256
UU=T2+256+64*512
MID=T2+65536
LISTS=MID+50*512
LS=528
LDS=LISTS+50*LS+64
WROW=160; WMAT=64*WROW
WBV=T1; WAU=WBV+2*WMAT; SLOT=WAU+2*WMAT
VB0=EA+512
FIN=T1; RAWA=T1
assert XS+64*XST<=T1 and SLOT+36864+12544<=MID and LDS<=163840 and MID+256-VB0<=65535-16
assert SLOT%16==0 and LISTS%16==0 and WAU%16==0
sROW='s60'
vWC=4; vEA=8; vDEN=12; vNUM=16; vT=20; vM=28; vSD=32; vSN=36; vR=40; vX=44; vTT=48; vD=64
vA=80; vLB=81; vB=82; vG=84
vZ=112; vFT=113; vNEW=94; vFA=115; vTAG=92; vLANE=116; vCA=117; vLL=118; vFOUR=119; vMAG=126
ACC0=96

def secF():
    if 'f' in OPT['x']: return
    if OPT['park']:
        A('s_setprio 0')
        for i in range(4): A(f'v_fmac_f32 v{vDEN+i}, v{vSD+i}, v{vM+i}')
        for i in range(4): A(f'v_fmac_f32 v{vNUM+i}, v{vSN+i}, v{vM+i}')
        A('s_setprio 1')
    else:
        for i in range(2): A(f'v_pk_fma_f32 v[{vDEN+2*i}:{vDEN+2*i+1}], v[{vSD+2*i}:{vSD+2*i+1}], v[{vM+2*i}:{vM+2*i+1}], v[{vDEN+2*i}:{vDEN+2*i+1}]')
        for i in range(2): A(f'v_pk_fma_f32 v[{vNUM+2*i}:{vNUM+2*i+1}], v[{vSN+2*i}:{vSN+2*i+1}], v[{vM+2*i}:{vM+2*i+1}], v[{vNUM+2*i}:{vNUM+2*i+1}]')
def secPE():
    if 'p' in OPT['x']: return
    for i in range(4): A(f'v_pk_mul_f32 v[{vT+2*i}:{vT+2*i+1}], v[{vTT+2*i}:{vTT+2*i+1}], v[{vTT+8+2*i}:{vTT+9+2*i}]')
def readT(r0):
    if 't' in OPT['x']: return
    if 'a' in OPT['x']:
        A(f'''v_and_or_b32 v{vX}, v{r0}, s40, v1
        v_and_or_b32 v{vX+1}, v{r0+1}, s40, v1
        v_perm_b32 v{vX+2}, v{r0}, v1, s41
        v_perm_b32 v{vX+3}, v{r0+1}, v1, s41''')
        return
    A(f'''v_and_or_b32 v{vX}, v{r0}, s40, v1
    v_and_or_b32 v{vX+1}, v{r0+1}, s40, v1
    v_perm_b32 v{vX+2}, v{r0}, v1, s41
    v_perm_b32 v{vX+3}, v{r0+1}, v1, s41
    ds_read_b128 v[{vTT}:{vTT+3}], v{vX} offset:{T1}
    ds_read_b128 v[{vTT+4}:{vTT+7}], v{vX+1} offset:{T1}
    ds_read_b128 v[{vTT+8}:{vTT+11}], v{vX+2} offset:{T2}
    ds_read_b128 v[{vTT+12}:{vTT+15}], v{vX+3} offset:{T2}''')
def secRest(d0):
    if 'q' in OPT['x']: return
    for i in range(4):
        A(f'v_pk_fma_f32 v[{vT+2*i}:{vT+2*i+1}], v[{vT+2*i}:{vT+2*i+1}], v[{d0+2*i}:{d0+2*i+1}], v[{vEA+2*(i%2)}:{vEA+2*(i%2)+1}]')
    for i in range(2):
        A(f'v_pk_mul_f32 v[{vM+2*i}:{vM+2*i+1}], v[{vT+2*i}:{vT+2*i+1}], v[{vT+4+2*i}:{vT+5+2*i}]')
    if 'm' in OPT['x']: return
    for i in range(4): A(f'v_fma_mix_f32 v{vSN+i}, v{vT+4+i}, v{d0+i}, 0 op_sel_hi:[0,1,0]')
    for i in range(4): A(f'v_fma_mix_f32 v{vSN+i}, v{vT+i}, v{d0+4+i}, v{vSN+i} op_sel_hi:[0,1,0]')
def secTail():
    if 'r' in OPT['x']: return
    for i in range(4): A(f'v_rcp_f32 v{vM+i}, v{vM+i}')
    for i in range(2):
        A(f'v_pk_add_f32 v[{vSD+2*i}:{vSD+2*i+1}], v[{vT+2*i}:{vT+2*i+1}], v[{vT+4+2*i}:{vT+5+2*i}]')
def gpair(h):
    A(f'''v_perm_b32 v{vG}, v{vR+2*h}, v1, s44
    v_perm_b32 v{vG+1}, v{vR+2*h+1}, v1, s44''')
    if OPT['nogather']: return
    for i in range(2):
        A(f'buffer_load_dwordx4 v[{vD+8*h+4*i}:{vD+8*h+4*i+3}], v{vG+i}, s[32:35], 0 offen {OPT["gsc"]}')

def insert(recs, addr, pos, msk):
    for i,r in enumerate(recs):
        A(f'''v_cmp_ne_u32 s[{msk+2*i}:{msk+2*i+1}], 0, v{r}
        v_alignbit_b32 v{addr+i}, v{r}, v{r}, 25
        v_and_b32 v{addr+i}, 0x1bc, v{addr+i}
        s_mov_b64 exec, s[{msk+2*i}:{msk+2*i+1}]
        ds_add_rtn_u32 v{pos+i}, v{addr+i}, v{vFOUR} offset:{CNT2}
        s_mov_b64 exec, -1''')
    for i,r in enumerate(recs): A(f'v_and_b32 v{addr+i}, 0x87ff0000, v{r}')
    for i,r in enumerate(recs): A(f'v_fma_f32 v{addr+i}, v{addr+i}, s64, v{vMAG}')
    for i,r in enumerate(recs): A(f'v_and_b32 v{addr+i}, 0x7ffe, v{addr+i}')
    for i,r in enumerate(recs): A(f'v_lshrrev_b32_sdwa v{addr+i}, s65, v{r} dst_sel:WORD_1 dst_unused:UNUSED_PRESERVE src0_sel:DWORD src1_sel:WORD_0')
def insert2(n, data, pos, msk):
    for i in range(n):
        A(f'''s_mov_b64 exec, s[{msk+2*i}:{msk+2*i+1}]
        ds_write_b32 v{pos+i}, v{data+i}''')
    A('s_mov_b64 exec, -1')

def part_a(D, B, Aa, P):
    for i in range(4):
        A(f'''v_mul_u32_u24 v{B+i}, 21400, v{D+i}
        v_lshrrev_b32 v{B+i}, 20, v{B+i}
        v_lshlrev_b32 v{Aa+i}, 2, v{B+i}
        ds_add_rtn_u32 v{P+i}, v{Aa+i}, v{vFOUR} offset:{CNT1}''')
    for i in range(4):
        A(f'v_mad_i32_i24 v{D+i}, v{B+i}, s44, v{D+i}')
def part_b(D, S, Ee, T, P):
    A(f'''v_lshlrev_b32 v{T}, 16, v{Ee}
    v_lshlrev_b32 v{T+2}, 16, v{Ee+1}
    v_mul_f32 v{T}, s45, v{T}
    v_mul_f32 v{T+1}, s45, v{Ee}
    v_mul_f32 v{T+2}, s45, v{T+2}
    v_mul_f32 v{T+3}, s45, v{Ee+1}''')
    for i in range(4):
        A(f'''v_add_lshl_u32 v{S+i}, v{S+i}, 1, 2
        v_bfi_b32 v{S+i}, 3, v{D+i}, v{S+i}
        v_lshlrev_b32 v{D+i}, 25, v{D+i}
        v_bfi_b32 v{D+i}, s46, v{D+i}, v{T+i}
        v_bfi_b32 v{S+i}, s47, v{D+i}, v{S+i}''')
    A(f'''v_or3_b32 v{T}, v{T}, v{T+1}, v{T+2}
    v_or_b32 v{T}, v{T}, v{T+3}
    v_and_b32 v{T}, s46, v{T}
    v_cmp_ne_u32 vcc, 0, v{T}
    s_or_b64 s[52:53], s[52:53], vcc
    s_waitcnt lgkmcnt(0)''')
    for i in range(4): A(f'ds_write_b32 v{P+i}, v{S+i}')

def gemm_run(ACC1):
    A("""ds_read2_b64 v[84:87], v13 offset0:0 offset1:4
    ds_read2_b64 v[88:91], v13 offset0:8 offset1:12""")
    def rd(m,t):
        for mm in range(4):
            r=20+32*m+8*t+2*mm
            A(f'ds_read_b64_tr_b16 v[{r}:{r+1}], v12 offset:{m*WMAT+mm*16*WROW+t*32}')
    seq=[(m,t) for m in range(2) for t in range(4)]
    rd(*seq[0]); rd(*seq[1]); rd(*seq[2])
    for n,(m,t) in enumerate(seq):
        rem=min(len(seq)-1-n,2)
        A(f's_waitcnt lgkmcnt({0 if OPT["stamps"] and n==0 else 4*rem})')
        acc=(ACC0 if m==0 else ACC1)+4*t; f=20+32*m+8*t
        A(f"""v_mfma_f32_16x16x32_bf16 v[{acc}:{acc+3}], v[84:87], v[{f}:{f+3}], 0
        v_mfma_f32_16x16x32_bf16 v[{acc}:{acc+3}], v[88:91], v[{f+4}:{f+7}], v[{acc}:{acc+3}]""")
        if n+3<len(seq): rd(*seq[n+3])
def stageW(R, addr):
    A(f"""v_perm_b32 v40, v{R+2}, v{R}, s48
    v_perm_b32 v41, v{R+2}, v{R}, s49
    v_perm_b32 v42, v{R+3}, v{R+1}, s48
    v_perm_b32 v43, v{R+3}, v{R+1}, s49
    ds_write2_b32 v{addr}, v40, v41 offset0:0 offset1:8
    ds_write2_b32 v{addr}, v42, v43 offset0:16 offset1:24""")
def flagaddr(dst, src, tmp):
    FP=OPT['fp']; lgfp={1:0,2:1,4:2,8:3,16:4,32:5}[FP]
    A(f"""v_lshrrev_b32 v{tmp}, {lgfp}, v{src}
    v_and_b32 v{dst}, {FP-1}, v{src}
    v_lshlrev_b32 v{dst}, 3, v{dst}
    v_lshl_add_u32 v{dst}, v{tmp}, 7, v{dst}
    v_add_u32 v{dst}, {WS_FLG}, v{dst}""")
def setslow(addr):
    A(f"""v_mov_b32 v16, {addr}
    v_mov_b32 v17, 16
    ds_or_b32 v16, v17""")

def spin(label, addr, tmp, n, slp=0):
    A.label(label)
    if slp: A(f's_sleep {slp}')
    A(f"""ds_read_b32 v{tmp}, v{addr}
    s_waitcnt lgkmcnt(0)
    v_cmp_gt_u32 vcc, {n}, v{tmp}
    s_cbranch_vccnz {label}""")

def kernel():
    ACC1=20
    NCL=max(8//OPT['fp'],1)
    FTOFF=(256//OPT['fp'])*128
    A.raw('.p2align 8'); A.raw(f'.type {KN},@function'); A.label(KN)
    A(f"""s_cmp_ge_u32 s2, 256
    s_cbranch_scc1 L_end
    s_load_dwordx16 s[4:19], s[0:1], 0
    s_load_dwordx8 s[20:27], s[0:1], 64
    v_lshrrev_b32 v1, 6, v0""")
    stamp_init(); stamp(1)
    A(f"""v_lshlrev_b32 v3, 4, v0
    v_readfirstlane_b32 s3, v1
    v_and_b32 v{vLANE}, 63, v0
    s_mul_i32 s40, s2, {CH*4}
    v_add_u32 v12, s40, v3
    s_cmp_ge_u32 s3, 8
    s_cbranch_scc1 L_noedge
    v_add_u32 v13, 8192, v12
    v_lshrrev_b32 v14, 1, v12
    v_lshrrev_b32 v15, 1, v13
    s_mul_i32 s41, s2, {CH//4}
    s_sub_u32 s41, {E//4-512}, s41
    s_min_u32 s41, s41, {CH//4-512}
    v_cmp_gt_u32 s[50:51], s41, v0
    s_or_b32 s40, s2, s3
    s_cbranch_scc1 L_nn
    s_memrealtime s[42:43]
    v_mov_b32 v18, 0
    s_waitcnt lgkmcnt(0)
    s_lshl_b64 s[42:43], s[42:43], 6
    s_or_b32 s42, s42, 1
    v_mov_b32 v16, s42
    v_mov_b32 v17, s43
    s_mov_b64 exec, 1
    global_store_dwordx2 v18, v[16:17], s[24:25] sc1
    s_mov_b64 exec, -1""")
    A.label('L_nn')
    A(f"""s_waitcnt lgkmcnt(0)
    global_load_dwordx4 v[20:23], v12, s[10:11]
    global_load_dwordx4 v[24:27], v12, s[8:9]
    global_load_dwordx2 v[28:29], v14, s[6:7]
    s_mov_b64 exec, s[50:51]
    s_cbranch_execz L_common
    global_load_dwordx4 v[40:43], v13, s[10:11]
    global_load_dwordx4 v[44:47], v13, s[8:9]
    global_load_dwordx2 v[48:49], v15, s[6:7]
    s_branch L_common""")
    A.label('L_noedge')
    A(f"""s_mul_i32 s40, s2, {NB*128}
    s_sub_u32 s40, s40, 8192
    v_add_u32 v14, s40, v3
    v_min_u32 v14, {N*128-16}, v14
    s_lshr_b32 s40, s2, 3
    s_cmp_lg_u32 s3, 8
    s_cbranch_scc1 L_xl
    s_getpc_b64 s[42:43]""")
    A.label('L_pc')
    A(f"""s_sub_u32 s42, s42, L_pc-{KN}
    s_subb_u32 s43, s43, 0
    s_mul_i32 s41, s40, 384
    v_lshlrev_b32 v10, 7, v{vLANE}
    v_add_u32 v11, s41, v10
    s_lshl_b32 s41, s40, 8
    v_add_u32 v10, s41, v10
    s_mov_b64 exec, 7
    global_load_dword v60, v11, s[42:43]
    s_mov_b64 exec, 3
    s_waitcnt lgkmcnt(0)
    global_load_dword v61, v10, s[14:15]
    global_load_dword v62, v10, s[20:21]
    global_load_dword v63, v10, s[12:13]
    global_load_dword v64, v10, s[18:19]
    s_mov_b64 exec, -1""")
    A.label('L_xl')
    A("""s_waitcnt lgkmcnt(0)
    global_load_dwordx4 v[88:91], v14, s[4:5]""")
    A.label('L_common')
    A('s_mov_b64 exec, -1')
    A(f"""v_mov_b32 v56, 0
    v_mov_b32 v57, 0
    v_mov_b32 v58, 0
    v_mov_b32 v59, 0
    v_add_u32 v15, {SLOT}, v3
    v_add_u32 v16, {MID}, v3""")
    for r in range(2): A(f'ds_write_b128 v15, v[56:59] offset:{16384*r}')
    A(f"""s_cmp_ge_u32 s3, 4
    s_cbranch_scc1 L_i1
    ds_write_b128 v15, v[56:59] offset:32768
    ds_write_b128 v16, v[56:59] offset:49152
    v_mul_u32_u24 v17, 144, v0
    v_add_u32 v17, {SLOT}, v17
    v_lshlrev_b32 v18, 2, v0
    ds_write_b32 v18, v17 offset:{CNT1}
    s_cmp_lg_u32 s3, 0
    s_cbranch_scc1 L_i1
    ds_write_b32 v18, v56 offset:{FLAGP}""")
    A.label('L_i1')
    A(f"""v_mov_b32 v{vFOUR}, 4
    s_mov_b32 s44, -49
    s_mov_b32 s45, {(127-113)<<23}
    s_mov_b32 s46, 0x78000000
    s_mov_b32 s47, 0xffff0000
    s_mov_b64 s[52:53], 0
    s_mul_i32 {sROW}, s2, {NB}
    s_waitcnt lgkmcnt(0)
    s_barrier""")
    stamp(2)
    for r in range(3): A(f'ds_write_b128 v16, v[56:59] offset:{16384*r}')
    A(f"""v_and_b32 v1, 15, v0
    s_lshl_b32 s40, s3, 4
    v_add_u32 v16, s40, v1""")
    flagaddr(vFA,16,17)
    A(f"""v_lshlrev_b32 v11, 3, v1
    v_lshlrev_b32 v1, 4, v1
    v_add_u32 v{vFT}, {FTOFF}, v{vFA}
    v_and_b32 v2, 511, v0
    v_and_b32 v17, 3, v{vLANE}
    v_and_b32 v{vCA}, 60, v{vLANE}
    v_lshl_add_u32 v{vCA}, v17, 7, v{vCA}
    v_mul_u32_u24 v{vLL}, {LS}, v{vLANE}
    v_add_u32 v{vLL}, {LISTS}, v{vLL}
    v_mov_b32 v{vZ}, {ZERO}
    v_mov_b32 v16, s2""")
    flagaddr(127,16,17)
    A(f"""s_mov_b32 s30, {WS_SIZE}
    s_mov_b32 s31, 0x20000
    s_mov_b32 s34, {12560*256}
    s_mov_b32 s35, 0x20000
    s_mov_b32 s38, {N*128}
    s_mov_b32 s39, 0x20000
    s_mov_b32 s28, s26
    s_mov_b32 s29, s27
    s_add_u32 s32, s26, {WS_TAB}
    s_addc_u32 s33, s27, 0
    s_mov_b32 s36, s22
    s_mov_b32 s37, s23
    s_cmp_lt_u32 s3, 8
    s_cbranch_scc1 L_cp
    s_cmp_lg_u32 s3, 9
    s_cbranch_scc1 L_g2
    ds_write_b32 v{vCA}, v{vLL} offset:{CNT2}
    v_mov_b32 v57, -1
    v_lshlrev_b32 v18, 3, v{vLANE}
    ds_write_b64 v18, v[56:57] offset:{FL}""")
    A.label('L_g2')
    A(f"""v_lshlrev_b32 v3, 4, v2
    v_lshrrev_b32 v12, 3, v2
    v_and_b32 v13, 7, v2
    v_mov_b32 v46, 0
    v_mul_u32_u24 v16, {WROW}, v12
    v_lshl_add_u32 v16, v13, 2, v16
    v_add_u32 v16, {WBV}, v16
    v_mul_u32_u24 v17, {XST}, v12
    v_lshl_add_u32 v17, v13, 4, v17
    v_add_u32 v17, {XS}, v17
    global_load_dwordx4 v[72:75], v3, s[14:15]
    global_load_dwordx4 v[76:79], v3, s[20:21]
    global_load_dwordx4 v[80:83], v3, s[12:13]
    global_load_dwordx4 v[84:87], v3, s[18:19]
    global_load_dwordx2 v[4:5], v11, s[16:17]
    v_mov_b32 v50, 1
    s_cmp_lg_u32 s3, 15
    s_cbranch_scc1 L_g4
    global_load_dwordx2 v[50:51], v46, s[24:25] sc1""")
    A.label('L_g4')
    stamp(4)
    A(f"""s_waitcnt lgkmcnt(0)
    s_barrier""")
    stamp(5)
    A(f"""s_mov_b32 s48, 0x05040100
    s_mov_b32 s49, 0x07060302
    s_and_b32 s54, s3, 3
    v_bfe_u32 v12, v0, 2, 4
    v_and_b32 v13, 3, v0
    v_mul_u32_u24 v12, {WROW}, v12
    v_lshl_add_u32 v12, v13, 3, v12
    v_add_u32 v12, {WBV}, v12
    v_and_b32 v13, 15, v0
    v_bfe_u32 v14, v0, 4, 2
    v_mul_u32_u24 v13, {XST}, v13
    v_lshl_add_u32 v13, v14, 3, v13
    s_mul_i32 s56, s54, {16*XST}
    s_add_u32 s56, s56, {XS}
    v_add_u32 v13, s56, v13
    s_lshl_b32 s56, s54, 2
    v_add_u32 v14, s56, v14
    v_mov_b32 v19, {SCNT}
    s_mov_b32 s43, 0
    s_waitcnt vmcnt(5)
    ds_write2_b64 v17, v[88:89], v[90:91] offset0:0 offset1:1""")
    for m in range(4):
        A(f's_waitcnt vmcnt({4-m})')
        stageW(72+4*m,16)
        if m<3: A(f'v_add_u32 v16, {WMAT}, v16')
    stamp(0)
    A.label('L_gop')
    A(f"""s_waitcnt vmcnt(0)
    v_cmp_eq_u32 vcc, 0, v50
    s_cbranch_vccnz L_gowait""")
    A.label('L_goback')
    A(f"""s_mov_b64 exec, 1
    s_cmp_lg_u32 s3, 15
    s_cbranch_scc1 L_g5
    v_and_b32 v50, -2, v50
    ds_write_b64 v46, v[50:51] offset:{NONCE}""")
    A.label('L_g5')
    A(f"""s_waitcnt lgkmcnt(0)
    ds_add_u32 v19, v{vFOUR}""")
    spin('L_sb',19,15,32)
    A('s_mov_b64 exec, -1')
    stamp(3)
    A("""s_cmp_ge_u32 s3, 12
    s_cbranch_scc1 L_au
    s_setprio 2""")
    gemm_run(ACC1)
    A(f"""s_mov_b32 s44, {f2u(-L2E):#x}
    s_mov_b32 s45, {f2u(HS):#x}
    s_mov_b32 s46, 0x07060100
    s_lshl_b32 s47, {sROW}, 8
    s_add_u32 s47, s47, {WS_TAB+256}
    v_lshl_add_u32 v14, v14, 10, v1""")
    for i in range(16): A(f'v_mul_f32 v{ACC0+i}, s44, v{ACC0+i}')
    A("""s_cmp_eq_u32 s54, 3
    s_cselect_b32 exec_lo, 0xffff, -1
    s_cselect_b32 exec_hi, 0, -1""")
    for r in range(4):
        for t in range(4): A(f'v_exp_f32 v{64+4*r+t}, v{ACC0+4*t+r}')
        for t in range(4): A(f'v_fma_mixlo_f16 v{36+t}, v{ACC1+4*t+r}, s45, 0')
        for t in range(4): A(f'v_add_u32 v{64+4*r+t}, 0x8000, v{64+4*r+t}')
        for t in range(4): A(f'v_sub_u32_sdwa v{64+4*r+t}, v{64+4*r+t}, v{36+t} clamp dst_sel:DWORD dst_unused:UNUSED_PAD src0_sel:DWORD src1_sel:WORD_0')
        for t in range(4): A(f'v_perm_b32 v{64+4*r+t}, v{64+4*r+t}, v{36+t}, s46')
        A(f'buffer_store_dwordx4 v[{64+4*r}:{67+4*r}], v14, s[28:31], s47 offen offset:{r*256} sc1')
        if r==0: A('s_cbranch_scc1 L_tdone')
    A.label('L_tdone')
    A(f"""s_mov_b64 exec, -1
    s_setprio 0
    s_or_b32 s56, s2, s54
    s_cmp_lg_u32 s56, 0
    s_cbranch_scc1 L_nodummy
    v_lshlrev_b32 v44, 2, v{vLANE}
    v_mov_b32 v45, {(127+81)<<23:#x}
    s_mov_b32 s56, {WS_TAB}
    buffer_store_dword v45, v44, s[28:31], s56 offen sc1""")
    A.label('L_nodummy')
    A(f"""v_max3_f32 v15, v{ACC0}, v{ACC0+1}, v{ACC0+2}
    v_max3_f32 v16, |v{ACC1}|, |v{ACC1+1}|, |v{ACC1+2}|""")
    for i in (3,5,7,9,11,13,14):
        A(f"""v_max3_f32 v15, v15, v{ACC0+i}, v{ACC0+i+1}
        v_max3_f32 v16, v16, |v{ACC1+i}|, |v{ACC1+i+1}|""")
    A(f"""v_cmp_lt_f32 vcc, {f2u(50.0):#x}, v15
    s_mov_b64 s[42:43], vcc
    v_cmp_lt_f32 vcc, {f2u(1000.0):#x}, v16
    s_or_b64 s[42:43], s[42:43], vcc
    s_cbranch_scc0 L_b3""")
    setslow(FLAGT)
    A('s_branch L_b3')
    A.label('L_au')
    A(f'v_add_u32 v12, {WAU-WBV}, v12')
    gemm_run(ACC1)
    A(f"""s_mov_b32 s44, {f2u(L2E):#x}
    v_mov_b32 v15, {f2u(-KSH):#x}
    v_lshl_add_u32 v120, v14, 10, v1
    v_lshl_add_u32 v14, v14, 11, v1
    v_add_u32 v13, {UU}, v14""")
    for r in range(4):
        for t in range(4): A(f'v_fma_f32 v{64+4*r+t}, v{ACC0+4*t+r}, s44, v15')
    for i in range(16): A(f'v_exp_f32 v{64+i}, v{64+i}')
    for r in range(4):
        for t in range(4): A(f'v_mov_b32 v{40+4*r+t}, v{ACC1+4*t+r}')
    A(f'v_max3_f32 v16, |v{ACC0}|, |v{ACC0+1}|, |v{ACC0+2}|')
    for i in (3,5,7,9,11,13,14): A(f'v_max3_f32 v16, v16, |v{ACC0+i}|, |v{ACC0+i+1}|')
    A(f"""v_cmp_nge_f32 vcc, {f2u(51.0/L2E):#x}, v16
    s_barrier""")
    stamp(10)
    for r in range(4):
        A(f"""ds_write_b128 v14, v[{64+4*r}:{67+4*r}] offset:{EA+512*r}
        ds_write_b128 v13, v[{40+4*r}:{43+4*r}] offset:{512*r}""")
    A('s_cbranch_vccz L_prep')
    setslow(FLAGC)
    A('s_branch L_prep')
    A.label('L_cp')
    A(f"""global_load_dwordx2 v[4:5], v11, s[16:17]
    s_mov_b32 s57, {SLOT}
    v_lshrrev_b32 v12, 3, v2
    v_and_b32 v13, 7, v2
    v_lshlrev_b32 v13, 4, v13
    v_mul_u32_u24 v14, 144, v12
    v_add3_u32 v14, v14, v13, s57
    v_and_b32 v15, 15, v12
    v_xor_b32 v15, s2, v15
    v_lshl_add_u32 v13, v15, 7, v13
    v_lshl_add_u32 v12, v12, 15, v13
    v_lshlrev_b32 v18, 2, v2
    s_mov_b32 s54, {2<<20}
    s_mov_b32 s55, {4<<20}
    s_mov_b32 s56, {6<<20}
    s_cmp_eq_u64 s[50:51], 0
    s_cbranch_scc1 L_one
    s_waitcnt vmcnt(6)""")
    part_a(20,30,34,64)
    A('s_waitcnt vmcnt(4)')
    part_b(20,24,28,30,64)
    A("""s_mov_b64 exec, s[50:51]
    s_waitcnt vmcnt(3)""")
    stamp(3)
    part_a(40,50,54,68)
    A('s_waitcnt vmcnt(1)')
    part_b(40,44,48,50,68)
    A("""s_mov_b64 exec, -1
    s_branch L_pdone""")
    A.label('L_one')
    A('s_waitcnt vmcnt(3)')
    stamp(3)
    part_a(20,30,34,64)
    A('s_waitcnt vmcnt(1)')
    part_b(20,24,28,30,64)
    A.label('L_pdone')
    A(f"""s_cmp_lg_u64 s[52:53], 0
    s_cbranch_scc1 L_ebad""")
    A.label('L_ebad_back')
    stamp(4)
    A(f"""s_waitcnt lgkmcnt(0)
    s_barrier""")
    stamp(5)
    A(f"""ds_read_b128 v[20:23], v14
    ds_read_b128 v[24:27], v14 offset:9216
    ds_read_b128 v[28:31], v14 offset:18432
    ds_read_b128 v[32:35], v14 offset:27648
    ds_read_b32 v19, v18 offset:{CNT1}
    s_waitcnt lgkmcnt({W(4)})
    buffer_store_dwordx4 v[20:23], v12, s[28:31], 0 offen sc1
    s_waitcnt lgkmcnt({W(3)})
    buffer_store_dwordx4 v[24:27], v12, s[28:31], s54 offen sc1
    s_waitcnt lgkmcnt({W(2)})
    buffer_store_dwordx4 v[28:31], v12, s[28:31], s55 offen sc1
    s_waitcnt lgkmcnt({W(1)})
    buffer_store_dwordx4 v[32:35], v12, s[28:31], s56 offen sc1
    s_cmp_ge_u32 s3, 4
    s_cbranch_scc1 L_drain
    v_mul_u32_u24 v16, 144, v2
    v_add_u32 v16, {SLOT+128}, v16
    s_waitcnt lgkmcnt(0)
    v_cmp_gt_u32 vcc, v19, v16
    s_cbranch_vccnz L_ext""")
    A.label('L_drain')
    A(f"""v_mov_b32 v16, {DCNT}
    v_mov_b32 v19, {SCNT}
    s_mov_b64 exec, 1
    s_waitcnt vmcnt(0) lgkmcnt(0)
    ds_add_rtn_u32 v17, v16, v{vFOUR}
    s_waitcnt lgkmcnt(0)
    v_cmp_eq_u32 vcc, 28, v17
    s_cbranch_vccz L_nosig""")
    spin('L_sg',19,15,32)
    A(f"""v_mov_b32 v16, {FLAGP}
    ds_read_b32 v17, v16
    ds_read_b64 v[20:21], v16 offset:{NONCE-FLAGP}
    s_waitcnt lgkmcnt(0)
    v_or_b32 v20, v20, v17
    v_cmp_gt_u32 vcc, 32, v17
    s_cbranch_vccz L_nosig
    global_store_dwordx2 v127, v[20:21], s[26:27] sc1""")
    A.label('L_nosig')
    A('s_mov_b64 exec, -1')
    stamp(9 if False else 0)
    A.label('L_b3')
    A("""s_waitcnt lgkmcnt(0)
    s_barrier""")
    stamp(10)
    A.label('L_prep')
    A(f"""ds_read_b64 v[{vTAG}:{vTAG+1}], v{vZ} offset:{NONCE-ZERO}
    s_mov_b32 s44, {f2u(-L2E):#x}
    v_and_b32 v7, 0xffff0000, v5
    v_lshlrev_b32 v6, 16, v5
    v_and_b32 v5, 0xffff0000, v4
    v_lshlrev_b32 v4, 16, v4
    v_mul_f32 v4, s44, v4
    v_mul_f32 v5, s44, v5
    v_mul_f32 v6, s44, v6
    v_mul_f32 v7, s44, v7
    v_lshrrev_b32 v8, 4, v0
    v_cvt_f32_u32 v9, v8
    v_mul_f32 v10, {f2u(1/16.0):#x}, v9
    v_add_f32 v11, -4.0, v10
    v_mul_f32 v15, {f2u(1/2048.0):#x}, v9
    v_add_f32 v16, {f2u(64/2048.0):#x}, v15
    v_mov_b32 v17, {f2u(-KSH):#x}
    v_lshlrev_b32 v9, 4, v0
    v_lshl_add_u32 v8, v8, 9, v1
    v_add_u32 v8, {T2}, v8""")
    for i in range(4): A(f'v_fma_f32 v{20+i}, v{4+i}, v10, v17')
    for i in range(4): A(f'v_fma_f32 v{24+i}, v{4+i}, v11, v17')
    for i in range(4): A(f'v_mul_f32 v{28+i}, v{4+i}, v15')
    for i in range(4): A(f'v_mul_f32 v{32+i}, v{4+i}, v16')
    for i in range(16): A(f'v_exp_f32 v{20+i}, v{20+i}')
    A(f"""v_max3_f32 v18, |v4|, |v5|, |v6|
    ds_write_b128 v9, v[20:23] offset:{T1}
    ds_write_b128 v9, v[24:27] offset:{T1+16384}
    ds_write_b128 v8, v[28:31]
    ds_write_b128 v8, v[32:35] offset:32768
    v_max_f32_e64 v18, v18, |v7|
    v_cmp_nge_f32 vcc, 4.0, v18
    s_mov_b64 s[62:63], vcc
    s_lshl_b32 s42, s2, 15
    s_lshl_b32 s43, s3, 11
    s_add_u32 s42, s42, s43
    v_lshlrev_b32 v10, 4, v{vLANE}
    v_add_u32 v10, s42, v10
    v_mov_b32 v{vMAG}, {f2u(1.5*2**23):#x}
    s_mov_b32 s64, {f2u(2.0**125):#x}
    s_mov_b32 s65, 2
    s_mov_b32 s43, 0""")
    for i in list(range(vDEN,vDEN+8))+list(range(vM,vM+12)): A(f'v_mov_b32 v{i}, 0')
    A(f"""s_lshr_b32 s42, s3, 2
    s_cmp_lg_u32 s42, 2
    s_cbranch_scc1 L_poll
    v_mov_b32 v8, {TCNT}
    s_mov_b64 exec, 1
    ds_read_b32 v11, v8 offset:{FLAGT-TCNT}
    s_waitcnt vmcnt(0)
    ds_add_rtn_u32 v9, v8, v{vFOUR}
    s_waitcnt lgkmcnt(0)
    v_cmp_eq_u32 vcc, 12, v9
    v_cmp_gt_u32 s[44:45], 32, v11
    v_or_b32 v8, v{vTAG}, v11
    v_mov_b32 v9, v{vTAG+1}
    v_add_u32 v127, {FTOFF}, v127
    s_and_b64 vcc, vcc, s[44:45]
    s_cbranch_scc0 L_nosigt
    global_store_dwordx2 v127, v[8:9], s[26:27] sc1""")
    A.label('L_nosigt')
    A('s_mov_b64 exec, -1')
    A.label('L_poll')
    A(f"""global_load_dwordx2 v[{vNEW}:{vNEW+1}], v{vFA}, s[26:27] sc1
    s_add_u32 s43, s43, 1
    s_waitcnt vmcnt(0) lgkmcnt(0)
    v_xor_b32 v{vNEW}, v{vNEW}, v{vTAG}
    v_xor_b32 v{vNEW+1}, v{vNEW+1}, v{vTAG+1}
    v_cmp_lt_u64 vcc, 63, v[{vNEW}:{vNEW+1}]
    s_cbranch_vccz L_ready
    s_cmp_gt_u32 s43, {OPT['tmo']}
    s_cbranch_scc1 L_timeout
    s_sleep {OPT['slp']}
    s_branch L_poll""")
    A.label('L_ready')
    A("""global_load_dwordx4 v[64:67], v10, s[26:27] sc1
    global_load_dwordx4 v[68:71], v10, s[26:27] offset:1024 sc1""")
    stamp(11)
    A(f"""v_cmp_ne_u32 vcc, 0, v{vNEW}
    s_cbranch_vccnz L_rare""")
    A.label('L_rare_back')
    A('s_waitcnt vmcnt(1)')
    insert(list(range(64,68)),72,80,44)
    A('s_waitcnt vmcnt(0)')
    stamp(12)
    A(f'global_load_dwordx2 v[{vNEW}:{vNEW+1}], v{vFT}, s[26:27] sc1')
    insert(list(range(68,72)),76,84,52)
    A('s_waitcnt lgkmcnt(0)')
    insert2(8,72,80,44)
    A('s_mov_b32 s43, 0')
    A.label('L_tp')
    A(f"""s_waitcnt vmcnt(0)
    v_cmp_ne_u64 vcc, v[{vTAG}:{vTAG+1}], v[{vNEW}:{vNEW+1}]
    s_cbranch_vccnz L_tpw""")
    A.label('L_b4')
    A(f"""v_mov_b32 v10, {FLAGC}
    s_mov_b32 s50, -1
    s_mov_b32 s51, 0x1ffff
    s_mov_b32 s48, 0x00010001
    s_mov_b32 s49, 0x00010001
    s_mov_b32 s40, 0x7f00
    s_mov_b32 s41, 0x0c0c0400
    s_setprio 3
    s_waitcnt lgkmcnt(0)
    s_barrier""")
    stamp(13)
    if OPT['pfb']:
        A(f"""s_lshr_b32 s42, s2, 3
        s_lshl_b32 s42, s42, 4
        s_add_u32 s42, s42, s3
        s_mul_i32 s42, s42, {49*128}
        v_lshlrev_b32 v11, 7, v{vLANE}
        s_mov_b64 exec, {hex((1<<OPT['pfb'])-1)}
        buffer_load_dword v114, v11, s[32:35], s42 offen
        s_mov_b64 exec, -1""")
    A(f'''ds_read_b32 v121, v{vCA} offset:{CNT2}
    ds_read_b32 v122, v10
    s_waitcnt lgkmcnt(0)
    v_sub_u32 v121, v121, v{vLL}
    v_cmp_lt_u32 vcc, 512, v121
    s_or_b64 s[62:63], s[62:63], vcc
    v_cmp_ne_u32 vcc, 0, v122
    v_add_u32 v121, 12, v121
    v_lshrrev_b32 v121, 4, v121
    v_max_u32 v121, 1, v121
    s_or_b64 s[62:63], s[62:63], vcc
    s_cbranch_scc1 L_slow
    v_cndmask_b32 v121, 0, v121, s[50:51]
    s_nop 1
    v_add_u32_dpp v122, v121, v121 row_shr:1 row_mask:0xf bank_mask:0xf bound_ctrl:0
    s_nop 1
    v_add_u32_dpp v122, v122, v122 row_shr:2 row_mask:0xf bank_mask:0xf bound_ctrl:0
    s_nop 1
    v_add_u32_dpp v122, v122, v122 row_shr:4 row_mask:0xf bank_mask:0xf bound_ctrl:0
    s_nop 1
    v_add_u32_dpp v122, v122, v122 row_shr:8 row_mask:0xf bank_mask:0xf bound_ctrl:0
    s_nop 1
    v_add_u32_dpp v122, v122, v122 row_bcast:15 row_mask:0xa bank_mask:0xf
    s_nop 1
    v_add_u32_dpp v122, v122, v122 row_bcast:31 row_mask:0xc bank_mask:0xf
    s_nop 0
    v_readlane_b32 s42, v122, 63
    v_sub_u32 v121, v122, v121
    v_lshlrev_b32 v124, 4, v121
    v_sub_u32 v124, v{vLL}, v124
    s_cmp_gt_u32 s42, 1024
    s_cbranch_scc1 L_slow
    s_add_u32 s42, s42, 3
    s_lshr_b32 s43, s42, 6
    s_bfe_u32 s44, s42, 0x40002
    s_cmp_lt_u32 s3, s44
    s_addc_u32 s45, s43, 0
    s_mul_i32 s46, s3, s43
    s_min_u32 s47, s3, s44
    s_add_u32 s46, s46, s47
    s_lshl_b32 s46, s46, 2
    s_lshl_b32 s47, s45, 2
    v_subrev_u32 v123, s46, v121
    v_cmp_gt_u32 vcc, s47, v123
    v_lshlrev_b32 v123, 2, v123
    s_and_b64 vcc, vcc, s[50:51]
    v_cndmask_b32 v123, 0, v123, vcc
    ds_permute_b32 v125, v123, v{vFOUR}''')
    for g in range(4):
        if g: A('s_add_u32 s46, s46, s45')
        A(f"""v_cmp_ge_u32 vcc, s46, v122
        s_lshl_b32 s{56+g}, s46, 4
        s_and_b64 vcc, vcc, s[50:51]
        s_bcnt1_i32_b64 s{52+g}, vcc
        v_readlane_b32 s47, v124, s{52+g}
        s_add_u32 s{56+g}, s{56+g}, s47""")
    A(f"""v_mov_b32 v{vA}, s56
    v_mov_b32 v{vLB}, s52
    s_mov_b32 exec_lo, 0xffff0000
    v_mov_b32 v{vA}, s57
    v_mov_b32 v{vLB}, s53
    s_mov_b32 exec_lo, 0
    v_mov_b32 v{vA}, s58
    v_mov_b32 v{vLB}, s54
    s_mov_b32 exec_hi, 0xffff0000
    v_mov_b32 v{vA}, s59
    v_mov_b32 v{vLB}, s55
    s_mov_b64 exec, -1
    s_cmp_eq_u32 s45, 0
    s_cbranch_scc1 L_done
    ds_read_b128 v[{vR}:{vR+3}], v{vA}
    v_lshl_add_u32 v{vB}, v{vLB}, 9, v1
    s_mov_b32 s44, 0x0c070600
    ds_read_b128 v[{vEA}:{vEA+3}], v{vB} offset:{EA}
    v_mul_u32_u24 v{vLB}, {LS}, v{vLB}
    v_add_u32 v{vLB}, {LISTS}, v{vLB}
    v_add_u32 v{vB}, {VB0}, v{vB}
    s_waitcnt lgkmcnt({W(1)})""")
    gpair(0); gpair(1)
    readT(vR)
    A(f"""v_cmp_ne_u32 s[42:43], 0, v125
    s_mov_b32 s50, 0x00030003
    s_mov_b32 s51, 0x00030003
    s_lshr_b64 s[52:53], s[42:43], s45
    s_lshr_b64 s[54:55], s[52:53], s45
    s_lshr_b64 s[56:57], s[54:55], s45
    s_pack_ll_b32_b16 s42, s42, s52
    s_pack_ll_b32_b16 s43, s54, s56
    s_andn2_b64 s[42:43], s[42:43], s[48:49]""")
    stamp(6,14)
    A('s_setprio 1' if OPT['park'] else 's_setprio 0')
    def body(tag, last, sub, adv):
        secF()
        A(f"""s_and_b64 s[46:47], s[42:43], s[50:51]
        s_cbranch_scc1 L_evt_{tag}""")
        A.label(f'L_eback_{tag}')
        if not last: A('s_lshr_b64 s[42:43], s[42:43], 1')
        A('s_waitcnt lgkmcnt(0)')
        secPE()
        readT(vR+2)
        if not last: A(f'ds_read_b128 v[{vR}:{vR+3}], v{vA} offset:{16*sub}')
        A('s_waitcnt vmcnt(2)')
        secRest(vD)
        A('s_waitcnt lgkmcnt(0)')
        if not last: gpair(0)
        secTail()
        secF()
        secPE()
        if not last:
            readT(vR)
            if adv: A(f'v_add_u32 v{vA}, {adv}, v{vA}')
        A(f's_waitcnt vmcnt({0 if last else 2})')
        secRest(vD+8)
        if not last: gpair(1)
        secTail()
    U_=OPT['unr']
    A("""s_sub_u32 s45, s45, 2
    s_cbranch_scc1 L_last""")
    A.label('L_loop')
    for u in range(U_):
        body(f'b{u}', False, u+1, 16*U_ if u==U_-1 else 0)
        A('s_sub_u32 s45, s45, 1')
        A('s_cbranch_scc0 L_loop' if u==U_-1 else 's_cbranch_scc1 L_last')
    A.label('L_last')
    body('z', True, 0, 0)
    secF()
    A(f"""s_setprio 0
    v_subrev_u32 v20, {VB0}, v{vB}
    v_lshrrev_b32 v20, 6, v20
    v_lshlrev_b32 v21, 5, v0
    v_add_u32 v21, {FIN}, v21
    s_mov_b64 exec, s[48:49]
    ds_max_u32 v20, v21 offset:{FL}
    ds_min_u32 v20, v21 offset:{FL+4}
    s_mov_b64 exec, -1""")
    A.label('L_done')
    stamp(7,15)
    A.label('L_epi')
    A(f"""v_lshrrev_b32 v24, 4, v0
    v_lshl_add_u32 v25, v24, 9, v1
    v_add_u32 v26, {UU}, v25
    v_lshlrev_b32 v30, 3, v0
    v_lshlrev_b32 v24, 3, v24
    v_add_u32 v31, v24, v30
    s_lshl_b32 s45, {sROW}, 7
    ds_read_b64 v[2:3], v31 offset:{XS}
    ds_read_b128 v[40:43], v26
    ds_read_b128 v[56:59], v25 offset:{EA}
    v_add_u32 v26, {MID}, v25
    s_mov_b32 s44, {f2u(1e-6*HS):#x}
    s_mov_b32 s43, {f2u(HS):#x}
    s_waitcnt lgkmcnt(0)
    s_barrier""")
    stamp(8)
    A(f"""ds_write_b128 v25, v[{vNUM}:{vNUM+3}] offset:{FIN}
    ds_write_b128 v25, v[{vDEN}:{vDEN+3}] offset:{FIN+256}
    ds_read_b64 v[28:29], v24 offset:{FL}
    ds_read_b128 v[32:35], v26
    ds_read_b128 v[36:39], v26 offset:256""")
    for i in range(4): A(f'v_rcp_f32 v{56+i}, v{56+i}')
    A(f"""v_lshlrev_b32 v44, 16, v2
    v_and_b32 v45, 0xffff0000, v2
    v_lshlrev_b32 v46, 16, v3
    v_and_b32 v47, 0xffff0000, v3""")
    for i in range(4): A(f'v_mul_f32 v{56+i}, s44, v{56+i}')
    A(f"""v_cmp_gt_u32 vcc, {NB*16}, v0
    s_and_b64 exec, exec, vcc
    s_mov_b64 s[46:47], exec
    s_waitcnt lgkmcnt(0)
    v_min_u32 v28, {FIN+63*512}, v28
    v_add_u32 v27, v29, v1
    s_barrier
    s_cbranch_execz L_fin""")
    A.label('L_el')
    A(f"""v_cmp_le_u32 vcc, v29, v28
    s_and_b64 exec, exec, vcc
    s_cbranch_execz L_el_done
    ds_read_b128 v[48:51], v27
    ds_read_b128 v[52:55], v27 offset:256
    v_add_u32 v27, 512, v27
    v_add_u32 v29, 512, v29
    s_waitcnt lgkmcnt(0)
    v_pk_add_f32 v[32:33], v[32:33], v[48:49]
    v_pk_add_f32 v[34:35], v[34:35], v[50:51]
    v_pk_add_f32 v[36:37], v[36:37], v[52:53]
    v_pk_add_f32 v[38:39], v[38:39], v[54:55]
    s_branch L_el""")
    A.label('L_el_done')
    A('s_mov_b64 exec, s[46:47]')
    for i in range(4): A(f'v_fma_f32 v{36+i}, v{36+i}, s43, v{56+i}')
    for i in range(4): A(f'v_rcp_f32 v{36+i}, v{36+i}')
    A('s_nop 0')
    for i in range(4): A(f'v_fmac_f32 v{40+i}, v{32+i}, v{36+i}')
    for i in range(4): A(f'v_mul_f32 v{32+i}, 0, v{40+i}')
    for i in range(4): A(f'v_max_f32 v{40+i}, v{40+i}, v{32+i}')
    for i in range(4): A(f'v_add_f32 v{40+i}, v{40+i}, v{44+i}')
    A("""v_cvt_pk_bf16_f32 v40, v40, v41
    v_cvt_pk_bf16_f32 v41, v42, v43
    buffer_store_dwordx2 v[40:41], v30, s[36:39], s45 offen""")
    A.label('L_fin')
    if OPT['stamps']:
        A('s_waitcnt vmcnt(0)'); stamp(9)
    stamp_flush()
    A.label('L_end')
    A('s_endpgm')
    for tag,sub in [(f'b{u}',u+1) for u in range(U_)]+[('z',None)]:
        A.label(f'L_evt_{tag}')
        A(f"""s_and_b64 s[52:53], s[46:47], s[48:49]
        s_cbranch_scc0 L_ev2_{tag}
        s_mul_i32 exec_lo, s52, 0xffff
        s_mul_i32 exec_hi, s53, 0xffff
        ds_write_b128 v{vB}, v[{vNUM}:{vNUM+3}] offset:{MID-VB0}
        ds_write_b128 v{vB}, v[{vDEN}:{vDEN+3}] offset:{MID-VB0+256}
        ds_read_b128 v[{vEA}:{vEA+3}], v{vB}
        ds_read_b128 v[{vNUM}:{vNUM+3}], v{vZ}
        ds_read_b128 v[{vDEN}:{vDEN+3}], v{vZ}
        v_add_u32 v{vB}, 512, v{vB}
        s_mov_b64 exec, -1""")
        A.label(f'L_ev2_{tag}')
        if sub is not None:
            A(f"""s_lshr_b64 s[46:47], s[46:47], 1
            s_and_b64 s[46:47], s[46:47], s[48:49]
            s_cbranch_scc0 L_eback_{tag}
            s_mul_i32 exec_lo, s46, 0xffff
            s_mul_i32 exec_hi, s47, 0xffff
            v_add_u32 v{vLB}, {LS}, v{vLB}
            v_subrev_u32 v{vA}, {16*sub}, v{vLB}
            s_mov_b64 exec, -1""")
        A(f's_branch L_eback_{tag}')
    A.label('L_ext')
    A(f"""ds_read_b128 v[36:39], v16
    v_add_u32 v16, 16, v16
    v_cmp_gt_u32 vcc, v19, v16
    s_cmp_lg_u64 vcc, 0
    s_cselect_b32 s42, 16, 0
    s_and_b32 s43, s3, 3
    s_lshl_b32 s43, 1, s43
    s_or_b32 s42, s42, s43
    v_mov_b32 v17, s42
    v_mov_b32 v16, {FLAGP}
    ds_or_b32 v16, v17
    v_lshlrev_b32 v18, 12, v2
    s_lshl_b32 s43, s2, 4
    s_add_u32 s43, s43, {WS_SEG2}
    s_waitcnt lgkmcnt(0)
    buffer_store_dwordx4 v[36:39], v18, s[28:31], s43 offen sc1
    s_branch L_drain""")
    A.label('L_gowait')
    A(f"""s_sleep 4
    global_load_dwordx2 v[50:51], v46, s[24:25] sc1
    s_add_u32 s43, s43, 1
    s_cmp_lt_u32 s43, {OPT['tmo']}
    s_cbranch_scc1 L_gop
    v_mov_b32 v16, {FLAGP}
    v_mov_b32 v17, 32
    ds_or_b32 v16, v17
    ds_or_b32 v16, v17 offset:{FLAGC-FLAGP}
    ds_or_b32 v16, v17 offset:{FLAGT-FLAGP}
    s_waitcnt vmcnt(0)
    s_branch L_goback""")
    A.label('L_tpw')
    A(f"""v_xor_b32 v{vNEW}, 16, v{vNEW}
    v_cmp_eq_u64 vcc, v[{vTAG}:{vTAG+1}], v[{vNEW}:{vNEW+1}]
    s_cbranch_vccnz L_timeout
    s_add_u32 s43, s43, 1
    s_cmp_gt_u32 s43, {OPT['tmo']}
    s_cbranch_scc1 L_timeout
    s_sleep {OPT['slp']}
    global_load_dwordx2 v[{vNEW}:{vNEW+1}], v{vFT}, s[26:27] sc1
    s_branch L_tp""")
    A.label('L_ebad')
    setslow(FLAGP)
    A('s_branch L_ebad_back')
    A.label('L_timeout')
    A(f"""v_mov_b32 v10, {FLAGC}
    v_mov_b32 v11, 16
    ds_or_b32 v10, v11
    s_branch L_b4""")
    A.label('L_rare')
    A(f"""v_and_b32 v11, 16, v{vNEW}
    v_mov_b32 v9, {FLAGC}
    ds_or_b32 v9, v11
    s_lshr_b32 s42, s2, 6
    v_lshrrev_b32 v11, s42, v{vNEW}
    v_and_b32 v11, 1, v11
    v_cmp_ne_u32 vcc, 0, v11
    s_and_b32 vcc_lo, vcc_lo, 0xffff
    s_mov_b32 vcc_hi, 0
    s_cbranch_scc0 L_rare_back
    s_lshl_b32 s42, s2, 12
    s_lshl_b32 s43, s3, 8
    s_add_u32 s42, s42, s43
    s_add_u32 s42, s42, {WS_SEG2}
    v_add_u32 v11, s42, v1
    v_mov_b32 v88, 0
    v_mov_b32 v89, 0
    v_mov_b32 v90, 0
    v_mov_b32 v91, 0
    s_mov_b64 exec, vcc
    global_load_dwordx4 v[88:91], v11, s[26:27] sc1
    s_mov_b64 exec, -1
    s_waitcnt vmcnt(0)""")
    insert(list(range(88,92)),72,80,44)
    A('s_waitcnt lgkmcnt(0)')
    insert2(4,72,80,44)
    A('s_branch L_rare_back')
    A.label('L_slow')
    A(f"""s_setprio 0
    v_lshlrev_b32 v8, 4, v0
    v_lshlrev_b32 v10, 3, v0
    v_lshlrev_b32 v11, 1, v{vLANE}
    v_lshlrev_b32 v5, 2, v{vLANE}
    v_mov_b32 v9, v{vLANE}
    v_mov_b32 v60, 1.0
    v_mov_b32 v61, 1.0
    v_mov_b32 v62, 1.0
    v_mov_b32 v63, 1.0
    v_add_u32 v7, {LISTS}, v8
    s_mov_b32 s42, 0x05040100
    s_mov_b32 s43, 0x07060302
    global_load_dwordx2 v[20:21], v10, s[14:15]
    global_load_dwordx2 v[22:23], v10, s[20:21]
    global_load_ushort v4, v11, s[16:17]
    v_lshrrev_b32 v28, 4, v0
    v_lshl_add_u32 v28, v28, 9, v1
    ds_write_b128 v28, v[60:63] offset:{EA}
    s_cmp_lt_u32 s3, 12
    s_cbranch_scc1 L_s_noa
    v_add_u32 v120, {RAWA}, v120""")
    for r in range(4):
        A(f"""ds_write2_b32 v120, v{96+r}, v{100+r} offset0:{64*r} offset1:{64*r+1}
        ds_write2_b32 v120, v{104+r}, v{108+r} offset0:{64*r+2} offset1:{64*r+3}""")
    A.label('L_s_noa')
    A(f"""s_waitcnt vmcnt(0)
    v_perm_b32 v24, v22, v20, s42
    v_perm_b32 v25, v22, v20, s43
    v_perm_b32 v26, v23, v21, s42
    v_perm_b32 v27, v23, v21, s43
    ds_write_b128 v7, v[24:27]
    v_lshlrev_b32 v4, 16, v4
    v_add_u32 v6, {LISTS}, v5
    s_waitcnt lgkmcnt(0)
    s_barrier""")
    for k in range(64): A(f'ds_read_b32 v{64+k}, v6 offset:{256*k}')
    A(f"""s_mul_i32 s44, s3, {E//16}
    s_add_u32 s45, s44, {E//16}
    s_mov_b32 s53, {f2u(-L2E):#x}
    s_mov_b32 s54, {f2u(HS):#x}
    s_waitcnt lgkmcnt(0)""")
    A.label('L_s_scan')
    A(f"""v_add_u32 v30, s44, v9
    v_cmp_gt_u32 s[46:47], s45, v30
    v_min_u32 v30, {E-1}, v30
    v_lshlrev_b32 v31, 2, v30
    v_lshlrev_b32 v30, 1, v30
    global_load_dword v32, v31, s[10:11]
    global_load_dword v33, v31, s[8:9]
    global_load_ushort v34, v30, s[6:7]
    s_waitcnt vmcnt(0)
    v_subrev_u32 v32, {sROW}, v32
    v_cmp_gt_u32 vcc, {NB}, v32
    v_min_u32 v33, {N-1}, v33
    v_lshlrev_b32 v34, 16, v34
    s_and_b64 s[46:47], s[46:47], vcc""")
    A.label('L_s_edge')
    A(f"""s_cmp_eq_u64 s[46:47], 0
    s_cbranch_scc1 L_s_next
    s_ff1_i32_b64 s48, s[46:47]
    s_bitset0_b64 s[46:47], s48
    v_readlane_b32 s49, v32, s48
    v_readlane_b32 s50, v33, s48
    v_readlane_b32 s51, v34, s48
    s_nop 1
    s_lshl_b32 s50, s50, 7
    v_add_u32 v20, s50, v11
    global_load_ushort v21, v20, s[4:5]
    s_lshl_b32 s50, s49, 8
    s_add_u32 s50, s50, {RAWA}
    v_add_u32 v22, s50, v5
    ds_read_b32 v23, v22
    s_lshl_b32 s50, s49, 9
    s_add_u32 s50, s50, {MID}
    v_add_u32 v22, s50, v5
    v_mov_b32 v24, 0
    v_mov_b32 v25, 0
    s_waitcnt vmcnt(0) lgkmcnt(0)
    v_lshlrev_b32 v21, 16, v21
    v_fmac_f32 v23, s51, v4""")
    for k in range(64):
        A(f"""v_readlane_b32 s52, v21, {k}
        v_lshlrev_b32 v26, 16, v{64+k}
        v_and_b32 v27, 0xffff0000, v{64+k}
        v_fmac_f32 v24, s52, v26
        v_fmac_f32 v25, s52, v27""")
    A("""v_add_f32 v23, v23, v24
    v_mul_f32 v23, s53, v23
    v_exp_f32 v23, v23
    v_mul_f32 v25, s54, v25
    v_add_f32 v23, 1.0, v23
    v_rcp_f32 v23, v23
    s_nop 0
    v_mul_f32 v25, v25, v23
    ds_add_f32 v22, v25
    ds_add_f32 v22, v23 offset:256
    s_branch L_s_edge""")
    A.label('L_s_next')
    A(f"""s_add_u32 s44, s44, 64
    s_cmp_lt_u32 s44, s45
    s_cbranch_scc1 L_s_scan
    s_branch L_epi""")

hdr = open('standalone__edge_featured_mpnn_gatedgcn__graph.s.ref').read().split('; Override launch')[0]
kernel()
out = hdr + f"""; @launch grid=(256,1,1) block=(1024,1,1) lds={LDS}
.amdgcn_target "amdgcn-amd-amdhsa--gfx950"
.text
.globl {KN}
""" + A.text() + f""".section .rodata,"a"
.p2align 6
.amdhsa_kernel {KN}
  .amdhsa_next_free_vgpr 128
  .amdhsa_next_free_sgpr 100
  .amdhsa_accum_offset 128
  .amdhsa_group_segment_fixed_size 0
  .amdhsa_kernarg_size 96
  .amdhsa_user_sgpr_count 2
  .amdhsa_user_sgpr_kernarg_segment_ptr 1
  .amdhsa_system_sgpr_workgroup_id_x 1
  .amdhsa_float_denorm_mode_32 3
.end_amdhsa_kernel
"""
open(sys.argv[1],'w').write(out)
```

```python
import sys, struct
N=12500; E=800000; NB=49; CH=3128
WS_DAT=0; DST=12544; WS_ENT=4<<20; WS_TAB=8<<20; WS_FLG=12<<20; WS_STAMP=16<<20
WS_SIZE=268435456
KN="standalone__edge_featured_mpnn_gatedgcn__graph_kernel"
def f2u(x): return struct.unpack('<I', struct.pack('<f', x))[0]
L2E=1.4426950408889634
KSH=11.0; HS=64.0
class Asm:
    def __init__(s): s.L=[]
    def __call__(s, x):
        for ln in x.strip('\n').split('\n'): s.L.append('    '+ln.strip())
    def label(s, n): s.L.append(n+':')
    def raw(s, x): s.L.append(x)
    def text(s): return '\n'.join(s.L)+'\n'
OPT = dict(stamps=0, fp=16, pfb=6, dc=9, dt=0, da=4, ftl=1, w4=1, pol='sc1', rp=8, d0=0, pfc=0, r2=5, r1=2, park=1, gsc='', slp=4, nogather=0, tmo=20000, cpf=1, unr=1, x='')
for a in sys.argv[2:]:
    k,v=a.split('=')
    assert k in OPT, k
    OPT[k] = int(v) if v.lstrip('-').isdigit() else v.replace('_',' ')
A=Asm()
SB=66
def stamp_init():
    if OPT['stamps']:
        for i in range(16): A(f's_mov_b64 s[{SB+2*i}:{SB+2*i+1}], 0')
def stamp(i, cyc=None):
    if OPT['stamps']:
        A(f's_memrealtime s[{SB+2*i}:{SB+2*i+1}]')
        if cyc is not None: A(f's_memtime s[{SB+2*cyc}:{SB+2*cyc+1}]')
def stamp_flush():
    if not OPT['stamps']: return
    A(f'''s_waitcnt lgkmcnt(0)
    s_mov_b64 exec, 1
    s_lshl_b32 s98, s2, 4
    s_add_u32 s98, s98, s3
    s_lshl_b32 s98, s98, 7
    s_add_u32 s98, s98, {WS_STAMP + 256*16*128}
    v_mov_b32 v1, s98''')
    for i in range(16):
        A(f'''v_mov_b32 v2, s{SB+2*i}
        v_mov_b32 v3, s{SB+2*i+1}
        global_store_dwordx2 v1, v[2:3], s[26:27] offset:{8*i}
        s_nop 1''')
def W(n): return 0 if OPT['stamps'] else n

CNT1=0; CNT2=1024; FLAGP=1536; FLAGC=1540; TCNT=1544; SCNT=1548; ZERO=1552; DCNT=1568; FLAGT=1572; NONCE=1576; ACNT=1584; ECNT=1588
FL=1792
XS=2304; XST=136
T1=11008; T2=T1+32768
EA=T2+256
UU=T2+256+64*512
MID=T2+65536
LISTS=MID+50*512
LS=528
LDS=163840
WROW=160; WMAT=64*WROW
WBV=MID; WAU=WBV+2*WMAT; BASE=WAU+2*WMAT; SLOT=BASE+1024
VB0=EA+512
FIN=T1; RAWA=T1
assert XS+64*XST<=T1 and SLOT+12544<=LDS and LISTS+50*LS<=LDS and LDS<=163840 and MID+256-VB0<=65535-16
assert SLOT%16==0 and LISTS%16==0 and WAU%16==0
sROW='s60'; sBK='s61'
vWC=4; vEA=8; vDEN=12; vNUM=16; vT=20; vM=28; vSD=32; vSN=36; vR=40; vX=44; vTT=48; vD=64
vA=80; vLB=81; vB=82; vG=84
vZ=112; vFT=113; vNEW=94; vFA=115; vTAG=92; vLANE=116; vCA=117; vLL=118; vFOUR=119; vMAG=126
ACC0=96

PRIO=[1]
def secF():
    if 'f' in OPT['x']: return
    if OPT['park']:
        A('s_setprio 0')
        for i in range(4): A(f'v_fmac_f32 v{vDEN+i}, v{vSD+i}, v{vM+i}')
        for i in range(4): A(f'v_fmac_f32 v{vNUM+i}, v{vSN+i}, v{vM+i}')
        A(f's_setprio {PRIO[0]}')
    else:
        for i in range(2): A(f'v_pk_fma_f32 v[{vDEN+2*i}:{vDEN+2*i+1}], v[{vSD+2*i}:{vSD+2*i+1}], v[{vM+2*i}:{vM+2*i+1}], v[{vDEN+2*i}:{vDEN+2*i+1}]')
        for i in range(2): A(f'v_pk_fma_f32 v[{vNUM+2*i}:{vNUM+2*i+1}], v[{vSN+2*i}:{vSN+2*i+1}], v[{vM+2*i}:{vM+2*i+1}], v[{vNUM+2*i}:{vNUM+2*i+1}]')
def secPE():
    if 'p' in OPT['x']: return
    for i in range(4): A(f'v_pk_mul_f32 v[{vT+2*i}:{vT+2*i+1}], v[{vTT+2*i}:{vTT+2*i+1}], v[{vTT+8+2*i}:{vTT+9+2*i}]')
def readT(r0):
    if 't' in OPT['x']: return
    if 'a' in OPT['x']:
        A(f'''v_and_or_b32 v{vX}, v{r0}, s40, v1
        v_and_or_b32 v{vX+1}, v{r0+1}, s40, v1
        v_perm_b32 v{vX+2}, v{r0}, v1, s41
        v_perm_b32 v{vX+3}, v{r0+1}, v1, s41''')
        return
    A(f'''v_and_or_b32 v{vX}, v{r0}, s40, v1
    v_and_or_b32 v{vX+1}, v{r0+1}, s40, v1
    v_perm_b32 v{vX+2}, v{r0}, v1, s41
    v_perm_b32 v{vX+3}, v{r0+1}, v1, s41
    ds_read_b128 v[{vTT}:{vTT+3}], v{vX} offset:{T1}
    ds_read_b128 v[{vTT+4}:{vTT+7}], v{vX+1} offset:{T1}
    ds_read_b128 v[{vTT+8}:{vTT+11}], v{vX+2} offset:{T2}
    ds_read_b128 v[{vTT+12}:{vTT+15}], v{vX+3} offset:{T2}''')
def secRest(d0):
    if 'q' in OPT['x']: return
    for i in range(4):
        A(f'v_pk_fma_f32 v[{vT+2*i}:{vT+2*i+1}], v[{vT+2*i}:{vT+2*i+1}], v[{d0+2*i}:{d0+2*i+1}], v[{vEA+2*(i%2)}:{vEA+2*(i%2)+1}]')
    for i in range(2):
        A(f'v_pk_mul_f32 v[{vM+2*i}:{vM+2*i+1}], v[{vT+2*i}:{vT+2*i+1}], v[{vT+4+2*i}:{vT+5+2*i}]')
    if 'm' in OPT['x']: return
    for i in range(4): A(f'v_fma_mix_f32 v{vSN+i}, v{vT+4+i}, v{d0+i}, 0 op_sel_hi:[0,1,0]')
    for i in range(4): A(f'v_fma_mix_f32 v{vSN+i}, v{vT+i}, v{d0+4+i}, v{vSN+i} op_sel_hi:[0,1,0]')
def secTail():
    if 'r' in OPT['x']: return
    for i in range(4): A(f'v_rcp_f32 v{vM+i}, v{vM+i}')
    for i in range(2):
        A(f'v_pk_add_f32 v[{vSD+2*i}:{vSD+2*i+1}], v[{vT+2*i}:{vT+2*i+1}], v[{vT+4+2*i}:{vT+5+2*i}]')
def gpair(h):
    A(f'''v_perm_b32 v{vG}, v{vR+2*h}, v1, s44
    v_perm_b32 v{vG+1}, v{vR+2*h+1}, v1, s44''')
    if OPT['nogather']: return
    for i in range(2):
        A(f'buffer_load_dwordx4 v[{vD+8*h+4*i}:{vD+8*h+4*i+3}], v{vG+i}, s[32:35], 0 offen {OPT["gsc"]}')

def insert(recs, addr, pos, msk, r0, vrem, last=None):
    for i,r in enumerate(recs):
        c_,v_ = last if (last and i==len(recs)-1) else (r0+i, vrem)
        A(f'''v_cmp_lt_i32 s[{msk+2*i}:{msk+2*i+1}], {c_}, v{v_}
        v_alignbit_b32 v{addr+i}, v{r}, v{r}, 25
        v_and_b32 v{addr+i}, 0x1bc, v{addr+i}
        s_mov_b64 exec, s[{msk+2*i}:{msk+2*i+1}]
        ds_add_rtn_u32 v{pos+i}, v{addr+i}, v{vFOUR} offset:{CNT2}
        s_mov_b64 exec, -1''')
    for i,r in enumerate(recs): A(f'v_and_b32 v{addr+i}, 0x87ff0000, v{r}')
    for i,r in enumerate(recs): A(f'v_fma_f32 v{addr+i}, v{addr+i}, s64, v{vMAG}')
    for i,r in enumerate(recs): A(f'v_and_b32 v{addr+i}, 0x7ffe, v{addr+i}')
    for i,r in enumerate(recs): A(f'v_lshrrev_b32_sdwa v{addr+i}, s65, v{r} dst_sel:WORD_1 dst_unused:UNUSED_PRESERVE src0_sel:DWORD src1_sel:WORD_0')
def insert2(n, data, pos, msk):
    for i in range(n):
        A(f'''s_mov_b64 exec, s[{msk+2*i}:{msk+2*i+1}]
        ds_write_b32 v{pos+i}, v{data+i}''')
    A('s_mov_b64 exec, -1')

def part_a(D, B, Aa, P):
    for i in range(4):
        A(f'''v_mul_u32_u24 v{B+i}, 21400, v{D+i}
        v_lshrrev_b32 v{B+i}, 20, v{B+i}
        v_lshlrev_b32 v{Aa+i}, 2, v{B+i}
        ds_add_rtn_u32 v{P+i}, v{Aa+i}, v{vFOUR} offset:{CNT1}''')
    for i in range(4):
        A(f'v_mad_i32_i24 v{D+i}, v{B+i}, s44, v{D+i}')
    for i in range(4):
        A(f'v_add_u32 v{Aa+i}, {BASE}, v{Aa+i}')
def part_b(D, S, Ee, T, P, Q):
    A(f'''v_lshlrev_b32 v{T}, 16, v{Ee}
    v_lshlrev_b32 v{T+2}, 16, v{Ee+1}
    v_mul_f32 v{T}, s45, v{T}
    v_mul_f32 v{T+1}, s45, v{Ee}
    v_mul_f32 v{T+2}, s45, v{T+2}
    v_mul_f32 v{T+3}, s45, v{Ee+1}''')
    for i in range(4):
        A(f'''v_add_lshl_u32 v{S+i}, v{S+i}, 1, 2
        v_bfi_b32 v{S+i}, 3, v{D+i}, v{S+i}
        v_lshlrev_b32 v{D+i}, 25, v{D+i}
        v_bfi_b32 v{D+i}, s46, v{D+i}, v{T+i}
        v_bfi_b32 v{S+i}, s47, v{D+i}, v{S+i}''')
    A(f'''v_or3_b32 v{T}, v{T}, v{T+1}, v{T+2}
    v_or_b32 v{T}, v{T}, v{T+3}
    v_and_b32 v{T}, s46, v{T}
    v_cmp_ne_u32 vcc, 0, v{T}
    s_or_b64 s[52:53], s[52:53], vcc
    s_waitcnt lgkmcnt(0)''')
    for i in range(4): A(f'v_add_u32 v{P+i}, v{P+i}, v{Q+i}')
    for i in range(4): A(f'ds_write_b32 v{P+i}, v{S+i}')

def gemm_run(ACC1):
    A("""ds_read2_b64 v[84:87], v13 offset0:0 offset1:4
    ds_read2_b64 v[88:91], v13 offset0:8 offset1:12""")
    def rd(m,t):
        for mm in range(4):
            r=20+32*m+8*t+2*mm
            A(f'ds_read_b64_tr_b16 v[{r}:{r+1}], v12 offset:{m*WMAT+mm*16*WROW+t*32}')
    seq=[(m,t) for m in range(2) for t in range(4)]
    rd(*seq[0]); rd(*seq[1]); rd(*seq[2])
    for n,(m,t) in enumerate(seq):
        rem=min(len(seq)-1-n,2)
        A(f's_waitcnt lgkmcnt({0 if OPT["stamps"] and n==0 else 4*rem})')
        acc=(ACC0 if m==0 else ACC1)+4*t; f=20+32*m+8*t
        A(f"""v_mfma_f32_16x16x32_bf16 v[{acc}:{acc+3}], v[84:87], v[{f}:{f+3}], 0
        v_mfma_f32_16x16x32_bf16 v[{acc}:{acc+3}], v[88:91], v[{f+4}:{f+7}], v[{acc}:{acc+3}]""")
        if n+3<len(seq): rd(*seq[n+3])
def stageW(R, addr):
    A(f"""v_perm_b32 v40, v{R+2}, v{R}, s48
    v_perm_b32 v41, v{R+2}, v{R}, s49
    v_perm_b32 v42, v{R+3}, v{R+1}, s48
    v_perm_b32 v43, v{R+3}, v{R+1}, s49
    ds_write2_b32 v{addr}, v40, v41 offset0:0 offset1:8
    ds_write2_b32 v{addr}, v42, v43 offset0:16 offset1:24""")
def flagaddr(dst, src, tmp):
    FP=OPT['fp']; lgfp={1:0,2:1,4:2,8:3,16:4,32:5}[FP]
    A(f"""v_lshrrev_b32 v{tmp}, {lgfp}, v{src}
    v_and_b32 v{dst}, {FP-1}, v{src}
    v_lshlrev_b32 v{dst}, 3, v{dst}
    v_lshl_add_u32 v{dst}, v{tmp}, 7, v{dst}
    v_add_u32 v{dst}, {WS_FLG}, v{dst}""")
def setslow(addr):
    A(f"""v_mov_b32 v16, {addr}
    v_mov_b32 v17, 16
    ds_or_b32 v16, v17""")

def spin(label, addr, tmp, n, slp=0):
    A.label(label)
    if slp: A(f's_sleep {slp}')
    A(f"""ds_read_b32 v{tmp}, v{addr}
    s_waitcnt lgkmcnt(0)
    v_cmp_gt_u32 vcc, {n}, v{tmp}
    s_cbranch_vccnz {label}""")

def scan(v, first=None):
    src = first if first is not None else v
    A(f"""s_nop 1
    v_add_u32_dpp v{v}, v{src}, v{src} row_shr:1 row_mask:0xf bank_mask:0xf bound_ctrl:0
    s_nop 1
    v_add_u32_dpp v{v}, v{v}, v{v} row_shr:2 row_mask:0xf bank_mask:0xf bound_ctrl:0
    s_nop 1
    v_add_u32_dpp v{v}, v{v}, v{v} row_shr:4 row_mask:0xf bank_mask:0xf bound_ctrl:0
    s_nop 1
    v_add_u32_dpp v{v}, v{v}, v{v} row_shr:8 row_mask:0xf bank_mask:0xf bound_ctrl:0
    s_nop 1
    v_add_u32_dpp v{v}, v{v}, v{v} row_bcast:15 row_mask:0xa bank_mask:0xf
    s_nop 1
    v_add_u32_dpp v{v}, v{v}, v{v} row_bcast:31 row_mask:0xc bank_mask:0xf""")
def ebar(label, n):
    A(f"""s_mov_b64 exec, 1
    s_waitcnt lgkmcnt(0)
    ds_add_u32 v19, v{vFOUR}""")
    spin(label,19,15,n)
    A('s_mov_b64 exec, -1')

def poll1():
    A(f"global_load_dwordx2 v[{vNEW}:{vNEW+1}], v{vFA}, s[26:27] {OPT['pol']}")
def readtag():
    A(f"ds_read_b64 v[{vTAG}:{vTAG+1}], v{vZ} offset:{NONCE-ZERO}")
def kernel():
    ACC1=20
    RPM=(1<<OPT['rp'])-1
    A.raw('.p2align 8'); A.raw(f'.type {KN},@function'); A.label(KN)
    A(f"""s_cmp_ge_u32 s2, 256
    s_cbranch_scc1 L_end
    s_load_dwordx16 s[4:19], s[0:1], 0
    s_load_dwordx8 s[20:27], s[0:1], 64
    v_lshrrev_b32 v1, 6, v0""")
    stamp_init(); stamp(1)
    A(f"""v_lshlrev_b32 v3, 4, v0
    v_readfirstlane_b32 s3, v1
    v_and_b32 v{vLANE}, 63, v0
    v_and_b32 v1, 15, v0
    s_and_b32 s40, s2, 7
    s_lshl_b32 s40, s40, 5
    s_lshr_b32 s59, s2, 3
    s_add_u32 {sBK}, s59, s40
    s_mul_i32 {sROW}, {sBK}, {NB}
    s_cmp_ge_u32 s3, 8
    s_cbranch_scc1 L_noedge
    s_mul_i32 s40, s2, {CH*4}
    v_add_u32 v12, s40, v3
    v_add_u32 v13, 8192, v12
    v_lshrrev_b32 v14, 1, v12
    v_lshrrev_b32 v15, 1, v13
    s_mul_i32 s41, s2, {CH//4}
    s_sub_u32 s41, {E//4-512}, s41
    s_min_u32 s41, s41, {CH//4-512}
    v_cmp_gt_u32 s[50:51], s41, v0
    s_or_b32 s40, s2, s3
    s_cbranch_scc1 L_nn
    s_memrealtime s[42:43]
    v_mov_b32 v18, 0
    s_waitcnt lgkmcnt(0)
    s_lshl_b64 s[42:43], s[42:43], 25
    s_or_b32 s42, s42, 1
    v_mov_b32 v16, s42
    v_mov_b32 v17, s43
    s_mov_b64 exec, 1
    global_store_dwordx2 v18, v[16:17], s[24:25] sc1
    s_mov_b64 exec, -1""")
    A.label('L_nn')
    A(f"""s_waitcnt lgkmcnt(0)
    global_load_dwordx4 v[20:23], v12, s[10:11]
    s_mov_b64 exec, s[50:51]
    s_cbranch_execz L_e1
    global_load_dwordx4 v[40:43], v13, s[10:11]""")
    A.label('L_e1')
    A(f"""s_cmp_eq_u32 s3, {4 if OPT['w4'] else 99}
    s_cbranch_scc1 L_e3
    s_barrier""")
    A.label('L_e3')
    A(f"""s_cbranch_execz L_e2
    global_load_dwordx4 v[44:47], v13, s[8:9]
    global_load_dwordx2 v[48:49], v15, s[6:7]""")
    A.label('L_e2')
    A(f"""s_mov_b64 exec, -1
    s_cbranch_scc0 L_e4
    s_barrier""")
    A.label('L_e4')
    A(f"""global_load_dwordx4 v[24:27], v12, s[8:9]
    global_load_dwordx2 v[28:29], v14, s[6:7]
    s_setprio 3
    s_branch L_common""")
    A.label('L_noedge')
    A(f"""v_mov_b32 v56, 0
    v_mov_b32 v57, 0
    v_mov_b32 v58, 0
    v_mov_b32 v59, 0
    s_cmp_lg_u32 s3, 9
    s_cbranch_scc1 L_n1
    v_lshlrev_b32 v16, 4, v{vLANE}
    v_lshlrev_b32 v17, 2, v{vLANE}
    ds_write_b128 v16, v[56:59] offset:{CNT1}
    ds_write_b32 v17, v56 offset:{FLAGP}""")
    A.label('L_n1')
    A(f"""s_cmp_lg_u32 s3, 8
    s_cbranch_scc1 L_n2
    s_getpc_b64 s[42:43]""")
    A.label('L_pc')
    A(f"""s_sub_u32 s42, s42, L_pc-{KN}
    s_subb_u32 s43, s43, 0
    s_lshl_b32 s41, s59, 9
    v_lshlrev_b32 v10, 7, v{vLANE}
    v_add_u32 v11, s41, v10
    s_lshl_b32 s41, s59, 8
    v_add_u32 v10, s41, v10
    s_mov_b64 exec, 15
    global_load_dword v60, v11, s[42:43]
    s_mov_b64 exec, 3
    s_waitcnt lgkmcnt(0)
    global_load_dword v61, v10, s[14:15]
    global_load_dword v62, v10, s[20:21]
    global_load_dword v63, v10, s[12:13]
    global_load_dword v64, v10, s[18:19]
    s_mov_b64 exec, -1""")
    A.label('L_n2')
    A(f"""s_lshl_b32 s40, {sROW}, 7
    s_sub_u32 s40, s40, 8192
    v_add_u32 v14, s40, v3
    v_add_u32 v15, 4096, v14
    v_min_u32 v14, {N*128-16}, v14
    v_min_u32 v15, {N*128-16}, v15
    v_lshlrev_b32 v11, 3, v1
    s_waitcnt lgkmcnt(0)
    global_load_dwordx2 v[4:5], v11, s[16:17]
    s_barrier
    s_cmp_ge_u32 s3, 12
    s_cbranch_scc1 L_common
    global_load_dwordx4 v[88:91], v14, s[4:5]
    global_load_dwordx4 v[92:95], v15, s[4:5]""")
    A.label('L_common')
    stamp(2)
    A(f"""v_mov_b32 v{vFOUR}, 4
    s_lshl_b32 s40, s3, 4
    v_add_u32 v16, s40, v1""")
    flagaddr(vFT,16,17)
    A(f"""s_and_b32 s41, s2, {OPT['rp']-1}
    s_lshl_b32 s41, s41, 16
    v_add_u32 v{vFT}, s41, v{vFT}
    v_lshrrev_b32 v17, 2, v{vLANE}
    v_add_u32 v17, s40, v17
    s_lshl_b32 s41, {sBK}, 3
    s_add_u32 s41, s41, {WS_ENT}
    v_lshlrev_b32 v{vFA}, 11, v17
    v_add_u32 v{vFA}, s41, v{vFA}
    v_mul_u32_u24 v114, {DST}, v17
    v_lshlrev_b32 v1, 4, v1
    v_and_b32 v17, 3, v{vLANE}
    v_and_b32 v{vCA}, 60, v{vLANE}
    v_lshl_add_u32 v{vCA}, v17, 7, v{vCA}
    v_min_u32 v16, 49, v{vLANE}
    v_mul_u32_u24 v{vLL}, {LS-16}, v16
    v_lshl_add_u32 v{vLL}, v{vLANE}, 4, v{vLL}
    v_add_u32 v{vLL}, {LISTS}, v{vLL}
    v_mov_b32 v{vZ}, {ZERO}
    v_mov_b32 v{vMAG}, {f2u(1.5*2**23):#x}
    s_mov_b32 s64, {f2u(2.0**125):#x}
    s_mov_b32 s65, 2
    s_mov_b64 s[62:63], 0
    s_mov_b32 s30, {WS_SIZE}
    s_mov_b32 s31, 0x20000
    s_mov_b32 s34, {12560*256}
    s_mov_b32 s35, 0x20000
    s_mov_b32 s38, {N*128}
    s_mov_b32 s39, 0x20000
    s_mov_b32 s28, s26
    s_mov_b32 s29, s27
    s_add_u32 s32, s26, {WS_TAB}
    s_addc_u32 s33, s27, 0
    s_mov_b32 s36, s22
    s_mov_b32 s37, s23
    s_cmp_ge_u32 s3, 8
    s_cbranch_scc1 L_gw
    s_mov_b32 s44, -49
    s_mov_b32 s45, {(127-113)<<23}
    s_mov_b32 s46, 0x78000000
    s_mov_b32 s47, 0xffff0000
    s_mov_b64 s[52:53], 0
    v_mov_b32 v19, {ECNT}
    v_lshlrev_b32 v18, 4, v{vLANE}
    v_lshlrev_b32 v14, 3, v{vLANE}
    v_add_u32 v12, {BASE}, v18
    v_add_u32 v13, {BASE}, v14
    v_add_u32 v11, {SLOT}, v3
    s_cmp_eq_u64 s[50:51], 0
    s_cbranch_scc1 L_a1
    s_waitcnt vmcnt(4)
    s_mov_b64 exec, s[50:51]""")
    part_a(40,50,54,68)
    A("""s_mov_b64 exec, -1
    s_branch L_a2""")
    A.label('L_a1')
    A('s_waitcnt vmcnt(2)')
    A.label('L_a2')
    part_a(20,30,34,64)
    stamp(3)
    ebar('L_eb1',32)
    A(f"""ds_read_b128 v[80:83], v18 offset:{CNT1}
    ds_read_b64 v[96:97], v14 offset:{CNT1}
    ds_read_b64 v[98:99], v14 offset:{CNT1+512}
    s_waitcnt lgkmcnt({W(2)})
    v_add_u32 v81, v80, v81
    v_add_u32 v82, v81, v82
    v_add_u32 v83, v82, v83""")
    scan(88,83)
    A(f"""v_sub_u32 v84, v88, v83
    v_add_u32 v84, {SLOT}, v84
    v_add_u32 v85, v84, v80
    v_add_u32 v86, v84, v81
    v_add_u32 v87, v84, v82
    ds_write_b128 v12, v[84:87]""")
    for i in range(4): A(f'ds_read_b32 v{72+i}, v{34+i}')
    A(f"""ds_read_b64 v[100:101], v13
    ds_read_b64 v[102:103], v13 offset:512
    s_cmp_eq_u64 s[50:51], 0
    s_cbranch_scc1 L_b1
    s_mov_b64 exec, s[50:51]""")
    for i in range(4): A(f'ds_read_b32 v{76+i}, v{54+i}')
    A('s_waitcnt vmcnt(2)')
    part_b(40,44,48,50,68,76)
    A('s_mov_b64 exec, -1')
    A.label('L_b1')
    A('s_waitcnt vmcnt(0)')
    part_b(20,24,28,30,64,72)
    A.label('L_b2')
    A(f"""s_cmp_lg_u64 s[52:53], 0
    s_cbranch_scc1 L_ebad""")
    A.label('L_ebad_back')
    stamp(4)
    A(f"""s_mul_i32 s54, s2, {DST}
    s_add_u32 s55, s54, 8192""")
    ebar('L_eb2',64)
    stamp(5)
    A(f"""ds_read_b128 v[20:23], v11
    ds_read_b128 v[24:27], v11 offset:8192
    s_waitcnt lgkmcnt({W(1)})
    buffer_store_dwordx4 v[20:23], v3, s[28:31], s54 offen sc1
    s_mov_b64 exec, s[50:51]
    s_cbranch_execz L_c1
    s_waitcnt lgkmcnt(0)
    buffer_store_dwordx4 v[24:27], v3, s[28:31], s55 offen sc1""")
    A.label('L_c1')
    A('s_mov_b64 exec, -1')
    for i in range(4):
        A(f"""v_subrev_u32 v{100+i}, {SLOT}, v{100+i}
        v_lshrrev_b32 v{100+i}, 2, v{100+i}
        v_lshl_or_b32 v{104+2*i}, v{96+i}, 10, v{100+i}""")
    A(f"""v_mov_b32 v16, {FLAGP}
    s_lshl_b32 s54, s2, 11
    s_add_u32 s54, s54, {WS_ENT}""")
    A.label('L_sg')
    A(f"""ds_read_b64 v[{vTAG}:{vTAG+1}], v16 offset:{NONCE-FLAGP}
    s_waitcnt lgkmcnt(0)
    v_cmp_eq_u32 vcc, 0, v{vTAG}
    s_cbranch_vccnz L_sg
    v_and_b32 v{vTAG}, -2, v{vTAG}
    s_mov_b64 exec, 1
    s_waitcnt vmcnt(0)
    ds_add_rtn_u32 v17, v16, v{vFOUR} offset:{DCNT-FLAGP}
    s_mov_b64 exec, -1
    ds_read_b32 v20, v16
    s_waitcnt lgkmcnt(0)
    v_readfirstlane_b32 s42, v17
    v_cmp_gt_u32 vcc, 32, v20
    v_lshl_or_b32 v20, v20, 20, v{vTAG}
    s_cmp_lg_u32 s42, 28
    s_cbranch_scc1 L_nosig""")
    for i in range(4):
        A(f"""v_or_b32 v{104+2*i}, v{104+2*i}, v20
        v_mov_b32 v{105+2*i}, v{vTAG+1}""")
    A(f"""s_cbranch_vccz L_nosig
    buffer_store_dwordx4 v[104:107], v18, s[28:31], s54 offen sc1
    buffer_store_dwordx4 v[108:111], v18, s[28:31], s54 offen offset:1024 sc1""")
    A.label('L_nosig')
    stamp(0)
    A('s_barrier')
    stamp(10)
    A(f"""v_mov_b32 v56, 0
    v_mov_b32 v57, 0
    v_mov_b32 v58, 0
    v_mov_b32 v59, 0
    v_add_u32 v16, {MID}, v3""")
    for k in range(3): A(f'ds_write_b128 v16, v[56:59] offset:{8192*k}')
    A(f"""s_cmp_lg_u32 s3, 0
    s_cbranch_scc1 L_z1
    ds_write_b128 v16, v[56:59] offset:24576""")
    A.label('L_z1')
    if OPT['dc']: A(f's_sleep {OPT["dc"]}')
    poll1()
    A('s_branch L_prep')
    A.label('L_gw')
    A(f"""s_cmp_lg_u32 s3, 9
    s_cbranch_scc1 L_g2
    ds_write_b32 v{vCA}, v{vLL} offset:{CNT2}
    v_mov_b32 v57, -1
    v_lshlrev_b32 v18, 3, v{vLANE}
    ds_write_b64 v18, v[56:57] offset:{FL}""")
    A.label('L_g2')
    A(f"""s_cmp_ge_u32 s3, 12
    s_cbranch_scc1 L_t1
    s_waitcnt vmcnt(2)
    s_branch L_t2""")
    A.label('L_t1')
    A('s_waitcnt vmcnt(0)')
    A.label('L_t2')
    A(f"""s_mov_b32 s44, {f2u(-L2E):#x}
    v_and_b32 v7, 0xffff0000, v5
    v_lshlrev_b32 v6, 16, v5
    v_and_b32 v5, 0xffff0000, v4
    v_lshlrev_b32 v4, 16, v4
    v_mul_f32 v4, s44, v4
    v_mul_f32 v5, s44, v5
    v_mul_f32 v6, s44, v6
    v_mul_f32 v7, s44, v7
    v_bfe_u32 v8, v0, 4, 5
    v_cvt_f32_u32 v9, v8
    v_mul_f32 v96, {f2u(1/16.0):#x}, v9
    v_add_f32 v97, 2.0, v96
    v_add_f32 v98, -4.0, v96
    v_add_f32 v99, -2.0, v96
    v_mul_f32 v100, {f2u(1/2048.0):#x}, v9
    v_add_f32 v101, {f2u(32/2048.0):#x}, v100
    v_add_f32 v102, {f2u(64/2048.0):#x}, v100
    v_add_f32 v103, {f2u(96/2048.0):#x}, v100
    v_mov_b32 v17, {f2u(-KSH):#x}
    v_lshl_add_u32 v9, v8, 8, v1
    v_lshl_add_u32 v8, v8, 9, v1
    v_add_u32 v8, {T2}, v8""")
    for k in range(4):
        for i in range(4): A(f'v_fma_f32 v{20+4*k+i}, v{4+i}, v{96+k}, v17')
    for k in range(4):
        for i in range(4): A(f'v_mul_f32 v{36+4*k+i}, v{4+i}, v{100+k}')
    for i in range(32): A(f'v_exp_f32 v{20+i}, v{20+i}')
    A('v_max3_f32 v16, |v4|, |v5|, |v6|')
    for k in range(4): A(f'ds_write_b128 v9, v[{20+4*k}:{23+4*k}] offset:{T1+8192*k}')
    for k in range(4): A(f'ds_write_b128 v8, v[{36+4*k}:{39+4*k}] offset:{16384*k}')
    A(f"""v_max_f32_e64 v16, v16, |v7|
    v_cmp_nge_f32 vcc, 4.0, v16
    s_cbranch_vccnz L_wbad""")
    A.label('L_wbad_back')
    A(f"""v_and_b32 v2, 255, v0
    v_lshlrev_b32 v3, 4, v2
    v_lshrrev_b32 v12, 3, v2
    v_and_b32 v13, 7, v2
    v_mov_b32 v46, 0
    s_cmp_ge_u32 s3, 12
    s_cselect_b64 s[40:41], s[12:13], s[14:15]
    s_cselect_b64 s[42:43], s[18:19], s[20:21]
    s_cselect_b32 s55, {WAU-WBV}, 0
    s_cselect_b32 s57, {ACNT-SCNT}, 0
    s_add_u32 s55, s55, {WBV}
    s_add_u32 s57, s57, {SCNT}
    v_add_u32 v15, 4096, v3
    v_mov_b32 v50, 1
    s_setprio 1
    s_cmp_lg_u32 s3, 15
    s_cbranch_scc1 L_g4
    global_load_dwordx2 v[50:51], v46, s[24:25] sc1""")
    A.label('L_g4')
    A(f"""global_load_dwordx4 v[72:75], v3, s[40:41]
    global_load_dwordx4 v[76:79], v15, s[40:41]
    global_load_dwordx4 v[80:83], v3, s[42:43]
    global_load_dwordx4 v[84:87], v15, s[42:43]
    v_mul_u32_u24 v16, {WROW}, v12
    v_lshl_add_u32 v16, v13, 2, v16
    v_add_u32 v16, s55, v16
    v_mul_u32_u24 v17, {XST}, v12
    v_lshl_add_u32 v17, v13, 4, v17
    v_add_u32 v17, {XS}, v17
    v_add_u32 v18, {32*XST}, v17""")
    A('v_mov_b32 v19, s2')
    flagaddr(127,19,15)
    A(f"""v_lshl_add_u32 v127, v{vLANE}, 16, v127
    s_mov_b32 s48, 0x05040100
    s_mov_b32 s49, 0x07060302
    s_and_b32 s54, s3, 3
    v_bfe_u32 v12, v0, 2, 4
    v_and_b32 v13, 3, v0
    v_mul_u32_u24 v12, {WROW}, v12
    v_lshl_add_u32 v12, v13, 3, v12
    v_add_u32 v12, s55, v12
    v_and_b32 v13, 15, v0
    v_bfe_u32 v14, v0, 4, 2
    v_mul_u32_u24 v13, {XST}, v13
    v_lshl_add_u32 v13, v14, 3, v13
    s_mul_i32 s56, s54, {16*XST}
    s_add_u32 s56, s56, {XS}
    v_add_u32 v13, s56, v13
    s_lshl_b32 s56, s54, 2
    v_add_u32 v14, s56, v14
    v_mov_b32 v19, s57
    v_mov_b32 v47, {SCNT}
    s_mov_b32 s43, 0""")
    stamp(4)
    A(f"""s_waitcnt vmcnt(4)
    s_cmp_lt_u32 s3, 12
    s_cbranch_scc1 L_g7
    s_cmp_lg_u32 s3, 15
    s_cbranch_scc1 L_g6
    ds_write_b64 v46, v[50:51] offset:{NONCE}
    s_branch L_g6""")
    A.label('L_g7')
    A(f"""ds_write2_b64 v17, v[88:89], v[90:91] offset0:0 offset1:1
    ds_write2_b64 v18, v[92:93], v[94:95] offset0:0 offset1:1""")
    A.label('L_g6')
    for m in range(4):
        A(f's_waitcnt vmcnt({3-m})')
        stageW(72+4*m,16)
        if m<3: A(f'v_add_u32 v16, {32*WROW}, v16')
    stamp(5)
    A.label('L_gop')
    A(f"""s_waitcnt vmcnt(0)
    v_cmp_eq_u32 vcc, 0, v50
    s_cbranch_vccnz L_gowait""")
    A.label('L_goback')
    A(f"""s_mov_b64 exec, 1
    s_cmp_lg_u32 s3, 15
    s_cbranch_scc1 L_g5
    v_or_b32 v50, 1, v50
    s_waitcnt lgkmcnt(0)
    ds_write_b64 v46, v[50:51] offset:{NONCE}""")
    A.label('L_g5')
    A(f"""s_waitcnt lgkmcnt(0)
    ds_add_u32 v19, v{vFOUR}""")
    spin('L_sb',19,15,16)
    A("""s_cmp_ge_u32 s3, 12
    s_cbranch_scc1 L_au
    s_mov_b64 exec, -1""")
    stamp(3)
    A('s_setprio 2')
    gemm_run(ACC1)
    A(f"""s_mov_b32 s44, {f2u(-L2E):#x}
    s_mov_b32 s45, {f2u(HS):#x}
    s_mov_b32 s46, 0x07060100
    s_lshl_b32 s47, {sROW}, 8
    s_add_u32 s47, s47, {WS_TAB+256}
    v_lshl_add_u32 v14, v14, 10, v1""")
    for i in range(16): A(f'v_mul_f32 v{ACC0+i}, s44, v{ACC0+i}')
    A("""s_cmp_eq_u32 s54, 3
    s_cselect_b32 exec_lo, 0xffff, -1
    s_cselect_b32 exec_hi, 0, -1""")
    for r in range(4):
        for t in range(4): A(f'v_exp_f32 v{64+4*r+t}, v{ACC0+4*t+r}')
        for t in range(4): A(f'v_fma_mixlo_f16 v{36+t}, v{ACC1+4*t+r}, s45, 0')
        for t in range(4): A(f'v_add_u32 v{64+4*r+t}, 0x8000, v{64+4*r+t}')
        for t in range(4): A(f'v_sub_u32_sdwa v{64+4*r+t}, v{64+4*r+t}, v{36+t} clamp dst_sel:DWORD dst_unused:UNUSED_PAD src0_sel:DWORD src1_sel:WORD_0')
        for t in range(4): A(f'v_perm_b32 v{64+4*r+t}, v{64+4*r+t}, v{36+t}, s46')
        A(f'buffer_store_dwordx4 v[{64+4*r}:{67+4*r}], v14, s[28:31], s47 offen offset:{r*256} sc1')
        if r==0: A('s_cbranch_scc1 L_tdone')
    A.label('L_tdone')
    A(f"""s_mov_b64 exec, -1
    s_setprio 0
    s_or_b32 s56, s2, s54
    s_cmp_lg_u32 s56, 0
    s_cbranch_scc1 L_nodummy
    v_lshlrev_b32 v44, 2, v{vLANE}
    v_mov_b32 v45, {(127+81)<<23:#x}
    s_mov_b32 s56, {WS_TAB}
    buffer_store_dword v45, v44, s[28:31], s56 offen sc1""")
    A.label('L_nodummy')
    stamp(0)
    A('s_barrier')
    stamp(10)
    readtag()
    A(f"""v_max3_f32 v15, v{ACC0}, v{ACC0+1}, v{ACC0+2}
    v_max3_f32 v16, |v{ACC1}|, |v{ACC1+1}|, |v{ACC1+2}|""")
    for i in (3,5,7,9,11,13,14):
        A(f"""v_max3_f32 v15, v15, v{ACC0+i}, v{ACC0+i+1}
        v_max3_f32 v16, v16, |v{ACC1+i}|, |v{ACC1+i+1}|""")
    A(f"""v_cmp_lt_f32 vcc, {f2u(50.0):#x}, v15
    s_mov_b64 s[42:43], vcc
    v_cmp_lt_f32 vcc, {f2u(1000.0):#x}, v16
    s_or_b64 s[42:43], s[42:43], vcc
    s_cbranch_scc0 L_tok""")
    setslow(FLAGT)
    A.label('L_tok')
    A(f"""v_mov_b32 v8, {TCNT}
    s_mov_b64 exec, 1
    s_waitcnt vmcnt(0) lgkmcnt(0)
    ds_add_rtn_u32 v9, v8, v{vFOUR}
    s_mov_b64 exec, -1
    v_and_b32 v{vTAG}, -2, v{vTAG}
    s_mov_b64 exec, {RPM}
    ds_read_b32 v11, v8 offset:{FLAGT-TCNT}
    s_waitcnt lgkmcnt(0)
    v_readfirstlane_b32 s42, v9
    v_cmp_gt_u32 vcc, 32, v11
    v_or_b32 v20, v{vTAG}, v11
    v_mov_b32 v21, v{vTAG+1}
    s_cmp_eq_u32 s42, 12
    s_cselect_b64 exec, vcc, 0
    s_cbranch_execz L_nosigt
    global_store_dwordx2 v127, v[20:21], s[26:27] sc1""")
    A.label('L_nosigt')
    A('s_mov_b64 exec, -1')
    if OPT['dt']: A(f's_sleep {OPT["dt"]}')
    poll1()
    A('s_branch L_prep')
    A.label('L_au')
    spin('L_sb2',47,15,16)
    A('s_mov_b64 exec, -1')
    stamp(3)
    gemm_run(ACC1)
    readtag()
    stamp(0)
    A(f"""s_waitcnt lgkmcnt(0)
    v_and_b32 v{vTAG}, -2, v{vTAG}
    s_barrier""")
    stamp(10)
    A(f"""s_mov_b32 s44, {f2u(L2E):#x}
    v_mov_b32 v15, {f2u(-KSH):#x}
    v_lshl_add_u32 v120, v14, 10, v1
    v_lshl_add_u32 v14, v14, 11, v1
    v_add_u32 v13, {UU}, v14""")
    for r in range(4):
        for t in range(4): A(f'v_fma_f32 v{64+4*r+t}, v{ACC0+4*t+r}, s44, v15')
    for i in range(16): A(f'v_exp_f32 v{64+i}, v{64+i}')
    for r in range(4):
        for t in range(4): A(f'v_mov_b32 v{40+4*r+t}, v{ACC1+4*t+r}')
    if OPT['da']: A(f's_sleep {OPT["da"]}')
    poll1()
    for r in range(4):
        A(f"""ds_write_b128 v14, v[{64+4*r}:{67+4*r}] offset:{EA+512*r}
        ds_write_b128 v13, v[{40+4*r}:{43+4*r}] offset:{512*r}""")
    A(f'v_max3_f32 v16, |v{ACC0}|, |v{ACC0+1}|, |v{ACC0+2}|')
    for i in (3,5,7,9,11,13,14): A(f'v_max3_f32 v16, v16, |v{ACC0+i}|, |v{ACC0+i+1}|')
    A(f"""v_cmp_nge_f32 vcc, {f2u(51.0/L2E):#x}, v16
    s_cbranch_vccz L_prep""")
    setslow(FLAGC)
    A.label('L_prep')
    A(f"""s_setprio 0
    s_mov_b32 s43, 0
    s_mov_b32 s40, 0x1ffffff
    s_mov_b32 s41, 0
    v_and_b32 v9, 3, v0
    v_lshl_add_u32 v6, v9, 4, v114
    v_lshl_add_u32 v20, v9, 2, v114
    v_mul_u32_u24 v5, 12, v9
    v_lshlrev_b32 v4, 2, v9
    v_mul_u32_u24 v3, 3, v9
    v_add_u32 v5, v5, v114""")
    for i in list(range(vDEN,vDEN+8))+list(range(vM,vM+12)): A(f'v_mov_b32 v{i}, 0')
    A.label('L_poll')
    A(f"""s_waitcnt vmcnt(0)
    v_xor_b32 v{vNEW}, v{vNEW}, v{vTAG}
    v_xor_b32 v{vNEW+1}, v{vNEW+1}, v{vTAG+1}
    v_cmp_lt_u64 vcc, s[40:41], v[{vNEW}:{vNEW+1}]
    s_cbranch_vccnz L_repoll""")
    A.label('L_ready')
    A(f"""s_mov_b64 exec, -1
    v_and_b32 v10, 0xfff, v{vNEW}
    v_lshl_add_u32 v6, v10, 2, v6
    v_lshrrev_b32 v2, 12, v{vNEW}
    v_sub_u32 v11, v2, v4
    v_cmp_lt_i32 vcc, 0, v11
    v_sub_u32 v21, v2, v9
    v_sub_u32 v3, v2, v3
    v_cmp_lt_i32 s[42:43], 16, v21
    v_cmp_lt_i32 s[40:41], 20, v3
    v_lshl_add_u32 v20, v10, 2, v20
    v_lshl_add_u32 v5, v10, 2, v5
    s_mov_b64 exec, vcc
    s_cbranch_execz L_r1
    global_load_dwordx4 v[64:67], v6, s[26:27] sc1
    s_mov_b64 exec, s[42:43]
    s_cbranch_execz L_r1
    global_load_dword v68, v20, s[26:27] offset:64 sc1
    s_mov_b64 exec, s[40:41]
    s_cbranch_execz L_r1
    global_load_dwordx3 v[70:72], v5, s[26:27] offset:80 sc1""")
    A.label('L_r1')
    A('s_mov_b64 exec, -1')
    A('v_cmp_lt_i32 vcc, 32, v2')
    stamp(11)
    A('s_cbranch_vccnz L_rare')
    A.label('L_rare_back')
    A('s_waitcnt vmcnt(0)')
    stamp(12)
    if not OPT['ftl']: A(f"global_load_dwordx2 v[{vNEW}:{vNEW+1}], v{vFT}, s[26:27] {OPT['pol']}")
    insert(list(range(64,69)),74,82,44,0,11,(16,21))
    if OPT['ftl']: A(f"global_load_dwordx2 v[{vNEW}:{vNEW+1}], v{vFT}, s[26:27] {OPT['pol']}")
    A("""s_cmp_eq_u64 s[40:41], 0
    s_cbranch_scc1 L_r2""")
    insert(list(range(70,73)),79,87,54,20,3)
    A('s_waitcnt lgkmcnt(0)')
    insert2(3,79,87,54)
    A.label('L_r2')
    A('s_waitcnt lgkmcnt(0)')
    insert2(5,74,82,44)
    A('s_mov_b32 s43, 0')
    A.label('L_tp')
    A(f"""s_waitcnt vmcnt(0)
    v_cmp_ne_u64 vcc, v[{vTAG}:{vTAG+1}], v[{vNEW}:{vNEW+1}]
    s_cbranch_vccnz L_tpw""")
    A.label('L_b4')
    A(f"""v_mov_b32 v10, {FLAGC}
    s_mov_b32 s50, -1
    s_mov_b32 s51, 0x1ffff
    s_mov_b32 s48, 0x00010001
    s_mov_b32 s49, 0x00010001
    s_mov_b32 s40, 0x7f00
    s_mov_b32 s41, 0x0c0c0400
    s_setprio 3
    s_waitcnt lgkmcnt(0)
    s_barrier""")
    stamp(13)
    if OPT['pfb']:
        A(f"""s_lshr_b32 s42, s2, 3
        s_lshl_b32 s42, s42, 4
        s_add_u32 s42, s42, s3
        s_mul_i32 s42, s42, {49*128}
        v_lshlrev_b32 v11, 7, v{vLANE}
        s_mov_b64 exec, {hex((1<<OPT['pfb'])-1)}
        buffer_load_dword v113, v11, s[32:35], s42 offen
        s_mov_b64 exec, -1""")
    A(f'''ds_read_b32 v121, v{vCA} offset:{CNT2}
    ds_read_b32 v122, v10
    s_waitcnt lgkmcnt(0)
    ds_write2_b32 v121, v{vDEN}, v{vDEN} offset0:0 offset1:1
    ds_write2_b32 v121, v{vDEN}, v{vDEN} offset0:2 offset1:3
    v_sub_u32 v121, v121, v{vLL}
    v_cmp_lt_u32 vcc, 512, v121
    s_or_b64 s[62:63], s[62:63], vcc
    v_cmp_ne_u32 vcc, 0, v122
    v_add_u32 v121, 12, v121
    v_lshrrev_b32 v121, 4, v121
    v_max_u32 v121, 1, v121
    s_or_b64 s[62:63], s[62:63], vcc
    s_cbranch_scc1 L_slow
    v_cndmask_b32 v121, 0, v121, s[50:51]
    s_nop 1
    v_add_u32_dpp v122, v121, v121 row_shr:1 row_mask:0xf bank_mask:0xf bound_ctrl:0
    s_nop 1
    v_add_u32_dpp v122, v122, v122 row_shr:2 row_mask:0xf bank_mask:0xf bound_ctrl:0
    s_nop 1
    v_add_u32_dpp v122, v122, v122 row_shr:4 row_mask:0xf bank_mask:0xf bound_ctrl:0
    s_nop 1
    v_add_u32_dpp v122, v122, v122 row_shr:8 row_mask:0xf bank_mask:0xf bound_ctrl:0
    s_nop 1
    v_add_u32_dpp v122, v122, v122 row_bcast:15 row_mask:0xa bank_mask:0xf
    s_nop 1
    v_add_u32_dpp v122, v122, v122 row_bcast:31 row_mask:0xc bank_mask:0xf
    s_nop 0
    v_readlane_b32 s42, v122, 63
    v_sub_u32 v121, v122, v121
    v_lshlrev_b32 v124, 4, v121
    v_sub_u32 v124, v{vLL}, v124
    s_cmp_gt_u32 s42, 1024
    s_cbranch_scc1 L_slow
    s_add_u32 s42, s42, 3
    s_lshr_b32 s43, s42, 6
    s_bfe_u32 s44, s42, 0x40002
    s_cmp_lt_u32 s3, s44
    s_addc_u32 s45, s43, 0
    s_mul_i32 s46, s3, s43
    s_min_u32 s47, s3, s44
    s_add_u32 s46, s46, s47
    s_lshl_b32 s46, s46, 2
    s_lshl_b32 s47, s45, 2
    v_subrev_u32 v123, s46, v121
    v_cmp_gt_u32 vcc, s47, v123
    v_lshlrev_b32 v123, 2, v123
    s_and_b32 vcc_hi, vcc_hi, 0x3ffff
    v_cndmask_b32 v123, 0, v123, vcc
    ds_permute_b32 v125, v123, v{vFOUR}''')
    for g in range(4):
        if g: A('s_add_u32 s46, s46, s45')
        A(f"""v_cmp_ge_u32 vcc, s46, v122
        s_lshl_b32 s{56+g}, s46, 4
        s_and_b64 vcc, vcc, s[50:51]
        s_bcnt1_i32_b64 s{52+g}, vcc
        v_readlane_b32 s47, v124, s{52+g}
        s_add_u32 s{56+g}, s{56+g}, s47""")
    A(f"""v_mov_b32 v{vA}, s56
    v_mov_b32 v{vLB}, s52
    s_mov_b32 exec_lo, 0xffff0000
    v_mov_b32 v{vA}, s57
    v_mov_b32 v{vLB}, s53
    s_mov_b32 exec_lo, 0
    v_mov_b32 v{vA}, s58
    v_mov_b32 v{vLB}, s54
    s_mov_b32 exec_hi, 0xffff0000
    v_mov_b32 v{vA}, s59
    v_mov_b32 v{vLB}, s55
    s_mov_b64 exec, -1
    s_cmp_eq_u32 s45, 0
    s_cbranch_scc1 L_done
    ds_read_b128 v[{vR}:{vR+3}], v{vA}
    v_lshl_add_u32 v{vB}, v{vLB}, 9, v1
    s_mov_b32 s44, 0x0c070600
    ds_read_b128 v[{vEA}:{vEA+3}], v{vB} offset:{EA}
    v_mul_u32_u24 v{vLB}, {LS}, v{vLB}
    v_add_u32 v{vLB}, {LISTS}, v{vLB}
    v_add_u32 v{vB}, {VB0}, v{vB}
    s_waitcnt lgkmcnt({W(1)})""")
    gpair(0); gpair(1)
    readT(vR)
    A(f"""v_cmp_ne_u32 s[42:43], 0, v125
    s_mov_b32 s50, 0x00030003
    s_mov_b32 s51, 0x00030003
    s_lshr_b64 s[52:53], s[42:43], s45
    s_lshr_b64 s[54:55], s[52:53], s45
    s_lshr_b64 s[56:57], s[54:55], s45
    s_pack_ll_b32_b16 s42, s42, s52
    s_pack_ll_b32_b16 s43, s54, s56
    s_andn2_b64 s[42:43], s[42:43], s[48:49]""")
    stamp(6,14)
    A('s_setprio 1' if OPT['park'] else 's_setprio 0')
    def body(tag, last, sub, adv):
        secF()
        A(f"""s_and_b64 s[46:47], s[42:43], s[50:51]
        s_cbranch_scc1 L_evt_{tag}""")
        A.label(f'L_eback_{tag}')
        if not last: A('s_lshr_b64 s[42:43], s[42:43], 1')
        A('s_waitcnt lgkmcnt(0)')
        secPE()
        readT(vR+2)
        if not last: A(f'ds_read_b128 v[{vR}:{vR+3}], v{vA} offset:{16*sub}')
        A('s_waitcnt vmcnt(2)')
        secRest(vD)
        A('s_waitcnt lgkmcnt(0)')
        if not last: gpair(0)
        secTail()
        secF()
        secPE()
        if not last:
            readT(vR)
            if adv: A(f'v_add_u32 v{vA}, {adv}, v{vA}')
        A(f's_waitcnt vmcnt({0 if last else 2})')
        secRest(vD+8)
        if not last: gpair(1)
        secTail()
    U_=1
    phases=[(3,OPT['r2']),(2,OPT['r1']),(1,1)] if OPT['r2'] else [(1,1)]
    tags=[]
    for n,(pr,rem) in enumerate(phases):
        PRIO[0]=pr
        nxt = f'L_ph{n+1}' if n+1<len(phases) else 'L_last'
        A.label(f'L_ph{n}')
        A(f"""s_cmp_le_u32 s45, {rem}
        s_cbranch_scc1 {nxt}""")
        A.label(f'L_loop{n}')
        body(f'b{n}', False, 1, 16); tags.append(f'b{n}')
        A(f"""s_sub_u32 s45, s45, 1
        s_cmp_gt_u32 s45, {rem}
        s_cbranch_scc1 L_loop{n}""")
    A.label('L_last')
    body('z', True, 0, 0)
    secF()
    A(f"""s_setprio 0
    v_subrev_u32 v20, {VB0}, v{vB}
    v_lshrrev_b32 v20, 6, v20
    v_lshlrev_b32 v21, 5, v0
    v_add_u32 v21, {FIN}, v21
    s_mov_b64 exec, s[48:49]
    ds_max_u32 v20, v21 offset:{FL}
    ds_min_u32 v20, v21 offset:{FL+4}
    s_mov_b64 exec, -1""")
    A.label('L_done')
    stamp(7,15)
    A.label('L_epi')
    A(f"""v_lshrrev_b32 v24, 4, v0
    v_lshl_add_u32 v25, v24, 9, v1
    v_add_u32 v26, {UU}, v25
    v_lshlrev_b32 v30, 3, v0
    v_lshlrev_b32 v24, 3, v24
    v_add_u32 v31, v24, v30
    s_lshl_b32 s45, {sROW}, 7
    ds_read_b64 v[2:3], v31 offset:{XS}
    ds_read_b128 v[40:43], v26
    ds_read_b128 v[56:59], v25 offset:{EA}
    v_add_u32 v26, {MID}, v25
    s_mov_b32 s44, {f2u(1e-6*HS):#x}
    s_mov_b32 s43, {f2u(HS):#x}
    s_waitcnt lgkmcnt(0)
    s_barrier""")
    stamp(8)
    A(f"""ds_write_b128 v25, v[{vNUM}:{vNUM+3}] offset:{FIN}
    ds_write_b128 v25, v[{vDEN}:{vDEN+3}] offset:{FIN+256}
    ds_read_b64 v[28:29], v24 offset:{FL}
    ds_read_b128 v[32:35], v26
    ds_read_b128 v[36:39], v26 offset:256""")
    for i in range(4): A(f'v_rcp_f32 v{56+i}, v{56+i}')
    A(f"""v_lshlrev_b32 v44, 16, v2
    v_and_b32 v45, 0xffff0000, v2
    v_lshlrev_b32 v46, 16, v3
    v_and_b32 v47, 0xffff0000, v3""")
    for i in range(4): A(f'v_mul_f32 v{56+i}, s44, v{56+i}')
    A(f"""v_cmp_gt_u32 vcc, {NB*16}, v0
    s_and_b64 exec, exec, vcc
    s_mov_b64 s[46:47], exec
    s_waitcnt lgkmcnt(0)
    v_min_u32 v28, {FIN+63*512}, v28
    v_add_u32 v27, v29, v1
    s_barrier
    s_cbranch_execz L_fin""")
    A.label('L_el')
    A(f"""v_cmp_le_u32 vcc, v29, v28
    s_and_b64 exec, exec, vcc
    s_cbranch_execz L_el_done
    ds_read_b128 v[48:51], v27
    ds_read_b128 v[52:55], v27 offset:256
    v_add_u32 v27, 512, v27
    v_add_u32 v29, 512, v29
    s_waitcnt lgkmcnt(0)
    v_pk_add_f32 v[32:33], v[32:33], v[48:49]
    v_pk_add_f32 v[34:35], v[34:35], v[50:51]
    v_pk_add_f32 v[36:37], v[36:37], v[52:53]
    v_pk_add_f32 v[38:39], v[38:39], v[54:55]
    s_branch L_el""")
    A.label('L_el_done')
    A('s_mov_b64 exec, s[46:47]')
    for i in range(4): A(f'v_fma_f32 v{36+i}, v{36+i}, s43, v{56+i}')
    for i in range(4): A(f'v_rcp_f32 v{36+i}, v{36+i}')
    A('s_nop 0')
    for i in range(4): A(f'v_fmac_f32 v{40+i}, v{32+i}, v{36+i}')
    for i in range(4): A(f'v_mul_f32 v{32+i}, 0, v{40+i}')
    for i in range(4): A(f'v_max_f32 v{40+i}, v{40+i}, v{32+i}')
    for i in range(4): A(f'v_add_f32 v{40+i}, v{40+i}, v{44+i}')
    A("""v_cvt_pk_bf16_f32 v40, v40, v41
    v_cvt_pk_bf16_f32 v41, v42, v43
    buffer_store_dwordx2 v[40:41], v30, s[36:39], s45 offen""")
    A.label('L_fin')
    if OPT['stamps']:
        A('s_waitcnt vmcnt(0)'); stamp(9)
    stamp_flush()
    A.label('L_end')
    A('s_endpgm')
    for tag,sub in [(t,1) for t in tags]+[('z',None)]:
        A.label(f'L_evt_{tag}')
        A(f"""s_and_b64 s[52:53], s[46:47], s[48:49]
        s_cbranch_scc0 L_ev2_{tag}
        s_mul_i32 exec_lo, s52, 0xffff
        s_mul_i32 exec_hi, s53, 0xffff
        ds_write_b128 v{vB}, v[{vNUM}:{vNUM+3}] offset:{MID-VB0}
        ds_write_b128 v{vB}, v[{vDEN}:{vDEN+3}] offset:{MID-VB0+256}
        ds_read_b128 v[{vEA}:{vEA+3}], v{vB}
        ds_read_b128 v[{vNUM}:{vNUM+3}], v{vZ}
        ds_read_b128 v[{vDEN}:{vDEN+3}], v{vZ}
        v_add_u32 v{vB}, 512, v{vB}
        s_mov_b64 exec, -1""")
        A.label(f'L_ev2_{tag}')
        if sub is not None:
            A(f"""s_lshr_b64 s[46:47], s[46:47], 1
            s_and_b64 s[46:47], s[46:47], s[48:49]
            s_cbranch_scc0 L_eback_{tag}
            s_mul_i32 exec_lo, s46, 0xffff
            s_mul_i32 exec_hi, s47, 0xffff
            v_add_u32 v{vLB}, {LS}, v{vLB}
            v_subrev_u32 v{vA}, {16*sub}, v{vLB}
            s_mov_b64 exec, -1""")
        A(f's_branch L_eback_{tag}')
    A.label('L_gowait')
    A(f"""s_sleep 4
    global_load_dwordx2 v[50:51], v46, s[24:25] sc1
    s_add_u32 s43, s43, 1
    s_cmp_lt_u32 s43, {OPT['tmo']}
    s_cbranch_scc1 L_gop
    v_mov_b32 v16, {FLAGP}
    v_mov_b32 v17, 32
    ds_or_b32 v16, v17
    ds_or_b32 v16, v17 offset:{FLAGC-FLAGP}
    ds_or_b32 v16, v17 offset:{FLAGT-FLAGP}
    s_waitcnt vmcnt(0)
    s_branch L_goback""")
    A.label('L_repoll')
    A(f"""s_mov_b64 exec, vcc
    s_add_u32 s43, s43, 1
    s_cmp_gt_u32 s43, {OPT['tmo']}
    s_cbranch_scc1 L_timeout
    s_sleep {OPT['slp']}""")
    poll1()
    A('s_branch L_poll')
    A.label('L_tpw')
    A(f"""v_xor_b32 v{vNEW}, 16, v{vNEW}
    v_cmp_eq_u64 vcc, v[{vTAG}:{vTAG+1}], v[{vNEW}:{vNEW+1}]
    s_cbranch_vccnz L_timeout
    s_add_u32 s43, s43, 1
    s_cmp_gt_u32 s43, {OPT['tmo']}
    s_cbranch_scc1 L_timeout
    s_sleep {OPT['slp']}
    global_load_dwordx2 v[{vNEW}:{vNEW+1}], v{vFT}, s[26:27] {OPT['pol']}
    s_branch L_tp""")
    A.label('L_ebad')
    setslow(FLAGP)
    A('s_branch L_ebad_back')
    A.label('L_timeout')
    A('s_mov_b64 exec, -1')
    A(f"""v_mov_b32 v10, {FLAGC}
    v_mov_b32 v11, 16
    ds_or_b32 v10, v11
    s_branch L_b4""")
    A.label('L_wbad')
    setslow(FLAGC)
    A('s_branch L_wbad_back')
    A.label('L_rare')
    A(f"""v_cmp_lt_u32 vcc, 0xffffff, v{vNEW}
    s_cbranch_vccnz L_timeout
    v_lshl_add_u32 v8, v10, 2, v114
    v_lshl_add_u32 v8, v9, 4, v8
    v_add_u32 v8, 128, v8
    v_lshlrev_b32 v7, 2, v9
    v_sub_u32 v7, v2, v7
    v_subrev_u32 v7, 32, v7""")
    A.label('L_rl')
    A("""v_cmp_lt_i32 vcc, 0, v7
    s_cbranch_vccz L_rare_back
    s_mov_b64 exec, vcc
    global_load_dwordx4 v[88:91], v8, s[26:27] sc1
    s_mov_b64 exec, -1
    s_waitcnt vmcnt(0)""")
    insert(list(range(88,92)),74,82,44,0,7)
    A('s_waitcnt lgkmcnt(0)')
    insert2(4,74,82,44)
    A("""v_add_u32 v8, 64, v8
    v_subrev_u32 v7, 16, v7
    s_branch L_rl""")
    A.label('L_slow')
    A(f"""s_setprio 0
    s_waitcnt lgkmcnt(0)
    s_barrier
    v_lshlrev_b32 v8, 4, v0
    v_lshlrev_b32 v10, 3, v0
    v_lshlrev_b32 v11, 1, v{vLANE}
    v_lshlrev_b32 v5, 2, v{vLANE}
    v_mov_b32 v9, v{vLANE}
    v_mov_b32 v60, 1.0
    v_mov_b32 v61, 1.0
    v_mov_b32 v62, 1.0
    v_mov_b32 v63, 1.0
    v_add_u32 v7, {LISTS}, v8
    s_mov_b32 s42, 0x05040100
    s_mov_b32 s43, 0x07060302
    global_load_dwordx2 v[20:21], v10, s[14:15]
    global_load_dwordx2 v[22:23], v10, s[20:21]
    global_load_ushort v4, v11, s[16:17]
    v_lshrrev_b32 v28, 4, v0
    v_lshl_add_u32 v28, v28, 9, v1
    ds_write_b128 v28, v[60:63] offset:{EA}
    s_cmp_lt_u32 s3, 12
    s_cbranch_scc1 L_s_noa
    v_add_u32 v120, {RAWA}, v120""")
    for r in range(4):
        A(f"""ds_write2_b32 v120, v{96+r}, v{100+r} offset0:{64*r} offset1:{64*r+1}
        ds_write2_b32 v120, v{104+r}, v{108+r} offset0:{64*r+2} offset1:{64*r+3}""")
    A.label('L_s_noa')
    A(f"""s_waitcnt vmcnt(0)
    v_perm_b32 v24, v22, v20, s42
    v_perm_b32 v25, v22, v20, s43
    v_perm_b32 v26, v23, v21, s42
    v_perm_b32 v27, v23, v21, s43
    ds_write_b128 v7, v[24:27]
    v_lshlrev_b32 v4, 16, v4
    v_add_u32 v6, {LISTS}, v5
    s_waitcnt lgkmcnt(0)
    s_barrier""")
    for k in range(64): A(f'ds_read_b32 v{64+k}, v6 offset:{256*k}')
    A(f"""s_mul_i32 s44, s3, {E//16}
    s_add_u32 s45, s44, {E//16}
    s_mov_b32 s53, {f2u(-L2E):#x}
    s_mov_b32 s54, {f2u(HS):#x}
    s_waitcnt lgkmcnt(0)""")
    A.label('L_s_scan')
    A(f"""v_add_u32 v30, s44, v9
    v_cmp_gt_u32 s[46:47], s45, v30
    v_min_u32 v30, {E-1}, v30
    v_lshlrev_b32 v31, 2, v30
    v_lshlrev_b32 v30, 1, v30
    global_load_dword v32, v31, s[10:11]
    global_load_dword v33, v31, s[8:9]
    global_load_ushort v34, v30, s[6:7]
    s_waitcnt vmcnt(0)
    v_subrev_u32 v32, {sROW}, v32
    v_cmp_gt_u32 vcc, {NB}, v32
    v_min_u32 v33, {N-1}, v33
    v_lshlrev_b32 v34, 16, v34
    s_and_b64 s[46:47], s[46:47], vcc""")
    A.label('L_s_edge')
    A(f"""s_cmp_eq_u64 s[46:47], 0
    s_cbranch_scc1 L_s_next
    s_ff1_i32_b64 s48, s[46:47]
    s_bitset0_b64 s[46:47], s48
    v_readlane_b32 s49, v32, s48
    v_readlane_b32 s50, v33, s48
    v_readlane_b32 s51, v34, s48
    s_nop 1
    s_lshl_b32 s50, s50, 7
    v_add_u32 v20, s50, v11
    global_load_ushort v21, v20, s[4:5]
    s_lshl_b32 s50, s49, 8
    s_add_u32 s50, s50, {RAWA}
    v_add_u32 v22, s50, v5
    ds_read_b32 v23, v22
    s_lshl_b32 s50, s49, 9
    s_add_u32 s50, s50, {MID}
    v_add_u32 v22, s50, v5
    v_mov_b32 v24, 0
    v_mov_b32 v25, 0
    s_waitcnt vmcnt(0) lgkmcnt(0)
    v_lshlrev_b32 v21, 16, v21
    v_fmac_f32 v23, s51, v4""")
    for k in range(64):
        A(f"""v_readlane_b32 s52, v21, {k}
        v_lshlrev_b32 v26, 16, v{64+k}
        v_and_b32 v27, 0xffff0000, v{64+k}
        v_fmac_f32 v24, s52, v26
        v_fmac_f32 v25, s52, v27""")
    A("""v_add_f32 v23, v23, v24
    v_mul_f32 v23, s53, v23
    v_exp_f32 v23, v23
    v_mul_f32 v25, s54, v25
    v_add_f32 v23, 1.0, v23
    v_rcp_f32 v23, v23
    s_nop 0
    v_mul_f32 v25, v25, v23
    ds_add_f32 v22, v25
    ds_add_f32 v22, v23 offset:256
    s_branch L_s_edge""")
    A.label('L_s_next')
    A(f"""s_add_u32 s44, s44, 64
    s_cmp_lt_u32 s44, s45
    s_cbranch_scc1 L_s_scan
    s_branch L_epi""")

hdr = open('standalone__edge_featured_mpnn_gatedgcn__graph.s.ref').read().split('; Override launch')[0]
kernel()
out = hdr + f"""; @launch grid=(256,1,1) block=(1024,1,1) lds={LDS}
.amdgcn_target "amdgcn-amd-amdhsa--gfx950"
.text
.globl {KN}
""" + A.text() + f""".section .rodata,"a"
.p2align 6
.amdhsa_kernel {KN}
  .amdhsa_next_free_vgpr 128
  .amdhsa_next_free_sgpr 100
  .amdhsa_accum_offset 128
  .amdhsa_group_segment_fixed_size 0
  .amdhsa_kernarg_size 96
  .amdhsa_user_sgpr_count 2
  .amdhsa_user_sgpr_kernarg_segment_ptr 1
  .amdhsa_system_sgpr_workgroup_id_x 1
  .amdhsa_float_denorm_mode_32 3
.end_amdhsa_kernel
"""
open(sys.argv[1],'w').write(out)
```

```python
import sys, struct
N=12500; E=800000; NB=49; CH=3128
WS_DAT=0; DST=12544; WS_ENT=4<<20; WS_TAB=8<<20; WS_FLG=12<<20; WS_STAMP=16<<20
WS_SIZE=268435456
KN="standalone__edge_featured_mpnn_gatedgcn__graph_kernel"
def f2u(x): return struct.unpack('<I', struct.pack('<f', x))[0]
L2E=1.4426950408889634
KSH=11.0; HS=64.0
class Asm:
    def __init__(s): s.L=[]
    def __call__(s, x):
        for ln in x.strip('\n').split('\n'): s.L.append('    '+ln.strip())
    def label(s, n): s.L.append(n+':')
    def raw(s, x): s.L.append(x)
    def text(s): return '\n'.join(s.L)+'\n'
OPT = dict(stamps=0, fp=16, pfb=6, pol='sc1', rp=8, d0=0, pfc=0, r2=5, r1=2, park=1, gsc='', slp=4, nogather=0, tmo=20000, cpf=1, unr=1, x='')
for a in sys.argv[2:]:
    k,v=a.split('=')
    assert k in OPT, k
    OPT[k] = int(v) if v.lstrip('-').isdigit() else v.replace('_',' ')
A=Asm()
SB=66
def stamp_init():
    if OPT['stamps']:
        for i in range(16): A(f's_mov_b64 s[{SB+2*i}:{SB+2*i+1}], 0')
def stamp(i, cyc=None):
    if OPT['stamps']:
        A(f's_memrealtime s[{SB+2*i}:{SB+2*i+1}]')
        if cyc is not None: A(f's_memtime s[{SB+2*cyc}:{SB+2*cyc+1}]')
def stamp_flush():
    if not OPT['stamps']: return
    A(f'''s_waitcnt lgkmcnt(0)
    s_mov_b64 exec, 1
    s_lshl_b32 s98, s2, 4
    s_add_u32 s98, s98, s3
    s_lshl_b32 s98, s98, 7
    s_add_u32 s98, s98, {WS_STAMP + 256*16*128}
    v_mov_b32 v1, s98''')
    for i in range(16):
        A(f'''v_mov_b32 v2, s{SB+2*i}
        v_mov_b32 v3, s{SB+2*i+1}
        global_store_dwordx2 v1, v[2:3], s[26:27] offset:{8*i}
        s_nop 1''')
def W(n): return 0 if OPT['stamps'] else n

CNT1=0; CNT2=1024; FLAGP=1536; FLAGC=1540; TCNT=1544; SCNT=1548; ZERO=1552; DCNT=1568; FLAGT=1572; NONCE=1576; ACNT=1584; ECNT=1588
FL=1792
XS=2688; XST=136
T1=11520; T2=T1+32768
EA=T2+256
UU=T2+256+64*512
MID=T2+65536
LISTS=MID+50*512
LS=528
LDS=LISTS+50*LS+64
WROW=160; WMAT=64*WROW
WBV=T1; WAU=WBV+2*WMAT; BASE=WAU+2*WMAT; SLOT=BASE+1024
VB0=EA+512
FIN=T1; RAWA=T1
assert XS+64*XST<=T1 and SLOT+8192<=65535 and LDS<=163840 and MID+256-VB0<=65535-16
assert SLOT%16==0 and LISTS%16==0 and WAU%16==0
sROW='s60'; sBK='s61'
vWC=4; vEA=8; vDEN=12; vNUM=16; vT=20; vM=28; vSD=32; vSN=36; vR=40; vX=44; vTT=48; vD=64
vA=80; vLB=81; vB=82; vG=84
vZ=112; vFT=113; vNEW=94; vFA=115; vTAG=92; vLANE=116; vCA=117; vLL=118; vFOUR=119; vMAG=126
ACC0=96

PRIO=[1]
def secF():
    if 'f' in OPT['x']: return
    if OPT['park']:
        A('s_setprio 0')
        for i in range(4): A(f'v_fmac_f32 v{vDEN+i}, v{vSD+i}, v{vM+i}')
        for i in range(4): A(f'v_fmac_f32 v{vNUM+i}, v{vSN+i}, v{vM+i}')
        A(f's_setprio {PRIO[0]}')
    else:
        for i in range(2): A(f'v_pk_fma_f32 v[{vDEN+2*i}:{vDEN+2*i+1}], v[{vSD+2*i}:{vSD+2*i+1}], v[{vM+2*i}:{vM+2*i+1}], v[{vDEN+2*i}:{vDEN+2*i+1}]')
        for i in range(2): A(f'v_pk_fma_f32 v[{vNUM+2*i}:{vNUM+2*i+1}], v[{vSN+2*i}:{vSN+2*i+1}], v[{vM+2*i}:{vM+2*i+1}], v[{vNUM+2*i}:{vNUM+2*i+1}]')
def secPE():
    if 'p' in OPT['x']: return
    for i in range(4): A(f'v_pk_mul_f32 v[{vT+2*i}:{vT+2*i+1}], v[{vTT+2*i}:{vTT+2*i+1}], v[{vTT+8+2*i}:{vTT+9+2*i}]')
def readT(r0):
    if 't' in OPT['x']: return
    if 'a' in OPT['x']:
        A(f'''v_and_or_b32 v{vX}, v{r0}, s40, v1
        v_and_or_b32 v{vX+1}, v{r0+1}, s40, v1
        v_perm_b32 v{vX+2}, v{r0}, v1, s41
        v_perm_b32 v{vX+3}, v{r0+1}, v1, s41''')
        return
    A(f'''v_and_or_b32 v{vX}, v{r0}, s40, v1
    v_and_or_b32 v{vX+1}, v{r0+1}, s40, v1
    v_perm_b32 v{vX+2}, v{r0}, v1, s41
    v_perm_b32 v{vX+3}, v{r0+1}, v1, s41
    ds_read_b128 v[{vTT}:{vTT+3}], v{vX} offset:{T1}
    ds_read_b128 v[{vTT+4}:{vTT+7}], v{vX+1} offset:{T1}
    ds_read_b128 v[{vTT+8}:{vTT+11}], v{vX+2} offset:{T2}
    ds_read_b128 v[{vTT+12}:{vTT+15}], v{vX+3} offset:{T2}''')
def secRest(d0):
    if 'q' in OPT['x']: return
    for i in range(4):
        A(f'v_pk_fma_f32 v[{vT+2*i}:{vT+2*i+1}], v[{vT+2*i}:{vT+2*i+1}], v[{d0+2*i}:{d0+2*i+1}], v[{vEA+2*(i%2)}:{vEA+2*(i%2)+1}]')
    for i in range(2):
        A(f'v_pk_mul_f32 v[{vM+2*i}:{vM+2*i+1}], v[{vT+2*i}:{vT+2*i+1}], v[{vT+4+2*i}:{vT+5+2*i}]')
    if 'm' in OPT['x']: return
    for i in range(4): A(f'v_fma_mix_f32 v{vSN+i}, v{vT+4+i}, v{d0+i}, 0 op_sel_hi:[0,1,0]')
    for i in range(4): A(f'v_fma_mix_f32 v{vSN+i}, v{vT+i}, v{d0+4+i}, v{vSN+i} op_sel_hi:[0,1,0]')
def secTail():
    if 'r' in OPT['x']: return
    for i in range(4): A(f'v_rcp_f32 v{vM+i}, v{vM+i}')
    for i in range(2):
        A(f'v_pk_add_f32 v[{vSD+2*i}:{vSD+2*i+1}], v[{vT+2*i}:{vT+2*i+1}], v[{vT+4+2*i}:{vT+5+2*i}]')
def gpair(h):
    A(f'''v_perm_b32 v{vG}, v{vR+2*h}, v1, s44
    v_perm_b32 v{vG+1}, v{vR+2*h+1}, v1, s44''')
    if OPT['nogather']: return
    for i in range(2):
        A(f'buffer_load_dwordx4 v[{vD+8*h+4*i}:{vD+8*h+4*i+3}], v{vG+i}, s[32:35], 0 offen {OPT["gsc"]}')

def insert(recs, addr, pos, msk, r0, vrem):
    for i,r in enumerate(recs):
        A(f'''v_cmp_lt_i32 s[{msk+2*i}:{msk+2*i+1}], {r0+i}, v{vrem}
        v_alignbit_b32 v{addr+i}, v{r}, v{r}, 25
        v_and_b32 v{addr+i}, 0x1bc, v{addr+i}
        s_mov_b64 exec, s[{msk+2*i}:{msk+2*i+1}]
        ds_add_rtn_u32 v{pos+i}, v{addr+i}, v{vFOUR} offset:{CNT2}
        s_mov_b64 exec, -1''')
    for i,r in enumerate(recs): A(f'v_and_b32 v{addr+i}, 0x87ff0000, v{r}')
    for i,r in enumerate(recs): A(f'v_fma_f32 v{addr+i}, v{addr+i}, s64, v{vMAG}')
    for i,r in enumerate(recs): A(f'v_and_b32 v{addr+i}, 0x7ffe, v{addr+i}')
    for i,r in enumerate(recs): A(f'v_lshrrev_b32_sdwa v{addr+i}, s65, v{r} dst_sel:WORD_1 dst_unused:UNUSED_PRESERVE src0_sel:DWORD src1_sel:WORD_0')
def insert2(n, data, pos, msk):
    for i in range(n):
        A(f'''s_mov_b64 exec, s[{msk+2*i}:{msk+2*i+1}]
        ds_write_b32 v{pos+i}, v{data+i}''')
    A('s_mov_b64 exec, -1')

def part_a(D, B, Aa, P):
    for i in range(4):
        A(f'''v_mul_u32_u24 v{B+i}, 21400, v{D+i}
        v_lshrrev_b32 v{B+i}, 20, v{B+i}
        v_lshlrev_b32 v{Aa+i}, 2, v{B+i}
        ds_add_rtn_u32 v{P+i}, v{Aa+i}, v{vFOUR} offset:{CNT1}''')
    for i in range(4):
        A(f'v_mad_i32_i24 v{D+i}, v{B+i}, s44, v{D+i}')
def part_b(D, S, Ee, T, P, Q):
    A(f'''v_lshlrev_b32 v{T}, 16, v{Ee}
    v_lshlrev_b32 v{T+2}, 16, v{Ee+1}
    v_mul_f32 v{T}, s45, v{T}
    v_mul_f32 v{T+1}, s45, v{Ee}
    v_mul_f32 v{T+2}, s45, v{T+2}
    v_mul_f32 v{T+3}, s45, v{Ee+1}''')
    for i in range(4):
        A(f'''v_add_lshl_u32 v{S+i}, v{S+i}, 1, 2
        v_bfi_b32 v{S+i}, 3, v{D+i}, v{S+i}
        v_lshlrev_b32 v{D+i}, 25, v{D+i}
        v_bfi_b32 v{D+i}, s46, v{D+i}, v{T+i}
        v_bfi_b32 v{S+i}, s47, v{D+i}, v{S+i}''')
    A(f'''v_or3_b32 v{T}, v{T}, v{T+1}, v{T+2}
    v_or_b32 v{T}, v{T}, v{T+3}
    v_and_b32 v{T}, s46, v{T}
    v_cmp_ne_u32 vcc, 0, v{T}
    s_or_b64 s[52:53], s[52:53], vcc
    s_waitcnt lgkmcnt(0)''')
    for i in range(4): A(f'v_add_u32 v{P+i}, v{P+i}, v{Q+i}')
    for i in range(4): A(f'ds_write_b32 v{P+i}, v{S+i} offset:{SLOT}')

def gemm_run(ACC1):
    A("""ds_read2_b64 v[84:87], v13 offset0:0 offset1:4
    ds_read2_b64 v[88:91], v13 offset0:8 offset1:12""")
    def rd(m,t):
        for mm in range(4):
            r=20+32*m+8*t+2*mm
            A(f'ds_read_b64_tr_b16 v[{r}:{r+1}], v12 offset:{m*WMAT+mm*16*WROW+t*32}')
    seq=[(m,t) for m in range(2) for t in range(4)]
    rd(*seq[0]); rd(*seq[1]); rd(*seq[2])
    for n,(m,t) in enumerate(seq):
        rem=min(len(seq)-1-n,2)
        A(f's_waitcnt lgkmcnt({0 if OPT["stamps"] and n==0 else 4*rem})')
        acc=(ACC0 if m==0 else ACC1)+4*t; f=20+32*m+8*t
        A(f"""v_mfma_f32_16x16x32_bf16 v[{acc}:{acc+3}], v[84:87], v[{f}:{f+3}], 0
        v_mfma_f32_16x16x32_bf16 v[{acc}:{acc+3}], v[88:91], v[{f+4}:{f+7}], v[{acc}:{acc+3}]""")
        if n+3<len(seq): rd(*seq[n+3])
def stageW(R, addr):
    A(f"""v_perm_b32 v40, v{R+2}, v{R}, s48
    v_perm_b32 v41, v{R+2}, v{R}, s49
    v_perm_b32 v42, v{R+3}, v{R+1}, s48
    v_perm_b32 v43, v{R+3}, v{R+1}, s49
    ds_write2_b32 v{addr}, v40, v41 offset0:0 offset1:8
    ds_write2_b32 v{addr}, v42, v43 offset0:16 offset1:24""")
def flagaddr(dst, src, tmp):
    FP=OPT['fp']; lgfp={1:0,2:1,4:2,8:3,16:4,32:5}[FP]
    A(f"""v_lshrrev_b32 v{tmp}, {lgfp}, v{src}
    v_and_b32 v{dst}, {FP-1}, v{src}
    v_lshlrev_b32 v{dst}, 3, v{dst}
    v_lshl_add_u32 v{dst}, v{tmp}, 7, v{dst}
    v_add_u32 v{dst}, {WS_FLG}, v{dst}""")
def setslow(addr):
    A(f"""v_mov_b32 v16, {addr}
    v_mov_b32 v17, 16
    ds_or_b32 v16, v17""")

def spin(label, addr, tmp, n, slp=0):
    A.label(label)
    if slp: A(f's_sleep {slp}')
    A(f"""ds_read_b32 v{tmp}, v{addr}
    s_waitcnt lgkmcnt(0)
    v_cmp_gt_u32 vcc, {n}, v{tmp}
    s_cbranch_vccnz {label}""")

def scan(v, first=None):
    src = first if first is not None else v
    A(f"""s_nop 1
    v_add_u32_dpp v{v}, v{src}, v{src} row_shr:1 row_mask:0xf bank_mask:0xf bound_ctrl:0
    s_nop 1
    v_add_u32_dpp v{v}, v{v}, v{v} row_shr:2 row_mask:0xf bank_mask:0xf bound_ctrl:0
    s_nop 1
    v_add_u32_dpp v{v}, v{v}, v{v} row_shr:4 row_mask:0xf bank_mask:0xf bound_ctrl:0
    s_nop 1
    v_add_u32_dpp v{v}, v{v}, v{v} row_shr:8 row_mask:0xf bank_mask:0xf bound_ctrl:0
    s_nop 1
    v_add_u32_dpp v{v}, v{v}, v{v} row_bcast:15 row_mask:0xa bank_mask:0xf
    s_nop 1
    v_add_u32_dpp v{v}, v{v}, v{v} row_bcast:31 row_mask:0xc bank_mask:0xf""")
def ebar(label, n):
    A(f"""s_mov_b64 exec, 1
    s_waitcnt lgkmcnt(0)
    ds_add_u32 v19, v{vFOUR}""")
    spin(label,19,15,n)
    A('s_mov_b64 exec, -1')

def kernel():
    ACC1=20
    RPM=(1<<OPT['rp'])-1
    A.raw('.p2align 8'); A.raw(f'.type {KN},@function'); A.label(KN)
    A(f"""s_cmp_ge_u32 s2, 256
    s_cbranch_scc1 L_end
    s_load_dwordx16 s[4:19], s[0:1], 0
    s_load_dwordx8 s[20:27], s[0:1], 64
    v_lshrrev_b32 v1, 6, v0""")
    stamp_init(); stamp(1)
    A(f"""v_lshlrev_b32 v3, 4, v0
    v_readfirstlane_b32 s3, v1
    v_and_b32 v{vLANE}, 63, v0
    v_and_b32 v1, 15, v0
    s_and_b32 s40, s2, 7
    s_lshl_b32 s40, s40, 5
    s_lshr_b32 s59, s2, 3
    s_add_u32 {sBK}, s59, s40
    s_mul_i32 {sROW}, {sBK}, {NB}
    s_cmp_ge_u32 s3, 8
    s_cbranch_scc1 L_noedge
    s_mul_i32 s40, s2, {CH*4}
    v_add_u32 v12, s40, v3
    v_add_u32 v13, 8192, v12
    v_lshrrev_b32 v14, 1, v12
    v_lshrrev_b32 v15, 1, v13
    v_lshlrev_b32 v11, 3, v1
    s_mul_i32 s41, s2, {CH//4}
    s_sub_u32 s41, {E//4-512}, s41
    s_min_u32 s41, s41, {CH//4-512}
    v_cmp_gt_u32 s[50:51], s41, v0
    s_or_b32 s40, s2, s3
    s_cbranch_scc1 L_nn
    s_memrealtime s[42:43]
    v_mov_b32 v18, 0
    s_waitcnt lgkmcnt(0)
    s_lshl_b64 s[42:43], s[42:43], 25
    s_or_b32 s42, s42, 1
    v_mov_b32 v16, s42
    v_mov_b32 v17, s43
    s_mov_b64 exec, 1
    global_store_dwordx2 v18, v[16:17], s[24:25] sc1
    s_mov_b64 exec, -1""")
    A.label('L_nn')
    A(f"""s_waitcnt lgkmcnt(0)
    global_load_dwordx4 v[20:23], v12, s[10:11]
    s_mov_b64 exec, s[50:51]
    s_cbranch_execz L_e1
    global_load_dwordx4 v[40:43], v13, s[10:11]""")
    A.label('L_e1')
    A(f"""s_mov_b64 exec, -1
    s_barrier
    global_load_dwordx4 v[24:27], v12, s[8:9]
    global_load_dwordx2 v[28:29], v14, s[6:7]
    s_mov_b64 exec, s[50:51]
    s_cbranch_execz L_e2
    global_load_dwordx4 v[44:47], v13, s[8:9]
    global_load_dwordx2 v[48:49], v15, s[6:7]""")
    A.label('L_e2')
    A(f"""s_mov_b64 exec, -1
    global_load_dwordx2 v[4:5], v11, s[16:17]
    s_branch L_common""")
    A.label('L_noedge')
    A(f"""v_mov_b32 v56, 0
    v_mov_b32 v57, 0
    v_mov_b32 v58, 0
    v_mov_b32 v59, 0
    s_cmp_lg_u32 s3, 9
    s_cbranch_scc1 L_n1
    v_lshlrev_b32 v16, 4, v{vLANE}
    v_lshlrev_b32 v17, 2, v{vLANE}
    ds_write_b128 v16, v[56:59] offset:{CNT1}
    ds_write_b32 v17, v56 offset:{FLAGP}""")
    A.label('L_n1')
    A(f"""s_cmp_lg_u32 s3, 8
    s_cbranch_scc1 L_n2
    s_getpc_b64 s[42:43]""")
    A.label('L_pc')
    A(f"""s_sub_u32 s42, s42, L_pc-{KN}
    s_subb_u32 s43, s43, 0
    s_mul_i32 s41, s59, 384
    v_lshlrev_b32 v10, 7, v{vLANE}
    v_add_u32 v11, s41, v10
    s_lshl_b32 s41, s59, 8
    v_add_u32 v10, s41, v10
    s_mov_b64 exec, 7
    global_load_dword v60, v11, s[42:43]
    s_mov_b64 exec, 3
    s_waitcnt lgkmcnt(0)
    global_load_dword v61, v10, s[14:15]
    global_load_dword v62, v10, s[20:21]
    global_load_dword v63, v10, s[12:13]
    global_load_dword v64, v10, s[18:19]
    s_mov_b64 exec, -1""")
    A.label('L_n2')
    A(f"""s_lshl_b32 s40, {sROW}, 7
    s_sub_u32 s40, s40, 8192
    v_add_u32 v14, s40, v3
    v_add_u32 v15, 4096, v14
    v_min_u32 v14, {N*128-16}, v14
    v_min_u32 v15, {N*128-16}, v15
    v_add_u32 v16, {MID-8192}, v3
    s_waitcnt lgkmcnt(0)
    s_barrier
    s_cmp_ge_u32 s3, 12
    s_cbranch_scc1 L_n3
    global_load_dwordx4 v[88:91], v14, s[4:5]
    global_load_dwordx4 v[92:95], v15, s[4:5]""")
    A.label('L_n3')
    for r in range(7): A(f'ds_write_b128 v16, v[56:59] offset:{8192*r}')
    A.label('L_common')
    stamp(2)
    A(f"""v_mov_b32 v{vFOUR}, 4
    s_lshl_b32 s40, s3, 4
    v_add_u32 v16, s40, v1""")
    flagaddr(vFT,16,17)
    A(f"""s_and_b32 s41, s2, {OPT['rp']-1}
    s_lshl_b32 s41, s41, 16
    v_add_u32 v{vFT}, s41, v{vFT}
    v_lshrrev_b32 v17, 2, v{vLANE}
    v_add_u32 v17, s40, v17
    s_lshl_b32 s41, {sBK}, 3
    s_add_u32 s41, s41, {WS_ENT}
    v_lshlrev_b32 v{vFA}, 11, v17
    v_add_u32 v{vFA}, s41, v{vFA}
    v_mul_u32_u24 v114, {DST}, v17
    v_lshlrev_b32 v1, 4, v1
    v_and_b32 v17, 3, v{vLANE}
    v_lshl_add_u32 v114, v17, 4, v114
    v_and_b32 v{vCA}, 60, v{vLANE}
    v_lshl_add_u32 v{vCA}, v17, 7, v{vCA}
    v_mul_u32_u24 v{vLL}, {LS}, v{vLANE}
    v_add_u32 v{vLL}, {LISTS}, v{vLL}
    v_mov_b32 v{vZ}, {ZERO}
    v_mov_b32 v{vMAG}, {f2u(1.5*2**23):#x}
    s_mov_b32 s64, {f2u(2.0**125):#x}
    s_mov_b32 s65, 2
    s_mov_b64 s[62:63], 0
    s_mov_b32 s30, {WS_SIZE}
    s_mov_b32 s31, 0x20000
    s_mov_b32 s34, {12560*256}
    s_mov_b32 s35, 0x20000
    s_mov_b32 s38, {N*128}
    s_mov_b32 s39, 0x20000
    s_mov_b32 s28, s26
    s_mov_b32 s29, s27
    s_add_u32 s32, s26, {WS_TAB}
    s_addc_u32 s33, s27, 0
    s_mov_b32 s36, s22
    s_mov_b32 s37, s23
    s_cmp_ge_u32 s3, 8
    s_cbranch_scc1 L_gw
    s_mov_b32 s44, -49
    s_mov_b32 s45, {(127-113)<<23}
    s_mov_b32 s46, 0x78000000
    s_mov_b32 s47, 0xffff0000
    s_mov_b64 s[52:53], 0
    v_mov_b32 v19, {ECNT}
    v_lshlrev_b32 v18, 4, v{vLANE}
    v_lshlrev_b32 v14, 3, v{vLANE}
    s_cmp_eq_u64 s[50:51], 0
    s_cbranch_scc1 L_a1
    s_waitcnt vmcnt(5)
    s_mov_b64 exec, s[50:51]""")
    part_a(40,50,54,68)
    A("""s_mov_b64 exec, -1
    s_branch L_a2""")
    A.label('L_a1')
    A('s_waitcnt vmcnt(3)')
    A.label('L_a2')
    part_a(20,30,34,64)
    stamp(3)
    ebar('L_eb1',32)
    A(f"""ds_read_b128 v[80:83], v18 offset:{CNT1}
    ds_read_b64 v[96:97], v14 offset:{CNT1}
    ds_read_b64 v[98:99], v14 offset:{CNT1+512}
    s_waitcnt lgkmcnt({W(2)})
    v_add_u32 v81, v80, v81
    v_add_u32 v82, v81, v82
    v_add_u32 v83, v82, v83""")
    scan(88,83)
    A(f"""v_sub_u32 v84, v88, v83
    v_add_u32 v85, v84, v80
    v_add_u32 v86, v84, v81
    v_add_u32 v87, v84, v82
    ds_write_b128 v18, v[84:87] offset:{BASE}""")
    for i in range(4): A(f'ds_read_b32 v{72+i}, v{34+i} offset:{BASE}')
    A(f"""ds_read_b64 v[100:101], v14 offset:{BASE}
    ds_read_b64 v[102:103], v14 offset:{BASE+512}
    s_cmp_eq_u64 s[50:51], 0
    s_cbranch_scc1 L_b1
    s_mov_b64 exec, s[50:51]""")
    for i in range(4): A(f'ds_read_b32 v{76+i}, v{54+i} offset:{BASE}')
    A("""s_mov_b64 exec, -1
    s_waitcnt vmcnt(3)""")
    part_b(20,24,28,30,64,72)
    A("""s_mov_b64 exec, s[50:51]
    s_waitcnt vmcnt(1)""")
    part_b(40,44,48,50,68,76)
    A("""s_mov_b64 exec, -1
    s_branch L_b2""")
    A.label('L_b1')
    A('s_waitcnt vmcnt(1)')
    part_b(20,24,28,30,64,72)
    A.label('L_b2')
    A(f"""s_cmp_lg_u64 s[52:53], 0
    s_cbranch_scc1 L_ebad""")
    A.label('L_ebad_back')
    stamp(4)
    A(f"""s_mul_i32 s54, s2, {DST}
    s_add_u32 s55, s54, 8192""")
    ebar('L_eb2',64)
    stamp(5)
    A(f"""ds_read_b128 v[20:23], v3 offset:{SLOT}
    ds_read_b128 v[24:27], v3 offset:{SLOT+8192}
    s_waitcnt vmcnt(0) lgkmcnt({W(1)})
    buffer_store_dwordx4 v[20:23], v3, s[28:31], s54 offen sc1
    s_mov_b64 exec, s[50:51]
    s_cbranch_execz L_c1
    s_waitcnt lgkmcnt(0)
    buffer_store_dwordx4 v[24:27], v3, s[28:31], s55 offen sc1""")
    A.label('L_c1')
    A(f"""s_mov_b64 exec, -1
    s_mov_b32 s44, {f2u(-L2E):#x}
    v_and_b32 v7, 0xffff0000, v5
    v_lshlrev_b32 v6, 16, v5
    v_and_b32 v5, 0xffff0000, v4
    v_lshlrev_b32 v4, 16, v4
    v_mul_f32 v4, s44, v4
    v_mul_f32 v5, s44, v5
    v_mul_f32 v6, s44, v6
    v_mul_f32 v7, s44, v7""")
    for i in range(4):
        A(f"""v_lshrrev_b32 v{100+i}, 2, v{100+i}
        v_lshl_or_b32 v{104+2*i}, v{96+i}, 10, v{100+i}""")
    A(f"""v_lshrrev_b32 v8, 4, v0
    v_cvt_f32_u32 v9, v8
    v_mul_f32 v64, {f2u(1/16.0):#x}, v9
    v_add_f32 v65, 2.0, v64
    v_add_f32 v66, -4.0, v64
    v_add_f32 v67, -2.0, v64
    v_mul_f32 v68, {f2u(1/2048.0):#x}, v9
    v_add_f32 v69, {f2u(32/2048.0):#x}, v68
    v_add_f32 v70, {f2u(64/2048.0):#x}, v68
    v_add_f32 v71, {f2u(96/2048.0):#x}, v68
    v_mov_b32 v17, {f2u(-KSH):#x}
    v_lshl_add_u32 v8, v8, 9, v1
    v_add_u32 v8, {T2}, v8""")
    for k in range(4):
        for i in range(4): A(f'v_fma_f32 v{32+4*k+i}, v{4+i}, v{64+k}, v17')
    for k in range(4):
        for i in range(4): A(f'v_mul_f32 v{48+4*k+i}, v{4+i}, v{68+k}')
    for i in range(32): A(f'v_exp_f32 v{32+i}, v{32+i}')
    A(f"""v_max3_f32 v16, |v4|, |v5|, |v6|
    v_max_f32_e64 v16, v16, |v7|
    v_cmp_nge_f32 vcc, 4.0, v16
    s_cbranch_vccnz L_wbad""")
    A.label('L_wbad_back')
    A(f"""v_mov_b32 v16, {DCNT}
    v_mov_b32 v19, {ACNT}
    s_lshl_b32 s54, s2, 11
    s_add_u32 s54, s54, {WS_ENT}
    s_mov_b64 exec, 1
    s_waitcnt vmcnt(0) lgkmcnt(0)
    ds_add_rtn_u32 v17, v16, v{vFOUR}
    s_waitcnt lgkmcnt(0)
    v_cmp_eq_u32 vcc, 28, v17
    s_cbranch_vccz L_nosig""")
    spin('L_sg',19,15,16)
    A(f"""s_mov_b64 exec, -1
    v_mov_b32 v16, {FLAGP}
    ds_read_b32 v17, v16
    ds_read_b64 v[20:21], v16 offset:{NONCE-FLAGP}
    s_waitcnt lgkmcnt(0)
    v_cmp_gt_u32 vcc, 32, v17
    v_lshl_or_b32 v20, v17, 20, v20""")
    for i in range(4):
        A(f"""v_or_b32 v{104+2*i}, v{104+2*i}, v20
        v_mov_b32 v{105+2*i}, v21""")
    A(f"""s_cbranch_vccz L_nosig
    buffer_store_dwordx4 v[104:107], v18, s[28:31], s54 offen sc1
    buffer_store_dwordx4 v[108:111], v18, s[28:31], s54 offen offset:1024 sc1""")
    A.label('L_nosig')
    A('s_mov_b64 exec, -1')
    stamp(0)
    A('s_barrier')
    stamp(10)
    for k in range(4): A(f'ds_write_b128 v3, v[{32+4*k}:{35+4*k}] offset:{T1+8192*k}')
    for k in range(4): A(f'ds_write_b128 v8, v[{48+4*k}:{51+4*k}] offset:{16384*k}')
    A('s_branch L_prep')
    A.label('L_gw')
    A(f"""s_cmp_lg_u32 s3, 9
    s_cbranch_scc1 L_g2
    ds_write_b32 v{vCA}, v{vLL} offset:{CNT2}
    v_mov_b32 v57, -1
    v_lshlrev_b32 v18, 3, v{vLANE}
    ds_write_b64 v18, v[56:57] offset:{FL}""")
    A.label('L_g2')
    A(f"""v_and_b32 v2, 255, v0
    v_lshlrev_b32 v3, 4, v2
    v_lshrrev_b32 v12, 3, v2
    v_and_b32 v13, 7, v2
    v_mov_b32 v46, 0
    s_cmp_ge_u32 s3, 12
    s_cselect_b64 s[40:41], s[12:13], s[14:15]
    s_cselect_b64 s[42:43], s[18:19], s[20:21]
    s_cselect_b32 s55, {WAU-WBV}, 0
    s_cselect_b32 s57, {ACNT-SCNT}, 0
    s_add_u32 s55, s55, {WBV}
    s_add_u32 s57, s57, {SCNT}
    v_add_u32 v15, 4096, v3
    global_load_dwordx4 v[72:75], v3, s[40:41]
    global_load_dwordx4 v[76:79], v15, s[40:41]
    global_load_dwordx4 v[80:83], v3, s[42:43]
    global_load_dwordx4 v[84:87], v15, s[42:43]
    v_mul_u32_u24 v16, {WROW}, v12
    v_lshl_add_u32 v16, v13, 2, v16
    v_add_u32 v16, s55, v16
    v_mul_u32_u24 v17, {XST}, v12
    v_lshl_add_u32 v17, v13, 4, v17
    v_add_u32 v17, {XS}, v17
    v_add_u32 v18, {32*XST}, v17
    v_mov_b32 v50, 1
    s_cmp_lg_u32 s3, 15
    s_cbranch_scc1 L_g4
    global_load_dwordx2 v[50:51], v46, s[24:25] sc1""")
    A.label('L_g4')
    A('v_mov_b32 v19, s2')
    flagaddr(127,19,15)
    A(f"""v_lshl_add_u32 v127, v{vLANE}, 16, v127
    s_mov_b32 s48, 0x05040100
    s_mov_b32 s49, 0x07060302
    s_and_b32 s54, s3, 3
    v_bfe_u32 v12, v0, 2, 4
    v_and_b32 v13, 3, v0
    v_mul_u32_u24 v12, {WROW}, v12
    v_lshl_add_u32 v12, v13, 3, v12
    v_add_u32 v12, s55, v12
    v_and_b32 v13, 15, v0
    v_bfe_u32 v14, v0, 4, 2
    v_mul_u32_u24 v13, {XST}, v13
    v_lshl_add_u32 v13, v14, 3, v13
    s_mul_i32 s56, s54, {16*XST}
    s_add_u32 s56, s56, {XS}
    v_add_u32 v13, s56, v13
    s_lshl_b32 s56, s54, 2
    v_add_u32 v14, s56, v14
    v_mov_b32 v19, s57
    v_mov_b32 v47, {SCNT}
    s_mov_b32 s43, 0""")
    stamp(4)
    A(f"""s_cmp_ge_u32 s3, 12
    s_cbranch_scc1 L_g6
    s_waitcnt vmcnt(4)
    ds_write2_b64 v17, v[88:89], v[90:91] offset0:0 offset1:1
    ds_write2_b64 v18, v[92:93], v[94:95] offset0:0 offset1:1""")
    A.label('L_g6')
    for m in range(4):
        A(f's_waitcnt vmcnt({3-m})')
        stageW(72+4*m,16)
        if m<3: A(f'v_add_u32 v16, {32*WROW}, v16')
    stamp(5)
    A.label('L_gop')
    A(f"""s_waitcnt vmcnt(0)
    v_cmp_eq_u32 vcc, 0, v50
    s_cbranch_vccnz L_gowait""")
    A.label('L_goback')
    A(f"""s_mov_b64 exec, 1
    s_cmp_lg_u32 s3, 15
    s_cbranch_scc1 L_g5
    v_and_b32 v50, -2, v50
    ds_write_b64 v46, v[50:51] offset:{NONCE}""")
    A.label('L_g5')
    A(f"""s_waitcnt lgkmcnt(0)
    ds_add_u32 v19, v{vFOUR}""")
    spin('L_sb',19,15,16)
    A("""s_cmp_ge_u32 s3, 12
    s_cbranch_scc1 L_au
    s_mov_b64 exec, -1""")
    stamp(3)
    A('s_setprio 2')
    gemm_run(ACC1)
    A(f"""s_mov_b32 s44, {f2u(-L2E):#x}
    s_mov_b32 s45, {f2u(HS):#x}
    s_mov_b32 s46, 0x07060100
    s_lshl_b32 s47, {sROW}, 8
    s_add_u32 s47, s47, {WS_TAB+256}
    v_lshl_add_u32 v14, v14, 10, v1""")
    for i in range(16): A(f'v_mul_f32 v{ACC0+i}, s44, v{ACC0+i}')
    A("""s_cmp_eq_u32 s54, 3
    s_cselect_b32 exec_lo, 0xffff, -1
    s_cselect_b32 exec_hi, 0, -1""")
    for r in range(4):
        for t in range(4): A(f'v_exp_f32 v{64+4*r+t}, v{ACC0+4*t+r}')
        for t in range(4): A(f'v_fma_mixlo_f16 v{36+t}, v{ACC1+4*t+r}, s45, 0')
        for t in range(4): A(f'v_add_u32 v{64+4*r+t}, 0x8000, v{64+4*r+t}')
        for t in range(4): A(f'v_sub_u32_sdwa v{64+4*r+t}, v{64+4*r+t}, v{36+t} clamp dst_sel:DWORD dst_unused:UNUSED_PAD src0_sel:DWORD src1_sel:WORD_0')
        for t in range(4): A(f'v_perm_b32 v{64+4*r+t}, v{64+4*r+t}, v{36+t}, s46')
        A(f'buffer_store_dwordx4 v[{64+4*r}:{67+4*r}], v14, s[28:31], s47 offen offset:{r*256} sc1')
        if r==0: A('s_cbranch_scc1 L_tdone')
    A.label('L_tdone')
    A(f"""s_mov_b64 exec, -1
    s_setprio 0
    s_or_b32 s56, s2, s54
    s_cmp_lg_u32 s56, 0
    s_cbranch_scc1 L_nodummy
    v_lshlrev_b32 v44, 2, v{vLANE}
    v_mov_b32 v45, {(127+81)<<23:#x}
    s_mov_b32 s56, {WS_TAB}
    buffer_store_dword v45, v44, s[28:31], s56 offen sc1""")
    A.label('L_nodummy')
    stamp(0)
    A('s_barrier')
    stamp(10)
    A(f"""v_max3_f32 v15, v{ACC0}, v{ACC0+1}, v{ACC0+2}
    v_max3_f32 v16, |v{ACC1}|, |v{ACC1+1}|, |v{ACC1+2}|""")
    for i in (3,5,7,9,11,13,14):
        A(f"""v_max3_f32 v15, v15, v{ACC0+i}, v{ACC0+i+1}
        v_max3_f32 v16, v16, |v{ACC1+i}|, |v{ACC1+i+1}|""")
    A(f"""v_cmp_lt_f32 vcc, {f2u(50.0):#x}, v15
    s_mov_b64 s[42:43], vcc
    v_cmp_lt_f32 vcc, {f2u(1000.0):#x}, v16
    s_or_b64 s[42:43], s[42:43], vcc
    s_cbranch_scc0 L_tok""")
    setslow(FLAGT)
    A.label('L_tok')
    A(f"""v_mov_b32 v8, {TCNT}
    s_mov_b64 exec, 1
    s_waitcnt vmcnt(0) lgkmcnt(0)
    ds_add_rtn_u32 v9, v8, v{vFOUR}
    s_mov_b64 exec, {RPM}
    ds_read_b32 v11, v8 offset:{FLAGT-TCNT}
    ds_read_b64 v[20:21], v8 offset:{NONCE-TCNT}
    s_waitcnt lgkmcnt(0)
    v_readfirstlane_b32 s42, v9
    v_cmp_gt_u32 vcc, 32, v11
    v_or_b32 v20, v20, v11
    s_cmp_eq_u32 s42, 12
    s_cselect_b64 exec, vcc, 0
    s_cbranch_execz L_nosigt
    global_store_dwordx2 v127, v[20:21], s[26:27] sc1""")
    A.label('L_nosigt')
    A("""s_mov_b64 exec, -1
    s_branch L_prep""")
    A.label('L_au')
    spin('L_sb2',47,15,16)
    A('s_mov_b64 exec, -1')
    stamp(3)
    gemm_run(ACC1)
    stamp(0)
    A('s_barrier')
    stamp(10)
    A(f"""s_mov_b32 s44, {f2u(L2E):#x}
    v_mov_b32 v15, {f2u(-KSH):#x}
    v_lshl_add_u32 v120, v14, 10, v1
    v_lshl_add_u32 v14, v14, 11, v1
    v_add_u32 v13, {UU}, v14""")
    for r in range(4):
        for t in range(4): A(f'v_fma_f32 v{64+4*r+t}, v{ACC0+4*t+r}, s44, v15')
    for i in range(16): A(f'v_exp_f32 v{64+i}, v{64+i}')
    for r in range(4):
        for t in range(4): A(f'v_mov_b32 v{40+4*r+t}, v{ACC1+4*t+r}')
    for r in range(4):
        A(f"""ds_write_b128 v14, v[{64+4*r}:{67+4*r}] offset:{EA+512*r}
        ds_write_b128 v13, v[{40+4*r}:{43+4*r}] offset:{512*r}""")
    A(f'v_max3_f32 v16, |v{ACC0}|, |v{ACC0+1}|, |v{ACC0+2}|')
    for i in (3,5,7,9,11,13,14): A(f'v_max3_f32 v16, v16, |v{ACC0+i}|, |v{ACC0+i+1}|')
    A(f"""v_cmp_nge_f32 vcc, {f2u(51.0/L2E):#x}, v16
    s_cbranch_vccz L_prep""")
    setslow(FLAGC)
    A.label('L_prep')
    A(f"""ds_read_b64 v[{vTAG}:{vTAG+1}], v{vZ} offset:{NONCE-ZERO}
    s_mov_b32 s43, 0
    s_mov_b32 s40, 0x1ffffff
    s_mov_b32 s41, 0
    v_and_b32 v9, 3, v0
    v_lshlrev_b32 v9, 2, v9""")
    for i in list(range(vDEN,vDEN+8))+list(range(vM,vM+12)): A(f'v_mov_b32 v{i}, 0')
    if OPT['d0']: A(f's_sleep {OPT["d0"]}')
    A.label('L_poll')
    A(f"""global_load_dwordx2 v[{vNEW}:{vNEW+1}], v{vFA}, s[26:27] {OPT['pol']}
    s_add_u32 s43, s43, 1
    s_waitcnt vmcnt(0) lgkmcnt(0)
    v_xor_b32 v{vNEW}, v{vNEW}, v{vTAG}
    v_xor_b32 v{vNEW+1}, v{vNEW+1}, v{vTAG+1}
    v_cmp_lt_u64 vcc, s[40:41], v[{vNEW}:{vNEW+1}]
    s_cbranch_vccz L_ready
    s_cmp_gt_u32 s43, {OPT['tmo']}
    s_cbranch_scc1 L_timeout
    s_sleep {OPT['slp']}
    s_branch L_poll""")
    A.label('L_ready')
    A(f"""v_and_b32 v10, 0xfff, v{vNEW}
    v_lshl_add_u32 v10, v10, 2, v114
    v_lshrrev_b32 v11, 12, v{vNEW}
    v_sub_u32 v11, v11, v9
    global_load_dwordx4 v[64:67], v10, s[26:27] sc1
    v_cmp_lt_i32 s[58:59], 16, v11
    v_cmp_lt_i32 vcc, 32, v11
    s_mov_b64 exec, s[58:59]
    s_cbranch_execz L_r1
    global_load_dwordx4 v[68:71], v10, s[26:27] offset:64 sc1""")
    A.label('L_r1')
    A('s_mov_b64 exec, -1')
    stamp(11)
    A('s_cbranch_vccnz L_rare')
    A.label('L_rare_back')
    A('s_waitcnt vmcnt(0)')
    stamp(12)
    A(f"global_load_dwordx2 v[{vNEW}:{vNEW+1}], v{vFT}, s[26:27] {OPT['pol']}")
    insert(list(range(64,68)),72,80,44,0,11)
    A("""s_cmp_eq_u64 s[58:59], 0
    s_cbranch_scc1 L_r2""")
    insert(list(range(68,72)),76,84,52,16,11)
    A('s_waitcnt lgkmcnt(0)')
    insert2(4,76,84,52)
    A.label('L_r2')
    A('s_waitcnt lgkmcnt(0)')
    insert2(4,72,80,44)
    A('s_mov_b32 s43, 0')
    A.label('L_tp')
    A(f"""s_waitcnt vmcnt(0)
    v_cmp_ne_u64 vcc, v[{vTAG}:{vTAG+1}], v[{vNEW}:{vNEW+1}]
    s_cbranch_vccnz L_tpw""")
    A.label('L_b4')
    A(f"""v_mov_b32 v10, {FLAGC}
    s_mov_b32 s50, -1
    s_mov_b32 s51, 0x1ffff
    s_mov_b32 s48, 0x00010001
    s_mov_b32 s49, 0x00010001
    s_mov_b32 s40, 0x7f00
    s_mov_b32 s41, 0x0c0c0400
    s_setprio 3
    s_waitcnt lgkmcnt(0)
    s_barrier""")
    stamp(13)
    if OPT['pfb']:
        A(f"""s_lshr_b32 s42, s2, 3
        s_lshl_b32 s42, s42, 4
        s_add_u32 s42, s42, s3
        s_mul_i32 s42, s42, {49*128}
        v_lshlrev_b32 v11, 7, v{vLANE}
        s_mov_b64 exec, {hex((1<<OPT['pfb'])-1)}
        buffer_load_dword v113, v11, s[32:35], s42 offen
        s_mov_b64 exec, -1""")
    A(f'''ds_read_b32 v121, v{vCA} offset:{CNT2}
    ds_read_b32 v122, v10
    s_waitcnt lgkmcnt(0)
    v_sub_u32 v121, v121, v{vLL}
    v_cmp_lt_u32 vcc, 512, v121
    s_or_b64 s[62:63], s[62:63], vcc
    v_cmp_ne_u32 vcc, 0, v122
    v_add_u32 v121, 12, v121
    v_lshrrev_b32 v121, 4, v121
    v_max_u32 v121, 1, v121
    s_or_b64 s[62:63], s[62:63], vcc
    s_cbranch_scc1 L_slow
    v_cndmask_b32 v121, 0, v121, s[50:51]
    s_nop 1
    v_add_u32_dpp v122, v121, v121 row_shr:1 row_mask:0xf bank_mask:0xf bound_ctrl:0
    s_nop 1
    v_add_u32_dpp v122, v122, v122 row_shr:2 row_mask:0xf bank_mask:0xf bound_ctrl:0
    s_nop 1
    v_add_u32_dpp v122, v122, v122 row_shr:4 row_mask:0xf bank_mask:0xf bound_ctrl:0
    s_nop 1
    v_add_u32_dpp v122, v122, v122 row_shr:8 row_mask:0xf bank_mask:0xf bound_ctrl:0
    s_nop 1
    v_add_u32_dpp v122, v122, v122 row_bcast:15 row_mask:0xa bank_mask:0xf
    s_nop 1
    v_add_u32_dpp v122, v122, v122 row_bcast:31 row_mask:0xc bank_mask:0xf
    s_nop 0
    v_readlane_b32 s42, v122, 63
    v_sub_u32 v121, v122, v121
    v_lshlrev_b32 v124, 4, v121
    v_sub_u32 v124, v{vLL}, v124
    s_cmp_gt_u32 s42, 1024
    s_cbranch_scc1 L_slow
    s_add_u32 s42, s42, 3
    s_lshr_b32 s43, s42, 6
    s_bfe_u32 s44, s42, 0x40002
    s_cmp_lt_u32 s3, s44
    s_addc_u32 s45, s43, 0
    s_mul_i32 s46, s3, s43
    s_min_u32 s47, s3, s44
    s_add_u32 s46, s46, s47
    s_lshl_b32 s46, s46, 2
    s_lshl_b32 s47, s45, 2
    v_subrev_u32 v123, s46, v121
    v_cmp_gt_u32 vcc, s47, v123
    v_lshlrev_b32 v123, 2, v123
    s_and_b64 vcc, vcc, s[50:51]
    v_cndmask_b32 v123, 0, v123, vcc
    ds_permute_b32 v125, v123, v{vFOUR}''')
    for g in range(4):
        if g: A('s_add_u32 s46, s46, s45')
        A(f"""v_cmp_ge_u32 vcc, s46, v122
        s_lshl_b32 s{56+g}, s46, 4
        s_and_b64 vcc, vcc, s[50:51]
        s_bcnt1_i32_b64 s{52+g}, vcc
        v_readlane_b32 s47, v124, s{52+g}
        s_add_u32 s{56+g}, s{56+g}, s47""")
    A(f"""v_mov_b32 v{vA}, s56
    v_mov_b32 v{vLB}, s52
    s_mov_b32 exec_lo, 0xffff0000
    v_mov_b32 v{vA}, s57
    v_mov_b32 v{vLB}, s53
    s_mov_b32 exec_lo, 0
    v_mov_b32 v{vA}, s58
    v_mov_b32 v{vLB}, s54
    s_mov_b32 exec_hi, 0xffff0000
    v_mov_b32 v{vA}, s59
    v_mov_b32 v{vLB}, s55
    s_mov_b64 exec, -1
    s_cmp_eq_u32 s45, 0
    s_cbranch_scc1 L_done
    ds_read_b128 v[{vR}:{vR+3}], v{vA}
    v_lshl_add_u32 v{vB}, v{vLB}, 9, v1
    s_mov_b32 s44, 0x0c070600
    ds_read_b128 v[{vEA}:{vEA+3}], v{vB} offset:{EA}
    v_mul_u32_u24 v{vLB}, {LS}, v{vLB}
    v_add_u32 v{vLB}, {LISTS}, v{vLB}
    v_add_u32 v{vB}, {VB0}, v{vB}
    s_waitcnt lgkmcnt({W(1)})""")
    gpair(0); gpair(1)
    readT(vR)
    A(f"""v_cmp_ne_u32 s[42:43], 0, v125
    s_mov_b32 s50, 0x00030003
    s_mov_b32 s51, 0x00030003
    s_lshr_b64 s[52:53], s[42:43], s45
    s_lshr_b64 s[54:55], s[52:53], s45
    s_lshr_b64 s[56:57], s[54:55], s45
    s_pack_ll_b32_b16 s42, s42, s52
    s_pack_ll_b32_b16 s43, s54, s56
    s_andn2_b64 s[42:43], s[42:43], s[48:49]""")
    stamp(6,14)
    A('s_setprio 1' if OPT['park'] else 's_setprio 0')
    def body(tag, last, sub, adv):
        secF()
        A(f"""s_and_b64 s[46:47], s[42:43], s[50:51]
        s_cbranch_scc1 L_evt_{tag}""")
        A.label(f'L_eback_{tag}')
        if not last: A('s_lshr_b64 s[42:43], s[42:43], 1')
        A('s_waitcnt lgkmcnt(0)')
        secPE()
        readT(vR+2)
        if not last: A(f'ds_read_b128 v[{vR}:{vR+3}], v{vA} offset:{16*sub}')
        A('s_waitcnt vmcnt(2)')
        secRest(vD)
        A('s_waitcnt lgkmcnt(0)')
        if not last: gpair(0)
        secTail()
        secF()
        secPE()
        if not last:
            readT(vR)
            if adv: A(f'v_add_u32 v{vA}, {adv}, v{vA}')
        A(f's_waitcnt vmcnt({0 if last else 2})')
        secRest(vD+8)
        if not last: gpair(1)
        secTail()
    U_=1
    phases=[(3,OPT['r2']),(2,OPT['r1']),(1,1)] if OPT['r2'] else [(1,1)]
    tags=[]
    for n,(pr,rem) in enumerate(phases):
        PRIO[0]=pr
        nxt = f'L_ph{n+1}' if n+1<len(phases) else 'L_last'
        A.label(f'L_ph{n}')
        A(f"""s_cmp_le_u32 s45, {rem}
        s_cbranch_scc1 {nxt}""")
        A.label(f'L_loop{n}')
        body(f'b{n}', False, 1, 16); tags.append(f'b{n}')
        A(f"""s_sub_u32 s45, s45, 1
        s_cmp_gt_u32 s45, {rem}
        s_cbranch_scc1 L_loop{n}""")
    A.label('L_last')
    body('z', True, 0, 0)
    secF()
    A(f"""s_setprio 0
    v_subrev_u32 v20, {VB0}, v{vB}
    v_lshrrev_b32 v20, 6, v20
    v_lshlrev_b32 v21, 5, v0
    v_add_u32 v21, {FIN}, v21
    s_mov_b64 exec, s[48:49]
    ds_max_u32 v20, v21 offset:{FL}
    ds_min_u32 v20, v21 offset:{FL+4}
    s_mov_b64 exec, -1""")
    A.label('L_done')
    stamp(7,15)
    A.label('L_epi')
    A(f"""v_lshrrev_b32 v24, 4, v0
    v_lshl_add_u32 v25, v24, 9, v1
    v_add_u32 v26, {UU}, v25
    v_lshlrev_b32 v30, 3, v0
    v_lshlrev_b32 v24, 3, v24
    v_add_u32 v31, v24, v30
    s_lshl_b32 s45, {sROW}, 7
    ds_read_b64 v[2:3], v31 offset:{XS}
    ds_read_b128 v[40:43], v26
    ds_read_b128 v[56:59], v25 offset:{EA}
    v_add_u32 v26, {MID}, v25
    s_mov_b32 s44, {f2u(1e-6*HS):#x}
    s_mov_b32 s43, {f2u(HS):#x}
    s_waitcnt lgkmcnt(0)
    s_barrier""")
    stamp(8)
    A(f"""ds_write_b128 v25, v[{vNUM}:{vNUM+3}] offset:{FIN}
    ds_write_b128 v25, v[{vDEN}:{vDEN+3}] offset:{FIN+256}
    ds_read_b64 v[28:29], v24 offset:{FL}
    ds_read_b128 v[32:35], v26
    ds_read_b128 v[36:39], v26 offset:256""")
    for i in range(4): A(f'v_rcp_f32 v{56+i}, v{56+i}')
    A(f"""v_lshlrev_b32 v44, 16, v2
    v_and_b32 v45, 0xffff0000, v2
    v_lshlrev_b32 v46, 16, v3
    v_and_b32 v47, 0xffff0000, v3""")
    for i in range(4): A(f'v_mul_f32 v{56+i}, s44, v{56+i}')
    A(f"""v_cmp_gt_u32 vcc, {NB*16}, v0
    s_and_b64 exec, exec, vcc
    s_mov_b64 s[46:47], exec
    s_waitcnt lgkmcnt(0)
    v_min_u32 v28, {FIN+63*512}, v28
    v_add_u32 v27, v29, v1
    s_barrier
    s_cbranch_execz L_fin""")
    A.label('L_el')
    A(f"""v_cmp_le_u32 vcc, v29, v28
    s_and_b64 exec, exec, vcc
    s_cbranch_execz L_el_done
    ds_read_b128 v[48:51], v27
    ds_read_b128 v[52:55], v27 offset:256
    v_add_u32 v27, 512, v27
    v_add_u32 v29, 512, v29
    s_waitcnt lgkmcnt(0)
    v_pk_add_f32 v[32:33], v[32:33], v[48:49]
    v_pk_add_f32 v[34:35], v[34:35], v[50:51]
    v_pk_add_f32 v[36:37], v[36:37], v[52:53]
    v_pk_add_f32 v[38:39], v[38:39], v[54:55]
    s_branch L_el""")
    A.label('L_el_done')
    A('s_mov_b64 exec, s[46:47]')
    for i in range(4): A(f'v_fma_f32 v{36+i}, v{36+i}, s43, v{56+i}')
    for i in range(4): A(f'v_rcp_f32 v{36+i}, v{36+i}')
    A('s_nop 0')
    for i in range(4): A(f'v_fmac_f32 v{40+i}, v{32+i}, v{36+i}')
    for i in range(4): A(f'v_mul_f32 v{32+i}, 0, v{40+i}')
    for i in range(4): A(f'v_max_f32 v{40+i}, v{40+i}, v{32+i}')
    for i in range(4): A(f'v_add_f32 v{40+i}, v{40+i}, v{44+i}')
    A("""v_cvt_pk_bf16_f32 v40, v40, v41
    v_cvt_pk_bf16_f32 v41, v42, v43
    buffer_store_dwordx2 v[40:41], v30, s[36:39], s45 offen""")
    A.label('L_fin')
    if OPT['stamps']:
        A('s_waitcnt vmcnt(0)'); stamp(9)
    stamp_flush()
    A.label('L_end')
    A('s_endpgm')
    for tag,sub in [(t,1) for t in tags]+[('z',None)]:
        A.label(f'L_evt_{tag}')
        A(f"""s_and_b64 s[52:53], s[46:47], s[48:49]
        s_cbranch_scc0 L_ev2_{tag}
        s_mul_i32 exec_lo, s52, 0xffff
        s_mul_i32 exec_hi, s53, 0xffff
        ds_write_b128 v{vB}, v[{vNUM}:{vNUM+3}] offset:{MID-VB0}
        ds_write_b128 v{vB}, v[{vDEN}:{vDEN+3}] offset:{MID-VB0+256}
        ds_read_b128 v[{vEA}:{vEA+3}], v{vB}
        ds_read_b128 v[{vNUM}:{vNUM+3}], v{vZ}
        ds_read_b128 v[{vDEN}:{vDEN+3}], v{vZ}
        v_add_u32 v{vB}, 512, v{vB}
        s_mov_b64 exec, -1""")
        A.label(f'L_ev2_{tag}')
        if sub is not None:
            A(f"""s_lshr_b64 s[46:47], s[46:47], 1
            s_and_b64 s[46:47], s[46:47], s[48:49]
            s_cbranch_scc0 L_eback_{tag}
            s_mul_i32 exec_lo, s46, 0xffff
            s_mul_i32 exec_hi, s47, 0xffff
            v_add_u32 v{vLB}, {LS}, v{vLB}
            v_subrev_u32 v{vA}, {16*sub}, v{vLB}
            s_mov_b64 exec, -1""")
        A(f's_branch L_eback_{tag}')
    A.label('L_gowait')
    A(f"""s_sleep 4
    global_load_dwordx2 v[50:51], v46, s[24:25] sc1
    s_add_u32 s43, s43, 1
    s_cmp_lt_u32 s43, {OPT['tmo']}
    s_cbranch_scc1 L_gop
    v_mov_b32 v16, {FLAGP}
    v_mov_b32 v17, 32
    ds_or_b32 v16, v17
    ds_or_b32 v16, v17 offset:{FLAGC-FLAGP}
    ds_or_b32 v16, v17 offset:{FLAGT-FLAGP}
    s_waitcnt vmcnt(0)
    s_branch L_goback""")
    A.label('L_tpw')
    A(f"""v_xor_b32 v{vNEW}, 16, v{vNEW}
    v_cmp_eq_u64 vcc, v[{vTAG}:{vTAG+1}], v[{vNEW}:{vNEW+1}]
    s_cbranch_vccnz L_timeout
    s_add_u32 s43, s43, 1
    s_cmp_gt_u32 s43, {OPT['tmo']}
    s_cbranch_scc1 L_timeout
    s_sleep {OPT['slp']}
    global_load_dwordx2 v[{vNEW}:{vNEW+1}], v{vFT}, s[26:27] {OPT['pol']}
    s_branch L_tp""")
    A.label('L_ebad')
    setslow(FLAGP)
    A('s_branch L_ebad_back')
    A.label('L_timeout')
    A(f"""v_mov_b32 v10, {FLAGC}
    v_mov_b32 v11, 16
    ds_or_b32 v10, v11
    s_branch L_b4""")
    A.label('L_wbad')
    setslow(FLAGC)
    A('s_branch L_wbad_back')
    A.label('L_rare')
    A(f"""v_cmp_lt_u32 vcc, 0xffffff, v{vNEW}
    s_cbranch_vccnz L_timeout
    v_add_u32 v8, 128, v10
    v_subrev_u32 v7, 32, v11""")
    A.label('L_rl')
    A("""v_cmp_lt_i32 vcc, 0, v7
    s_cbranch_vccz L_rare_back
    s_mov_b64 exec, vcc
    global_load_dwordx4 v[88:91], v8, s[26:27] sc1
    s_mov_b64 exec, -1
    s_waitcnt vmcnt(0)""")
    insert(list(range(88,92)),72,80,44,0,7)
    A('s_waitcnt lgkmcnt(0)')
    insert2(4,72,80,44)
    A("""v_add_u32 v8, 64, v8
    v_subrev_u32 v7, 16, v7
    s_branch L_rl""")
    A.label('L_slow')
    A(f"""s_setprio 0
    v_lshlrev_b32 v8, 4, v0
    v_lshlrev_b32 v10, 3, v0
    v_lshlrev_b32 v11, 1, v{vLANE}
    v_lshlrev_b32 v5, 2, v{vLANE}
    v_mov_b32 v9, v{vLANE}
    v_mov_b32 v60, 1.0
    v_mov_b32 v61, 1.0
    v_mov_b32 v62, 1.0
    v_mov_b32 v63, 1.0
    v_add_u32 v7, {LISTS}, v8
    s_mov_b32 s42, 0x05040100
    s_mov_b32 s43, 0x07060302
    global_load_dwordx2 v[20:21], v10, s[14:15]
    global_load_dwordx2 v[22:23], v10, s[20:21]
    global_load_ushort v4, v11, s[16:17]
    v_lshrrev_b32 v28, 4, v0
    v_lshl_add_u32 v28, v28, 9, v1
    ds_write_b128 v28, v[60:63] offset:{EA}
    s_cmp_lt_u32 s3, 12
    s_cbranch_scc1 L_s_noa
    v_add_u32 v120, {RAWA}, v120""")
    for r in range(4):
        A(f"""ds_write2_b32 v120, v{96+r}, v{100+r} offset0:{64*r} offset1:{64*r+1}
        ds_write2_b32 v120, v{104+r}, v{108+r} offset0:{64*r+2} offset1:{64*r+3}""")
    A.label('L_s_noa')
    A(f"""s_waitcnt vmcnt(0)
    v_perm_b32 v24, v22, v20, s42
    v_perm_b32 v25, v22, v20, s43
    v_perm_b32 v26, v23, v21, s42
    v_perm_b32 v27, v23, v21, s43
    ds_write_b128 v7, v[24:27]
    v_lshlrev_b32 v4, 16, v4
    v_add_u32 v6, {LISTS}, v5
    s_waitcnt lgkmcnt(0)
    s_barrier""")
    for k in range(64): A(f'ds_read_b32 v{64+k}, v6 offset:{256*k}')
    A(f"""s_mul_i32 s44, s3, {E//16}
    s_add_u32 s45, s44, {E//16}
    s_mov_b32 s53, {f2u(-L2E):#x}
    s_mov_b32 s54, {f2u(HS):#x}
    s_waitcnt lgkmcnt(0)""")
    A.label('L_s_scan')
    A(f"""v_add_u32 v30, s44, v9
    v_cmp_gt_u32 s[46:47], s45, v30
    v_min_u32 v30, {E-1}, v30
    v_lshlrev_b32 v31, 2, v30
    v_lshlrev_b32 v30, 1, v30
    global_load_dword v32, v31, s[10:11]
    global_load_dword v33, v31, s[8:9]
    global_load_ushort v34, v30, s[6:7]
    s_waitcnt vmcnt(0)
    v_subrev_u32 v32, {sROW}, v32
    v_cmp_gt_u32 vcc, {NB}, v32
    v_min_u32 v33, {N-1}, v33
    v_lshlrev_b32 v34, 16, v34
    s_and_b64 s[46:47], s[46:47], vcc""")
    A.label('L_s_edge')
    A(f"""s_cmp_eq_u64 s[46:47], 0
    s_cbranch_scc1 L_s_next
    s_ff1_i32_b64 s48, s[46:47]
    s_bitset0_b64 s[46:47], s48
    v_readlane_b32 s49, v32, s48
    v_readlane_b32 s50, v33, s48
    v_readlane_b32 s51, v34, s48
    s_nop 1
    s_lshl_b32 s50, s50, 7
    v_add_u32 v20, s50, v11
    global_load_ushort v21, v20, s[4:5]
    s_lshl_b32 s50, s49, 8
    s_add_u32 s50, s50, {RAWA}
    v_add_u32 v22, s50, v5
    ds_read_b32 v23, v22
    s_lshl_b32 s50, s49, 9
    s_add_u32 s50, s50, {MID}
    v_add_u32 v22, s50, v5
    v_mov_b32 v24, 0
    v_mov_b32 v25, 0
    s_waitcnt vmcnt(0) lgkmcnt(0)
    v_lshlrev_b32 v21, 16, v21
    v_fmac_f32 v23, s51, v4""")
    for k in range(64):
        A(f"""v_readlane_b32 s52, v21, {k}
        v_lshlrev_b32 v26, 16, v{64+k}
        v_and_b32 v27, 0xffff0000, v{64+k}
        v_fmac_f32 v24, s52, v26
        v_fmac_f32 v25, s52, v27""")
    A("""v_add_f32 v23, v23, v24
    v_mul_f32 v23, s53, v23
    v_exp_f32 v23, v23
    v_mul_f32 v25, s54, v25
    v_add_f32 v23, 1.0, v23
    v_rcp_f32 v23, v23
    s_nop 0
    v_mul_f32 v25, v25, v23
    ds_add_f32 v22, v25
    ds_add_f32 v22, v23 offset:256
    s_branch L_s_edge""")
    A.label('L_s_next')
    A(f"""s_add_u32 s44, s44, 64
    s_cmp_lt_u32 s44, s45
    s_cbranch_scc1 L_s_scan
    s_branch L_epi""")

hdr = open('standalone__edge_featured_mpnn_gatedgcn__graph.s.ref').read().split('; Override launch')[0]
kernel()
out = hdr + f"""; @launch grid=(256,1,1) block=(1024,1,1) lds={LDS}
.amdgcn_target "amdgcn-amd-amdhsa--gfx950"
.text
.globl {KN}
""" + A.text() + f""".section .rodata,"a"
.p2align 6
.amdhsa_kernel {KN}
  .amdhsa_next_free_vgpr 128
  .amdhsa_next_free_sgpr 100
  .amdhsa_accum_offset 128
  .amdhsa_group_segment_fixed_size 0
  .amdhsa_kernarg_size 96
  .amdhsa_user_sgpr_count 2
  .amdhsa_user_sgpr_kernarg_segment_ptr 1
  .amdhsa_system_sgpr_workgroup_id_x 1
  .amdhsa_float_denorm_mode_32 3
.end_amdhsa_kernel
"""
open(sys.argv[1],'w').write(out)
```

```python
import sys, struct
N=12500; E=800000; NB=49; CH=3128
WS_DAT=1<<17; DST=12544; WS_ENT=(4<<20)+(1<<17); WS_FLG=(4<<20)+(1<<16); WS_TAB=WS_ENT+(1<<19); WS_STAMP=16<<20
WS_SIZE=268435456
KN="standalone__edge_featured_mpnn_gatedgcn__graph_kernel"
def f2u(x): return struct.unpack('<I', struct.pack('<f', x))[0]
L2E=1.4426950408889634
KSH=11.0; HS=64.0
class Asm:
    def __init__(s): s.L=[]
    def __call__(s, x):
        for ln in x.strip('\n').split('\n'): s.L.append('    '+ln.strip())
    def label(s, n): s.L.append(n+':')
    def raw(s, x): s.L.append(x)
    def text(s): return '\n'.join(s.L)+'\n'
OPT = dict(stamps=0, fp=16, pfb=6, dc=22, dc2=1, dt=6, da=2, df=0, tlb=0, es=0, ftl=1, w4=1, pol='sc1', rp=8, d0=0, pfc=0, r2=5, r1=2, park=1, gsc='', slp=4, nogather=0, tmo=20000, cpf=1, unr=1, x='')
for a in sys.argv[2:]:
    k,v=a.split('=')
    assert k in OPT, k
    OPT[k] = int(v) if v.lstrip('-').isdigit() else v.replace('_',' ')
A=Asm()
SB=66
def stamp_init():
    if OPT['stamps']:
        for i in range(16): A(f's_mov_b64 s[{SB+2*i}:{SB+2*i+1}], 0')
def stamp(i, cyc=None):
    if OPT['stamps']:
        A(f's_memrealtime s[{SB+2*i}:{SB+2*i+1}]')
        if cyc is not None: A(f's_memtime s[{SB+2*cyc}:{SB+2*cyc+1}]')
def stamp_flush():
    if not OPT['stamps']: return
    A(f'''s_waitcnt lgkmcnt(0)
    s_mov_b64 exec, 1
    s_lshl_b32 s98, s2, 4
    s_add_u32 s98, s98, s3
    s_lshl_b32 s98, s98, 7
    s_add_u32 s98, s98, {WS_STAMP + 256*16*128}
    v_mov_b32 v1, s98''')
    for i in range(16):
        A(f'''v_mov_b32 v2, s{SB+2*i}
        v_mov_b32 v3, s{SB+2*i+1}
        global_store_dwordx2 v1, v[2:3], s[26:27] offset:{8*i}
        s_nop 1''')
def W(n): return 0 if OPT['stamps'] else n

CNT1=0; CNT2=1024; FLAGP=1536; FLAGC=1540; TCNT=1544; SCNT=1548; ZERO=1552; DCNT=1568; FLAGT=1572; NONCE=1576; ACNT=1584; ECNT=1588; TSLOW=1592
FL=1792
XS=2304; XST=136
T1=11008; T2=T1+32768
EA=T2+256
UU=T2+256+64*512
MID=T2+65536
LISTS=MID+50*512
LS=528
LDS=163840
WROW=160; WMAT=64*WROW
WBV=MID; WAU=WBV+2*WMAT; BASE=WAU+2*WMAT; SLOT=BASE+1024
VB0=EA+512
FIN=T1; RAWA=T1
assert XS+64*XST<=T1 and SLOT+12544<=LDS and LISTS+50*LS<=LDS and LDS<=163840 and MID+256-VB0<=65535-16
assert SLOT%16==0 and LISTS%16==0 and WAU%16==0
sROW='s60'; sBK='s61'
vWC=4; vEA=8; vDEN=12; vNUM=16; vT=20; vM=28; vSD=32; vSN=36; vR=40; vX=44; vTT=48; vD=64
vA=80; vLB=81; vB=82; vG=84
vZ=112; vFT=113; vNEW=94; vFA=115; vTAG=92; vLANE=116; vCA=117; vLL=118; vFOUR=119; vMAG=126
ACC0=96

PRIO=[1]
def secF():
    if 'f' in OPT['x']: return
    if OPT['park']:
        A('s_setprio 0')
        for i in range(4): A(f'v_fmac_f32 v{vDEN+i}, v{vSD+i}, v{vM+i}')
        for i in range(4): A(f'v_fmac_f32 v{vNUM+i}, v{vSN+i}, v{vM+i}')
        A(f's_setprio {PRIO[0]}')
    else:
        for i in range(2): A(f'v_pk_fma_f32 v[{vDEN+2*i}:{vDEN+2*i+1}], v[{vSD+2*i}:{vSD+2*i+1}], v[{vM+2*i}:{vM+2*i+1}], v[{vDEN+2*i}:{vDEN+2*i+1}]')
        for i in range(2): A(f'v_pk_fma_f32 v[{vNUM+2*i}:{vNUM+2*i+1}], v[{vSN+2*i}:{vSN+2*i+1}], v[{vM+2*i}:{vM+2*i+1}], v[{vNUM+2*i}:{vNUM+2*i+1}]')
def secPE():
    if 'p' in OPT['x']: return
    for i in range(4): A(f'v_pk_mul_f32 v[{vT+2*i}:{vT+2*i+1}], v[{vTT+2*i}:{vTT+2*i+1}], v[{vTT+8+2*i}:{vTT+9+2*i}]')
def readT(r0):
    if 't' in OPT['x']: return
    if 'a' in OPT['x']:
        A(f'''v_and_or_b32 v{vX}, v{r0}, s40, v1
        v_and_or_b32 v{vX+1}, v{r0+1}, s40, v1
        v_perm_b32 v{vX+2}, v{r0}, v1, s41
        v_perm_b32 v{vX+3}, v{r0+1}, v1, s41''')
        return
    A(f'''v_and_or_b32 v{vX}, v{r0}, s40, v1
    v_and_or_b32 v{vX+1}, v{r0+1}, s40, v1
    v_perm_b32 v{vX+2}, v{r0}, v1, s41
    v_perm_b32 v{vX+3}, v{r0+1}, v1, s41
    ds_read_b128 v[{vTT}:{vTT+3}], v{vX} offset:{T1}
    ds_read_b128 v[{vTT+4}:{vTT+7}], v{vX+1} offset:{T1}
    ds_read_b128 v[{vTT+8}:{vTT+11}], v{vX+2} offset:{T2}
    ds_read_b128 v[{vTT+12}:{vTT+15}], v{vX+3} offset:{T2}''')
def secRest(d0):
    if 'q' in OPT['x']: return
    for i in range(4):
        A(f'v_pk_fma_f32 v[{vT+2*i}:{vT+2*i+1}], v[{vT+2*i}:{vT+2*i+1}], v[{d0+2*i}:{d0+2*i+1}], v[{vEA+2*(i%2)}:{vEA+2*(i%2)+1}]')
    for i in range(2):
        A(f'v_pk_mul_f32 v[{vM+2*i}:{vM+2*i+1}], v[{vT+2*i}:{vT+2*i+1}], v[{vT+4+2*i}:{vT+5+2*i}]')
    if 'm' in OPT['x']: return
    for i in range(4): A(f'v_fma_mix_f32 v{vSN+i}, v{vT+4+i}, v{d0+i}, 0 op_sel_hi:[0,1,0]')
    for i in range(4): A(f'v_fma_mix_f32 v{vSN+i}, v{vT+i}, v{d0+4+i}, v{vSN+i} op_sel_hi:[0,1,0]')
def secTail():
    if 'r' in OPT['x']: return
    for i in range(4): A(f'v_rcp_f32 v{vM+i}, v{vM+i}')
    for i in range(2):
        A(f'v_pk_add_f32 v[{vSD+2*i}:{vSD+2*i+1}], v[{vT+2*i}:{vT+2*i+1}], v[{vT+4+2*i}:{vT+5+2*i}]')
def gpair(h):
    A(f'''v_perm_b32 v{vG}, v{vR+2*h}, v1, s44
    v_perm_b32 v{vG+1}, v{vR+2*h+1}, v1, s44''')
    if OPT['nogather']: return
    for i in range(2):
        A(f'buffer_load_dwordx4 v[{vD+8*h+4*i}:{vD+8*h+4*i+3}], v{vG+i}, s[32:35], 0 offen {OPT["gsc"]}')

def insert(recs, addr, pos, msk, r0, vrem, last=None):
    for i,r in enumerate(recs):
        c_,v_ = last if (last and i==len(recs)-1) else (r0+i, vrem)
        A(f'''v_cmp_lt_i32 s[{msk+2*i}:{msk+2*i+1}], {c_}, v{v_}
        v_alignbit_b32 v{addr+i}, v{r}, v{r}, 25
        v_and_b32 v{addr+i}, 0x1bc, v{addr+i}
        s_mov_b64 exec, s[{msk+2*i}:{msk+2*i+1}]
        ds_add_rtn_u32 v{pos+i}, v{addr+i}, v{vFOUR} offset:{CNT2}
        s_mov_b64 exec, -1''')
    for i,r in enumerate(recs): A(f'v_and_b32 v{addr+i}, 0x87ff0000, v{r}')
    for i,r in enumerate(recs): A(f'v_fma_f32 v{addr+i}, v{addr+i}, s64, v{vMAG}')
    for i,r in enumerate(recs): A(f'v_and_b32 v{addr+i}, 0x7ffe, v{addr+i}')
    for i,r in enumerate(recs): A(f'v_lshrrev_b32_sdwa v{addr+i}, s65, v{r} dst_sel:WORD_1 dst_unused:UNUSED_PRESERVE src0_sel:DWORD src1_sel:WORD_0')
def insert2(n, data, pos, msk):
    for i in range(n):
        A(f'''s_mov_b64 exec, s[{msk+2*i}:{msk+2*i+1}]
        ds_write_b32 v{pos+i}, v{data+i}''')
    A('s_mov_b64 exec, -1')

def part_a(D, B, Aa, P):
    for i in range(4):
        A(f'''v_mul_u32_u24 v{B+i}, 21400, v{D+i}
        v_lshrrev_b32 v{B+i}, 20, v{B+i}
        v_lshlrev_b32 v{Aa+i}, 2, v{B+i}
        ds_add_rtn_u32 v{P+i}, v{Aa+i}, v{vFOUR} offset:{CNT1}''')
    for i in range(4):
        A(f'v_mad_i32_i24 v{D+i}, v{B+i}, s44, v{D+i}')
    for i in range(4):
        A(f'v_add_u32 v{Aa+i}, {BASE}, v{Aa+i}')
def part_b(D, S, Ee, T, P, Q):
    A(f'''v_lshlrev_b32 v{T}, 16, v{Ee}
    v_lshlrev_b32 v{T+2}, 16, v{Ee+1}
    v_mul_f32 v{T}, s45, v{T}
    v_mul_f32 v{T+1}, s45, v{Ee}
    v_mul_f32 v{T+2}, s45, v{T+2}
    v_mul_f32 v{T+3}, s45, v{Ee+1}''')
    for i in range(4):
        A(f'''v_add_lshl_u32 v{S+i}, v{S+i}, 1, 2
        v_bfi_b32 v{S+i}, 3, v{D+i}, v{S+i}
        v_lshlrev_b32 v{D+i}, 25, v{D+i}
        v_bfi_b32 v{D+i}, s46, v{D+i}, v{T+i}
        v_bfi_b32 v{S+i}, s47, v{D+i}, v{S+i}''')
    A(f'''v_or3_b32 v{T}, v{T}, v{T+1}, v{T+2}
    v_or_b32 v{T}, v{T}, v{T+3}
    v_and_b32 v{T}, s46, v{T}
    v_cmp_ne_u32 vcc, 0, v{T}
    s_or_b64 s[52:53], s[52:53], vcc
    s_waitcnt lgkmcnt(0)''')
    for i in range(4): A(f'v_add_u32 v{P+i}, v{P+i}, v{Q+i}')
    for i in range(4): A(f'ds_write_b32 v{P+i}, v{S+i}')

def gemm_run(ACC1):
    A("""ds_read2_b64 v[84:87], v13 offset0:0 offset1:4
    ds_read2_b64 v[88:91], v13 offset0:8 offset1:12""")
    def rd(m,t):
        for mm in range(4):
            r=20+32*m+8*t+2*mm
            A(f'ds_read_b64_tr_b16 v[{r}:{r+1}], v12 offset:{m*WMAT+mm*16*WROW+t*32}')
    seq=[(m,t) for m in range(2) for t in range(4)]
    rd(*seq[0]); rd(*seq[1]); rd(*seq[2])
    for n,(m,t) in enumerate(seq):
        rem=min(len(seq)-1-n,2)
        A(f's_waitcnt lgkmcnt({0 if OPT["stamps"] and n==0 else 4*rem})')
        acc=(ACC0 if m==0 else ACC1)+4*t; f=20+32*m+8*t
        A(f"""v_mfma_f32_16x16x32_bf16 v[{acc}:{acc+3}], v[84:87], v[{f}:{f+3}], 0
        v_mfma_f32_16x16x32_bf16 v[{acc}:{acc+3}], v[88:91], v[{f+4}:{f+7}], v[{acc}:{acc+3}]""")
        if n+3<len(seq): rd(*seq[n+3])
    A(f"""v_mov_b32 v15, 256
    s_mov_b64 exec, 1
    ds_add_u32 v{vZ}, v15 offset:{DCNT-ZERO}
    s_mov_b64 exec, -1""")
def stageW(R, addr):
    A(f"""v_perm_b32 v40, v{R+2}, v{R}, s48
    v_perm_b32 v41, v{R+2}, v{R}, s49
    v_perm_b32 v42, v{R+3}, v{R+1}, s48
    v_perm_b32 v43, v{R+3}, v{R+1}, s49
    ds_write2_b32 v{addr}, v40, v41 offset0:0 offset1:8
    ds_write2_b32 v{addr}, v42, v43 offset0:16 offset1:24""")
def flagaddr(dst, src, tmp):
    FP=OPT['fp']; lgfp={1:0,2:1,4:2,8:3,16:4,32:5}[FP]
    A(f"""v_lshrrev_b32 v{tmp}, {lgfp}, v{src}
    v_and_b32 v{dst}, {FP-1}, v{src}
    v_lshlrev_b32 v{dst}, 3, v{dst}
    v_lshl_add_u32 v{dst}, v{tmp}, 7, v{dst}
    v_add_u32 v{dst}, {WS_FLG}, v{dst}""")
def setslow(addr):
    A(f"""v_mov_b32 v16, {addr}
    v_mov_b32 v17, 16
    ds_or_b32 v16, v17""")

def spin(label, addr, tmp, n, slp=0):
    A.label(label)
    A(f"""ds_read_b32 v{tmp}, v{addr}
    s_waitcnt lgkmcnt(0)
    v_cmp_gt_u32 vcc, {n}, v{tmp}""")
    if OPT['es']:
        A(f"""s_cbranch_vccz {label}_x
        s_sleep {OPT['es']}
        s_branch {label}""")
        A.label(label+'_x')
    else: A(f's_cbranch_vccnz {label}')

def scan(v, first=None):
    src = first if first is not None else v
    A(f"""s_nop 1
    v_add_u32_dpp v{v}, v{src}, v{src} row_shr:1 row_mask:0xf bank_mask:0xf bound_ctrl:0
    s_nop 1
    v_add_u32_dpp v{v}, v{v}, v{v} row_shr:2 row_mask:0xf bank_mask:0xf bound_ctrl:0
    s_nop 1
    v_add_u32_dpp v{v}, v{v}, v{v} row_shr:4 row_mask:0xf bank_mask:0xf bound_ctrl:0
    s_nop 1
    v_add_u32_dpp v{v}, v{v}, v{v} row_shr:8 row_mask:0xf bank_mask:0xf bound_ctrl:0
    s_nop 1
    v_add_u32_dpp v{v}, v{v}, v{v} row_bcast:15 row_mask:0xa bank_mask:0xf
    s_nop 1
    v_add_u32_dpp v{v}, v{v}, v{v} row_bcast:31 row_mask:0xc bank_mask:0xf""")
def ebar(label, n):
    A(f"""s_mov_b64 exec, 1
    s_waitcnt lgkmcnt(0)
    ds_add_u32 v19, v{vFOUR}""")
    spin(label,19,15,n)
    A('s_mov_b64 exec, -1')

def polladdr():
    A(f"""v_lshrrev_b32 v114, 2, v0
    s_lshl_b32 s41, {sBK}, 3
    s_add_u32 s41, s41, {WS_ENT}
    v_lshl_add_u32 v{vFA}, v114, 11, s41""")
def nodeconst():
    A(f"""v_and_b32 v17, 3, v{vLANE}
    v_and_b32 v{vCA}, 60, v{vLANE}
    v_lshl_add_u32 v{vCA}, v17, 7, v{vCA}
    v_min_u32 v16, 49, v{vLANE}
    v_mul_u32_u24 v{vLL}, {LS-16}, v16
    v_lshl_add_u32 v{vLL}, v{vLANE}, 4, v{vLL}
    v_add_u32 v{vLL}, {LISTS}, v{vLL}""")
def poll1():
    A(f"global_load_dwordx2 v[{vNEW}:{vNEW+1}], v{vFA}, s[26:27] {OPT['pol']}")
def readtag():
    A(f"ds_read_b64 v[{vTAG}:{vTAG+1}], v{vZ} offset:{NONCE-ZERO}")
def kernel():
    ACC1=20
    RPM=(1<<OPT['rp'])-1
    A.raw('.p2align 8'); A.raw(f'.type {KN},@function'); A.label(KN)
    A(f"""s_cmp_ge_u32 s2, 256
    s_cbranch_scc1 L_end
    s_load_dwordx16 s[4:19], s[0:1], 0
    s_load_dwordx8 s[20:27], s[0:1], 64
    v_lshrrev_b32 v1, 6, v0""")
    stamp_init(); stamp(1)
    A(f"""v_lshlrev_b32 v3, 4, v0
    v_readfirstlane_b32 s3, v1
    v_and_b32 v{vLANE}, 63, v0
    v_and_b32 v1, 15, v0
    s_and_b32 s40, s2, 7
    s_lshl_b32 s40, s40, 5
    s_lshr_b32 s59, s2, 3
    s_add_u32 {sBK}, s59, s40
    s_mul_i32 {sROW}, {sBK}, {NB}
    s_cmp_ge_u32 s3, 8
    s_cbranch_scc1 L_noedge
    s_mul_i32 s40, s2, {CH*4}
    v_add_u32 v12, s40, v3
    v_add_u32 v13, 8192, v12
    v_lshrrev_b32 v14, 1, v12
    v_lshrrev_b32 v15, 1, v13
    s_mul_i32 s41, s2, {CH//4}
    s_sub_u32 s41, {E//4-512}, s41
    s_min_u32 s41, s41, {CH//4-512}
    v_cmp_gt_u32 s[50:51], s41, v0
    s_or_b32 s40, s2, s3
    s_cbranch_scc1 L_nn
    s_memrealtime s[42:43]
    v_mov_b32 v18, 0
    s_waitcnt lgkmcnt(0)
    s_lshl_b64 s[42:43], s[42:43], 25
    s_or_b32 s42, s42, 1
    v_mov_b32 v16, s42
    v_mov_b32 v17, s43
    s_mov_b64 exec, 1
    global_store_dwordx2 v18, v[16:17], s[24:25] sc1
    s_mov_b64 exec, -1""")
    A.label('L_nn')
    A(f"""s_waitcnt lgkmcnt(0)
    global_load_dwordx4 v[20:23], v12, s[10:11]
    s_mov_b64 exec, s[50:51]
    s_cbranch_execz L_e1
    global_load_dwordx4 v[40:43], v13, s[10:11]""")
    A.label('L_e1')
    A(f"""s_cmp_eq_u32 s3, {4 if OPT['w4'] else 99}
    s_cbranch_scc1 L_e3
    s_barrier""")
    A.label('L_e3')
    A(f"""s_cbranch_execz L_e2
    global_load_dwordx4 v[44:47], v13, s[8:9]
    global_load_dwordx2 v[48:49], v15, s[6:7]""")
    A.label('L_e2')
    A(f"""s_mov_b64 exec, -1
    s_cbranch_scc0 L_e4
    s_barrier""")
    A.label('L_e4')
    A(f"""global_load_dwordx4 v[24:27], v12, s[8:9]
    global_load_dwordx2 v[28:29], v14, s[6:7]
    v_lshlrev_b32 v11, 3, v1
    global_load_dwordx2 v[4:5], v11, s[16:17]
    s_setprio 3
    s_branch L_common""")
    A.label('L_noedge')
    A(f"""v_mov_b32 v56, 0
    v_mov_b32 v57, 0
    v_mov_b32 v58, 0
    v_mov_b32 v59, 0
    s_cmp_lg_u32 s3, 9
    s_cbranch_scc1 L_n1
    v_lshlrev_b32 v16, 4, v{vLANE}
    v_lshlrev_b32 v17, 2, v{vLANE}
    ds_write_b128 v16, v[56:59] offset:{CNT1}
    ds_write_b32 v17, v56 offset:{FLAGP}""")
    A.label('L_n1')
    A(f"""s_cmp_lg_u32 s3, 8
    s_cbranch_scc1 L_n2
    s_getpc_b64 s[42:43]""")
    A.label('L_pc')
    A(f"""s_sub_u32 s42, s42, L_pc-{KN}
    s_subb_u32 s43, s43, 0
    s_lshl_b32 s41, s59, 9
    v_lshlrev_b32 v10, 7, v{vLANE}
    v_add_u32 v11, s41, v10
    s_lshl_b32 s41, s59, 8
    v_add_u32 v10, s41, v10
    s_mov_b64 exec, 15
    global_load_dword v60, v11, s[42:43]
    s_mov_b64 exec, 3
    s_waitcnt lgkmcnt(0)
    global_load_dword v61, v10, s[14:15]
    global_load_dword v62, v10, s[20:21]
    global_load_dword v63, v10, s[12:13]
    global_load_dword v64, v10, s[18:19]
    s_mov_b64 exec, -1""")
    A.label('L_n2')
    if OPT['tlb']:
        A(f"""s_cmp_lg_u32 s3, 10
        s_cbranch_scc1 L_n4
        v_and_b32 v10, 1, v{vLANE}
        v_mul_u32_u24 v10, {(4<<20)-128}, v10
        v_lshrrev_b32 v11, 1, v{vLANE}
        v_lshl_add_u32 v10, v11, 22, v10
        s_lshl_b32 s41, {sROW}, 7
        v_mov_b32 v11, s41
        v_mov_b32 v12, 128
        s_mov_b64 exec, 15
        s_waitcnt lgkmcnt(0)
        global_load_dword v60, v10, s[26:27]
        s_mov_b64 exec, 1
        global_load_dword v61, v12, s[24:25]
        global_load_dword v62, v11, s[22:23]
        s_mov_b64 exec, -1""")
        A.label('L_n4')
    A(f"""s_lshl_b32 s40, {sROW}, 7
    s_sub_u32 s40, s40, 8192
    v_add_u32 v14, s40, v3
    v_add_u32 v15, 4096, v14
    v_min_u32 v14, {N*128-16}, v14
    v_min_u32 v15, {N*128-16}, v15
    s_waitcnt lgkmcnt(0)
    s_barrier
    s_cmp_ge_u32 s3, 12
    s_cbranch_scc1 L_common
    global_load_dwordx4 v[88:91], v14, s[4:5]
    global_load_dwordx4 v[92:95], v15, s[4:5]""")
    A.label('L_common')
    stamp(2)
    A(f"""v_mov_b32 v{vFOUR}, 4
    v_lshlrev_b32 v1, 4, v1
    v_mov_b32 v{vZ}, {ZERO}
    s_mov_b32 s64, {f2u(2.0**125):#x}
    s_mov_b32 s65, 2
    s_mov_b64 s[62:63], 0
    s_mov_b32 s30, {WS_SIZE}
    s_mov_b32 s31, 0x20000
    s_mov_b32 s34, {12560*256}
    s_mov_b32 s35, 0x20000
    s_mov_b32 s38, {N*128}
    s_mov_b32 s39, 0x20000
    s_mov_b32 s28, s26
    s_mov_b32 s29, s27
    s_add_u32 s32, s26, {WS_TAB}
    s_addc_u32 s33, s27, 0
    s_mov_b32 s36, s22
    s_mov_b32 s37, s23
    s_cmp_ge_u32 s3, 8
    s_cbranch_scc1 L_gw
    s_mov_b32 s44, -49
    s_mov_b32 s45, {(127-113)<<23}
    s_mov_b32 s46, 0x78000000
    s_mov_b32 s47, 0xffff0000
    s_mov_b64 s[52:53], 0
    v_mov_b32 v19, {ECNT}
    v_lshlrev_b32 v18, 4, v{vLANE}
    v_lshlrev_b32 v14, 3, v{vLANE}
    v_add_u32 v12, {BASE}, v18
    v_add_u32 v13, {BASE}, v14
    v_add_u32 v11, {SLOT}, v3
    s_cmp_eq_u64 s[50:51], 0
    s_cbranch_scc1 L_a1
    s_waitcnt vmcnt(5)
    s_mov_b64 exec, s[50:51]""")
    part_a(40,50,54,68)
    A("""s_mov_b64 exec, -1
    s_branch L_a2""")
    A.label('L_a1')
    A('s_waitcnt vmcnt(3)')
    A.label('L_a2')
    part_a(20,30,34,64)
    stamp(3)
    ebar('L_eb1',32)
    A(f"""ds_read_b128 v[80:83], v18 offset:{CNT1}
    ds_read_b64 v[96:97], v14 offset:{CNT1}
    ds_read_b64 v[98:99], v14 offset:{CNT1+512}
    s_waitcnt lgkmcnt({W(2)})
    v_add_u32 v81, v80, v81
    v_add_u32 v82, v81, v82
    v_add_u32 v83, v82, v83""")
    scan(88,83)
    A(f"""v_sub_u32 v84, v88, v83
    v_add_u32 v84, {SLOT}, v84
    v_add_u32 v85, v84, v80
    v_add_u32 v86, v84, v81
    v_add_u32 v87, v84, v82
    ds_write_b128 v12, v[84:87]""")
    for i in range(4): A(f'ds_read_b32 v{72+i}, v{34+i}')
    A(f"""ds_read_b64 v[100:101], v13
    ds_read_b64 v[102:103], v13 offset:512
    s_cmp_eq_u64 s[50:51], 0
    s_cbranch_scc1 L_b1
    s_mov_b64 exec, s[50:51]""")
    for i in range(4): A(f'ds_read_b32 v{76+i}, v{54+i}')
    A('s_waitcnt vmcnt(3)')
    part_b(40,44,48,50,68,76)
    A('s_mov_b64 exec, -1')
    A.label('L_b1')
    A('s_waitcnt vmcnt(1)')
    part_b(20,24,28,30,64,72)
    A.label('L_b2')
    A(f"""s_cmp_lg_u64 s[52:53], 0
    s_cbranch_scc1 L_ebad""")
    A.label('L_ebad_back')
    stamp(4)
    A(f"""s_mul_i32 s54, s2, {DST}
    s_add_u32 s54, s54, {WS_DAT}
    s_add_u32 s55, s54, 8192""")
    ebar('L_eb2',64)
    stamp(5)
    A(f"""ds_read_b128 v[20:23], v11
    ds_read_b128 v[24:27], v11 offset:8192
    s_waitcnt lgkmcnt({W(1)})
    buffer_store_dwordx4 v[20:23], v3, s[28:31], s54 offen sc1
    s_mov_b64 exec, s[50:51]
    s_cbranch_execz L_c1
    s_waitcnt lgkmcnt(0)
    buffer_store_dwordx4 v[24:27], v3, s[28:31], s55 offen sc1""")
    A.label('L_c1')
    A('s_mov_b64 exec, -1')
    for i in range(4):
        A(f"""v_subrev_u32 v{100+i}, {SLOT}, v{100+i}
        v_lshrrev_b32 v{100+i}, 2, v{100+i}
        v_lshl_or_b32 v{104+2*i}, v{96+i}, 10, v{100+i}""")
    A(f"""v_mov_b32 v16, {FLAGP}
    s_lshl_b32 s54, s2, 11
    s_add_u32 s54, s54, {WS_ENT}""")
    A.label('L_sg')
    A(f"""ds_read_b64 v[{vTAG}:{vTAG+1}], v16 offset:{NONCE-FLAGP}
    s_waitcnt lgkmcnt(0)
    v_cmp_eq_u32 vcc, 0, v{vTAG}
    s_cbranch_vccnz L_sg
    v_and_b32 v{vTAG}, -2, v{vTAG}
    s_mov_b64 exec, 1
    s_waitcnt vmcnt(0)
    ds_add_rtn_u32 v17, v16, v{vFOUR} offset:{DCNT-FLAGP}
    s_mov_b64 exec, -1
    ds_read_b32 v20, v16
    s_waitcnt lgkmcnt(0)
    v_readfirstlane_b32 s42, v17
    v_cmp_gt_u32 vcc, 32, v20
    v_lshl_or_b32 v20, v20, 20, v{vTAG}
    s_and_b32 s42, s42, 255
    s_cmp_lg_u32 s42, 28
    s_cbranch_scc1 L_nosig""")
    for i in range(4):
        A(f"""v_or_b32 v{104+2*i}, v{104+2*i}, v20
        v_mov_b32 v{105+2*i}, v{vTAG+1}""")
    A(f"""s_cbranch_vccz L_nosig
    buffer_store_dwordx4 v[104:107], v18, s[28:31], s54 offen sc1
    buffer_store_dwordx4 v[108:111], v18, s[28:31], s54 offen offset:1024 sc1""")
    A.label('L_nosig')
    stamp(0)
    A(f"""s_setprio 0
    s_cmp_ge_u32 s3, 4
    s_cbranch_scc1 L_idle
    s_mov_b32 s44, {f2u(-L2E):#x}
    v_bfe_u32 v8, v0, 4, 4
    v_cvt_f32_u32 v9, v8
    v_mul_f32 v36, {f2u(1/16.0):#x}, v9
    v_add_f32 v37, -4.0, v36
    v_mul_f32 v38, {f2u(1/2048.0):#x}, v9
    v_mov_b32 v10, {f2u(-KSH):#x}
    v_lshl_add_u32 v9, v8, 8, v1
    v_lshl_add_u32 v8, v8, 9, v1
    v_add_u32 v8, {T2}, v8
    v_and_b32 v7, 0xffff0000, v5
    v_lshlrev_b32 v6, 16, v5
    v_and_b32 v5, 0xffff0000, v4
    v_lshlrev_b32 v4, 16, v4
    v_mul_f32 v4, s44, v4
    v_mul_f32 v5, s44, v5
    v_mul_f32 v6, s44, v6
    v_mul_f32 v7, s44, v7""")
    for i in range(4): A(f'v_fma_f32 v{20+i}, v{4+i}, v36, v10')
    for i in range(4): A(f'v_fma_f32 v{24+i}, v{4+i}, v37, v10')
    for i in range(4): A(f'v_mul_f32 v{28+i}, v{4+i}, v38')
    for i in range(4): A(f'v_mul_f32 v{44+i}, {f2u(1/128.0):#x}, v{4+i}')
    for i in range(12): A(f'v_exp_f32 v{20+i}, v{20+i}')
    for i in range(4): A(f'v_exp_f32 v{40+i}, v{4+i}')
    for i in range(4): A(f'v_exp_f32 v{44+i}, v{44+i}')
    A('v_max3_f32 v11, |v4|, |v5|, |v6|')
    def step(r, m):
        A(f"""v_pk_mul_f32 v[{r}:{r+1}], v[{r}:{r+1}], v[{m}:{m+1}]
        v_pk_mul_f32 v[{r+2}:{r+3}], v[{r+2}:{r+3}], v[{m+2}:{m+3}]""")
    for k in range(4):
        if k==OPT['dc2']:
            stamp(10); polladdr(); poll1()
        A(f"""ds_write_b128 v9, v[20:23] offset:{T1+4096*k}
        ds_write_b128 v9, v[24:27] offset:{T1+4096*(k+4)}
        ds_write_b128 v8, v[28:31] offset:{8192*2*k}""")
        step(28,44)
        A(f'ds_write_b128 v8, v[28:31] offset:{8192*(2*k+1)}')
        if k<3: step(20,40); step(24,40); step(28,44)
    A(f"""v_max_f32_e64 v11, v11, |v7|
    v_cmp_nge_f32 vcc, 4.0, v11
    s_cbranch_vccnz L_wbad""")
    A.label('L_wbad_back')
    A('s_branch L_prep')
    A.label('L_idle')
    if OPT['dc']: A(f's_sleep {OPT["dc"]}')
    polladdr()
    poll1()
    A('s_branch L_prep')
    A.label('L_gw')
    A(f"""s_cmp_lg_u32 s3, 13
    s_cbranch_scc1 L_g2""")
    nodeconst()
    A(f"""ds_write_b32 v{vCA}, v{vLL} offset:{CNT2}
    v_mov_b32 v57, -1
    v_lshlrev_b32 v18, 3, v{vLANE}
    ds_write_b64 v18, v[56:57] offset:{FL}""")
    A.label('L_g2')
    A(f"""v_and_b32 v2, 255, v0
    v_lshlrev_b32 v3, 4, v2
    v_lshrrev_b32 v12, 3, v2
    v_and_b32 v13, 7, v2
    v_mov_b32 v46, 0
    s_cmp_ge_u32 s3, 12
    s_cselect_b64 s[40:41], s[12:13], s[14:15]
    s_cselect_b64 s[42:43], s[18:19], s[20:21]
    s_cselect_b32 s55, {WAU-WBV}, 0
    s_cselect_b32 s57, {ACNT-SCNT}, 0
    s_add_u32 s55, s55, {WBV}
    s_add_u32 s57, s57, {SCNT}
    v_add_u32 v15, 4096, v3
    v_mov_b32 v50, 1
    global_load_dwordx4 v[72:75], v3, s[40:41]
    global_load_dwordx4 v[76:79], v15, s[40:41]
    global_load_dwordx4 v[80:83], v3, s[42:43]
    global_load_dwordx4 v[84:87], v15, s[42:43]
    s_cmp_lg_u32 s3, 15
    s_cbranch_scc1 L_t2
    global_load_dwordx2 v[50:51], v46, s[24:25] sc1""")
    A.label('L_t2')
    A(f"""s_setprio 1
    v_mul_u32_u24 v16, {WROW}, v12
    v_lshl_add_u32 v16, v13, 2, v16
    v_add_u32 v16, s55, v16
    v_mul_u32_u24 v17, {XST}, v12
    v_lshl_add_u32 v17, v13, 4, v17
    v_add_u32 v17, {XS}, v17
    v_add_u32 v18, {32*XST}, v17""")
    A(f"""    s_mov_b32 s48, 0x05040100
    s_mov_b32 s49, 0x07060302
    s_and_b32 s54, s3, 3
    v_bfe_u32 v12, v0, 2, 4
    v_and_b32 v13, 3, v0
    v_mul_u32_u24 v12, {WROW}, v12
    v_lshl_add_u32 v12, v13, 3, v12
    v_add_u32 v12, s55, v12
    v_and_b32 v13, 15, v0
    v_bfe_u32 v14, v0, 4, 2
    v_mul_u32_u24 v13, {XST}, v13
    v_lshl_add_u32 v13, v14, 3, v13
    s_mul_i32 s56, s54, {16*XST}
    s_add_u32 s56, s56, {XS}
    v_add_u32 v13, s56, v13
    s_lshl_b32 s56, s54, 2
    v_add_u32 v14, s56, v14
    v_mov_b32 v19, s57
    v_mov_b32 v47, {SCNT}
    s_mov_b32 s43, 0""")
    stamp(4)
    A(f"""s_waitcnt vmcnt(4)
    s_cmp_lt_u32 s3, 12
    s_cbranch_scc1 L_g7
    s_cmp_lg_u32 s3, 15
    s_cbranch_scc1 L_g6
    s_waitcnt vmcnt(0)
    ds_write_b64 v46, v[50:51] offset:{NONCE}
    s_branch L_g6""")
    A.label('L_g7')
    A(f"""ds_write2_b64 v17, v[88:89], v[90:91] offset0:0 offset1:1
    ds_write2_b64 v18, v[92:93], v[94:95] offset0:0 offset1:1""")
    A.label('L_g6')
    for m in range(4):
        A(f's_waitcnt vmcnt({3-m})')
        stageW(72+4*m,16)
        if m<3: A(f'v_add_u32 v16, {32*WROW}, v16')
    stamp(5)
    A.label('L_gop')
    A(f"""s_waitcnt vmcnt(0)
    v_cmp_eq_u32 vcc, 0, v50
    s_cbranch_vccnz L_gowait""")
    A.label('L_goback')
    A(f"""s_mov_b64 exec, 1
    s_cmp_lg_u32 s3, 15
    s_cbranch_scc1 L_g5
    v_or_b32 v50, 1, v50
    s_waitcnt lgkmcnt(0)
    ds_write_b64 v46, v[50:51] offset:{NONCE}""")
    A.label('L_g5')
    A(f"""s_waitcnt lgkmcnt(0)
    ds_add_u32 v19, v{vFOUR}""")
    spin('L_sb',19,15,16)
    A("""s_cmp_ge_u32 s3, 12
    s_cbranch_scc1 L_au
    s_mov_b64 exec, -1""")
    stamp(3)
    A('s_setprio 2')
    gemm_run(ACC1)
    A(f"""s_mov_b32 s44, {f2u(-L2E):#x}
    s_mov_b32 s45, {f2u(HS):#x}
    s_mov_b32 s46, 0x07060100
    s_lshl_b32 s47, {sROW}, 8
    s_add_u32 s47, s47, {WS_TAB+256}
    v_lshl_add_u32 v14, v14, 10, v1""")
    for i in range(16): A(f'v_mul_f32 v{ACC0+i}, s44, v{ACC0+i}')
    A("""s_cmp_eq_u32 s54, 3
    s_cselect_b32 exec_lo, 0xffff, -1
    s_cselect_b32 exec_hi, 0, -1""")
    for r in range(4):
        for t in range(4): A(f'v_exp_f32 v{64+4*r+t}, v{ACC0+4*t+r}')
        for t in range(4): A(f'v_fma_mixlo_f16 v{36+t}, v{ACC1+4*t+r}, s45, 0')
        for t in range(4): A(f'v_add_u32 v{64+4*r+t}, 0x8000, v{64+4*r+t}')
        for t in range(4): A(f'v_sub_u32_sdwa v{64+4*r+t}, v{64+4*r+t}, v{36+t} clamp dst_sel:DWORD dst_unused:UNUSED_PAD src0_sel:DWORD src1_sel:WORD_0')
        for t in range(4): A(f'v_perm_b32 v{64+4*r+t}, v{64+4*r+t}, v{36+t}, s46')
        A(f'buffer_store_dwordx4 v[{64+4*r}:{67+4*r}], v14, s[28:31], s47 offen offset:{r*256} sc1')
        if r==0: A('s_cbranch_scc1 L_tdone')
    A.label('L_tdone')
    A(f"""s_mov_b64 exec, -1
    s_or_b32 s56, s2, s54
    s_cmp_lg_u32 s56, 0
    s_cbranch_scc1 L_nodummy
    v_lshlrev_b32 v44, 2, v{vLANE}
    v_mov_b32 v45, {(127+81)<<23:#x}
    s_mov_b32 s56, {WS_TAB}
    buffer_store_dword v45, v44, s[28:31], s56 offen sc1""")
    A.label('L_nodummy')
    stamp(0)
    A.label('L_tg')
    readtag()
    A(f"""s_waitcnt lgkmcnt(0)
    v_cmp_eq_u32 vcc, 0, v{vTAG}
    s_cbranch_vccnz L_tg""")
    A(f"""v_max3_f32 v15, v{ACC0}, v{ACC0+1}, v{ACC0+2}
    v_max3_f32 v16, |v{ACC1}|, |v{ACC1+1}|, |v{ACC1+2}|""")
    for i in (3,5,7,9,11,13,14):
        A(f"""v_max3_f32 v15, v15, v{ACC0+i}, v{ACC0+i+1}
        v_max3_f32 v16, v16, |v{ACC1+i}|, |v{ACC1+i+1}|""")
    A(f"""v_cmp_lt_f32 vcc, {f2u(50.0):#x}, v15
    s_mov_b64 s[42:43], vcc
    v_cmp_lt_f32 vcc, {f2u(1000.0):#x}, v16
    s_or_b64 s[42:43], s[42:43], vcc
    s_cbranch_scc0 L_tok""")
    setslow(FLAGT)
    A.label('L_tok')
    A(f"""s_lshl_b32 s41, s2, 3
    s_add_u32 s41, s41, {WS_FLG}
    v_lshl_add_u32 v127, v{vLANE}, 12, s41""")
    if OPT['dt']: A(f's_sleep {OPT["dt"]}')
    polladdr()
    poll1()
    A(f"""v_mov_b32 v8, {TCNT}
    s_mov_b64 exec, 1
    s_waitcnt vmcnt(1) lgkmcnt(0)
    ds_add_rtn_u32 v9, v8, v{vFOUR}
    s_mov_b64 exec, -1
    v_and_b32 v{vTAG}, -2, v{vTAG}
    s_mov_b64 exec, {RPM}
    ds_read_b32 v11, v8 offset:{FLAGT-TCNT}
    s_waitcnt lgkmcnt(0)
    v_readfirstlane_b32 s42, v9
    v_cmp_gt_u32 vcc, 32, v11
    v_or_b32 v20, v{vTAG}, v11
    v_mov_b32 v21, v{vTAG+1}
    s_cmp_eq_u32 s42, 12
    s_cselect_b64 exec, vcc, 0
    s_cbranch_execz L_nosigt
    global_store_dwordx2 v127, v[20:21], s[26:27] sc1""")
    A.label('L_nosigt')
    A('s_mov_b64 exec, -1')
    stamp(10)
    A('s_branch L_prep')
    A.label('L_au')
    spin('L_sb2',47,15,16)
    A('s_mov_b64 exec, -1')
    stamp(3)
    gemm_run(ACC1)
    readtag()
    stamp(0)
    A(f"""s_waitcnt lgkmcnt(0)
    v_and_b32 v{vTAG}, -2, v{vTAG}""")
    A(f"""s_mov_b32 s44, {f2u(L2E):#x}
    v_mov_b32 v15, {f2u(-KSH):#x}
    v_lshl_add_u32 v120, v14, 10, v1
    v_lshl_add_u32 v14, v14, 11, v1
    v_add_u32 v13, {UU}, v14""")
    for r in range(4):
        for t in range(4): A(f'v_fma_f32 v{64+4*r+t}, v{ACC0+4*t+r}, s44, v15')
    for i in range(16): A(f'v_exp_f32 v{64+i}, v{64+i}')
    for r in range(4):
        for t in range(4): A(f'v_mov_b32 v{40+4*r+t}, v{ACC1+4*t+r}')
    if OPT['da']: A(f's_sleep {OPT["da"]}')
    polladdr()
    poll1()
    for r in range(4):
        A(f"""ds_write_b128 v14, v[{64+4*r}:{67+4*r}] offset:{EA+512*r}
        ds_write_b128 v13, v[{40+4*r}:{43+4*r}] offset:{512*r}""")
    A(f'v_max3_f32 v16, |v{ACC0}|, |v{ACC0+1}|, |v{ACC0+2}|')
    for i in (3,5,7,9,11,13,14): A(f'v_max3_f32 v16, v16, |v{ACC0+i}|, |v{ACC0+i+1}|')
    A(f"""v_cmp_nge_f32 vcc, {f2u(51.0/L2E):#x}, v16
    s_cbranch_vccz L_prep""")
    setslow(FLAGC)
    A.label('L_prep')
    nodeconst()
    A(f"""s_setprio 0
    v_mul_u32_u24 v114, {DST}, v114
    v_add_u32 v114, {WS_DAT}, v114
    v_mov_b32 v{vMAG}, {f2u(1.5*2**23):#x}
    s_mov_b32 s43, 0
    s_mov_b32 s40, 0x1ffffff
    s_mov_b32 s41, 0
    v_and_b32 v9, 3, v0
    v_lshl_add_u32 v6, v9, 4, v114
    v_lshl_add_u32 v20, v9, 2, v114
    v_mul_u32_u24 v5, 12, v9
    v_lshlrev_b32 v4, 2, v9
    v_mul_u32_u24 v3, 3, v9
    v_add_u32 v5, v5, v114""")
    for i in list(range(vDEN,vDEN+8))+list(range(vM,vM+12)): A(f'v_mov_b32 v{i}, 0')
    A.label('L_poll')
    A(f"""s_waitcnt vmcnt(0)
    v_xor_b32 v{vNEW}, v{vNEW}, v{vTAG}
    v_xor_b32 v{vNEW+1}, v{vNEW+1}, v{vTAG+1}
    v_cmp_lt_u64 vcc, s[40:41], v[{vNEW}:{vNEW+1}]
    s_cbranch_vccnz L_repoll""")
    A.label('L_ready')
    A(f"""s_mov_b64 exec, -1
    v_and_b32 v10, 0xfff, v{vNEW}
    v_lshl_add_u32 v6, v10, 2, v6
    v_lshrrev_b32 v2, 12, v{vNEW}
    v_sub_u32 v11, v2, v4
    v_cmp_lt_i32 vcc, 0, v11
    v_sub_u32 v21, v2, v9
    v_sub_u32 v3, v2, v3
    v_cmp_lt_i32 s[42:43], 16, v21
    v_cmp_lt_i32 s[40:41], 20, v3
    v_lshl_add_u32 v20, v10, 2, v20
    v_lshl_add_u32 v5, v10, 2, v5
    s_mov_b64 exec, vcc
    s_cbranch_execz L_r1
    global_load_dwordx4 v[64:67], v6, s[26:27] sc1
    s_mov_b64 exec, s[42:43]
    s_cbranch_execz L_r1
    global_load_dword v68, v20, s[26:27] offset:64 sc1
    s_mov_b64 exec, s[40:41]
    s_cbranch_execz L_r1
    global_load_dwordx3 v[70:72], v5, s[26:27] offset:80 sc1""")
    A.label('L_r1')
    A('s_mov_b64 exec, -1')
    A('v_cmp_lt_i32 vcc, 32, v2')
    stamp(11)
    A(f"""v_lshlrev_b32 v22, 4, v0
    v_add_u32 v22, {MID}, v22""")
    A.label('L_gate')
    A(f"""ds_read_b32 v23, v{vZ} offset:{DCNT-ZERO}
    s_waitcnt lgkmcnt(0)
    v_readfirstlane_b32 s44, v23
    s_cmp_lt_u32 s44, {32+2048}
    s_cbranch_scc1 L_gate""")
    A(f"""ds_write_b128 v22, v[{vDEN}:{vDEN+3}]
    s_cmp_ge_u32 s3, 9
    s_cbranch_scc1 L_z1
    ds_write_b128 v22, v[{vDEN}:{vDEN+3}] offset:16384""")
    A.label('L_z1')
    A('s_cbranch_vccnz L_rare')
    A.label('L_rare_back')
    A('s_waitcnt vmcnt(0)')
    stamp(12)
    insert(list(range(64,69)),74,82,44,0,11,(16,21))
    A("""s_cmp_eq_u64 s[40:41], 0
    s_cbranch_scc1 L_r2""")
    insert(list(range(70,73)),79,87,54,20,3)
    A('s_waitcnt lgkmcnt(0)')
    insert2(3,79,87,54)
    A.label('L_r2')
    A('s_waitcnt lgkmcnt(0)')
    insert2(5,74,82,44)
    A(f"""s_lshr_b32 s42, s3, 2
    s_cmp_lg_u32 s42, 2
    s_cbranch_scc1 L_b4
    s_and_b32 s41, s2, {OPT['rp']-1}
    s_lshl_b32 s41, s41, 12
    s_add_u32 s41, s41, {WS_FLG-4096}
    v_lshl_add_u32 v{vFT}, v0, 3, s41
    s_mov_b32 s43, 0""")
    if OPT['df']: A(f's_sleep {OPT["df"]}')
    A(f"global_load_dwordx2 v[{vNEW}:{vNEW+1}], v{vFT}, s[26:27] {OPT['pol']}")
    A.label('L_tp')
    A(f"""s_waitcnt vmcnt(0)
    v_cmp_ne_u64 vcc, v[{vTAG}:{vTAG+1}], v[{vNEW}:{vNEW+1}]
    s_cbranch_vccnz L_tpw""")
    A.label('L_b4')
    A(f"""v_mov_b32 v10, {FLAGC}
    s_mov_b32 s50, -1
    s_mov_b32 s51, 0x1ffff
    s_mov_b32 s48, 0x00010001
    s_mov_b32 s49, 0x00010001
    s_mov_b32 s40, 0x7f00
    s_mov_b32 s41, 0x0c0c0400
    s_setprio 3
    s_waitcnt lgkmcnt(0)
    s_barrier""")
    stamp(13)
    if OPT['pfb']:
        A(f"""s_lshr_b32 s42, s2, 3
        s_lshl_b32 s42, s42, 4
        s_add_u32 s42, s42, s3
        s_mul_i32 s42, s42, {49*128}
        v_lshlrev_b32 v11, 7, v{vLANE}
        s_mov_b64 exec, {hex((1<<OPT['pfb'])-1)}
        buffer_load_dword v113, v11, s[32:35], s42 offen
        s_mov_b64 exec, -1""")
    A(f'''ds_read_b32 v121, v{vCA} offset:{CNT2}
    ds_read_b32 v122, v10
    s_waitcnt lgkmcnt(0)
    ds_write2_b32 v121, v{vDEN}, v{vDEN} offset0:0 offset1:1
    ds_write2_b32 v121, v{vDEN}, v{vDEN} offset0:2 offset1:3
    v_sub_u32 v121, v121, v{vLL}
    v_cmp_lt_u32 vcc, 512, v121
    s_or_b64 s[62:63], s[62:63], vcc
    v_cmp_ne_u32 vcc, 0, v122
    v_add_u32 v121, 12, v121
    v_lshrrev_b32 v121, 4, v121
    v_max_u32 v121, 1, v121
    s_or_b64 s[62:63], s[62:63], vcc
    s_cbranch_scc1 L_slow
    v_cndmask_b32 v121, 0, v121, s[50:51]
    s_nop 1
    v_add_u32_dpp v122, v121, v121 row_shr:1 row_mask:0xf bank_mask:0xf bound_ctrl:0
    s_nop 1
    v_add_u32_dpp v122, v122, v122 row_shr:2 row_mask:0xf bank_mask:0xf bound_ctrl:0
    s_nop 1
    v_add_u32_dpp v122, v122, v122 row_shr:4 row_mask:0xf bank_mask:0xf bound_ctrl:0
    s_nop 1
    v_add_u32_dpp v122, v122, v122 row_shr:8 row_mask:0xf bank_mask:0xf bound_ctrl:0
    s_nop 1
    v_add_u32_dpp v122, v122, v122 row_bcast:15 row_mask:0xa bank_mask:0xf
    s_nop 1
    v_add_u32_dpp v122, v122, v122 row_bcast:31 row_mask:0xc bank_mask:0xf
    s_nop 0
    v_readlane_b32 s42, v122, 63
    v_sub_u32 v121, v122, v121
    v_lshlrev_b32 v124, 4, v121
    v_sub_u32 v124, v{vLL}, v124
    s_cmp_gt_u32 s42, 1024
    s_cbranch_scc1 L_slow
    s_add_u32 s42, s42, 3
    s_lshr_b32 s43, s42, 6
    s_bfe_u32 s44, s42, 0x40002
    s_cmp_lt_u32 s3, s44
    s_addc_u32 s45, s43, 0
    s_mul_i32 s46, s3, s43
    s_min_u32 s47, s3, s44
    s_add_u32 s46, s46, s47
    s_lshl_b32 s46, s46, 2
    s_lshl_b32 s47, s45, 2
    v_subrev_u32 v123, s46, v121
    v_cmp_gt_u32 vcc, s47, v123
    v_lshlrev_b32 v123, 2, v123
    s_and_b32 vcc_hi, vcc_hi, 0x3ffff
    v_cndmask_b32 v123, 0, v123, vcc
    ds_permute_b32 v125, v123, v{vFOUR}''')
    for g in range(4):
        if g: A('s_add_u32 s46, s46, s45')
        A(f"""v_cmp_ge_u32 vcc, s46, v122
        s_lshl_b32 s{56+g}, s46, 4
        s_and_b64 vcc, vcc, s[50:51]
        s_bcnt1_i32_b64 s{52+g}, vcc
        v_readlane_b32 s47, v124, s{52+g}
        s_add_u32 s{56+g}, s{56+g}, s47""")
    A(f"""v_mov_b32 v{vA}, s56
    v_mov_b32 v{vLB}, s52
    s_mov_b32 exec_lo, 0xffff0000
    v_mov_b32 v{vA}, s57
    v_mov_b32 v{vLB}, s53
    s_mov_b32 exec_lo, 0
    v_mov_b32 v{vA}, s58
    v_mov_b32 v{vLB}, s54
    s_mov_b32 exec_hi, 0xffff0000
    v_mov_b32 v{vA}, s59
    v_mov_b32 v{vLB}, s55
    s_mov_b64 exec, -1
    ds_read_b128 v[{vR}:{vR+3}], v{vA}
    v_lshl_add_u32 v{vB}, v{vLB}, 9, v1
    s_mov_b32 s44, 0x0c070600
    ds_read_b128 v[{vEA}:{vEA+3}], v{vB} offset:{EA}
    v_mul_u32_u24 v{vLB}, {LS}, v{vLB}
    v_add_u32 v{vLB}, {LISTS}, v{vLB}
    v_add_u32 v{vB}, {VB0}, v{vB}
    s_cmp_eq_u32 s45, 0
    s_cbranch_scc1 L_done
    s_waitcnt lgkmcnt({W(1)})""")
    gpair(0); gpair(1)
    readT(vR)
    A(f"""v_cmp_ne_u32 s[42:43], 0, v125
    s_mov_b32 s50, 0x00030003
    s_mov_b32 s51, 0x00030003
    s_lshr_b64 s[52:53], s[42:43], s45
    s_lshr_b64 s[54:55], s[52:53], s45
    s_lshr_b64 s[56:57], s[54:55], s45
    s_pack_ll_b32_b16 s42, s42, s52
    s_pack_ll_b32_b16 s43, s54, s56
    s_andn2_b64 s[42:43], s[42:43], s[48:49]""")
    stamp(6,14)
    A('s_setprio 1' if OPT['park'] else 's_setprio 0')
    def body(tag, last, sub, adv):
        secF()
        A(f"""s_and_b64 s[46:47], s[42:43], s[50:51]
        s_cbranch_scc1 L_evt_{tag}""")
        A.label(f'L_eback_{tag}')
        if not last: A('s_lshr_b64 s[42:43], s[42:43], 1')
        A('s_waitcnt lgkmcnt(0)')
        secPE()
        readT(vR+2)
        if not last: A(f'ds_read_b128 v[{vR}:{vR+3}], v{vA} offset:{16*sub}')
        A('s_waitcnt vmcnt(2)')
        secRest(vD)
        A('s_waitcnt lgkmcnt(0)')
        if not last: gpair(0)
        secTail()
        secF()
        secPE()
        if not last:
            readT(vR)
            if adv: A(f'v_add_u32 v{vA}, {adv}, v{vA}')
        A(f's_waitcnt vmcnt({0 if last else 2})')
        secRest(vD+8)
        if not last: gpair(1)
        secTail()
    U_=1
    phases=[(3,OPT['r2']),(2,OPT['r1']),(1,1)] if OPT['r2'] else [(1,1)]
    tags=[]
    for n,(pr,rem) in enumerate(phases):
        PRIO[0]=pr
        nxt = f'L_ph{n+1}' if n+1<len(phases) else 'L_last'
        A.label(f'L_ph{n}')
        A(f"""s_cmp_le_u32 s45, {rem}
        s_cbranch_scc1 {nxt}""")
        A.label(f'L_loop{n}')
        body(f'b{n}', False, 1, 16); tags.append(f'b{n}')
        A(f"""s_sub_u32 s45, s45, 1
        s_cmp_gt_u32 s45, {rem}
        s_cbranch_scc1 L_loop{n}""")
    A.label('L_last')
    body('z', True, 0, 0)
    secF()
    A(f"""s_setprio 0
    v_subrev_u32 v20, {VB0}, v{vB}
    v_lshrrev_b32 v20, 6, v20
    v_lshlrev_b32 v21, 5, v0
    v_add_u32 v21, {FIN}, v21
    s_mov_b64 exec, s[48:49]
    ds_max_u32 v20, v21 offset:{FL}
    ds_min_u32 v20, v21 offset:{FL+4}
    s_mov_b64 exec, -1""")
    A.label('L_done')
    stamp(7,15)
    A.label('L_epi')
    A(f"""v_lshrrev_b32 v24, 4, v0
    v_lshl_add_u32 v25, v24, 9, v1
    v_add_u32 v26, {UU}, v25
    v_lshlrev_b32 v30, 3, v0
    v_lshlrev_b32 v24, 3, v24
    v_add_u32 v31, v24, v30
    s_lshl_b32 s45, {sROW}, 7
    ds_read_b64 v[2:3], v31 offset:{XS}
    ds_read_b128 v[40:43], v26
    ds_read_b128 v[56:59], v25 offset:{EA}
    v_add_u32 v26, {MID}, v25
    s_mov_b32 s44, {f2u(1e-6*HS):#x}
    s_mov_b32 s43, {f2u(HS):#x}
    s_waitcnt lgkmcnt(0)
    s_barrier""")
    stamp(8)
    A(f"""ds_write_b128 v25, v[{vNUM}:{vNUM+3}] offset:{FIN}
    ds_write_b128 v25, v[{vDEN}:{vDEN+3}] offset:{FIN+256}
    ds_read_b64 v[28:29], v24 offset:{FL}
    ds_read_b128 v[32:35], v26
    ds_read_b128 v[36:39], v26 offset:256""")
    for i in range(4): A(f'v_rcp_f32 v{56+i}, v{56+i}')
    A(f"""v_lshlrev_b32 v44, 16, v2
    v_and_b32 v45, 0xffff0000, v2
    v_lshlrev_b32 v46, 16, v3
    v_and_b32 v47, 0xffff0000, v3""")
    for i in range(4): A(f'v_mul_f32 v{56+i}, s44, v{56+i}')
    A(f"""v_cmp_gt_u32 vcc, {NB*16}, v0
    s_and_b64 exec, exec, vcc
    s_mov_b64 s[46:47], exec
    s_waitcnt lgkmcnt(0)
    v_min_u32 v28, {FIN+63*512}, v28
    v_add_u32 v27, v29, v1
    s_barrier
    s_cbranch_execz L_fin""")
    A.label('L_el')
    A(f"""v_cmp_le_u32 vcc, v29, v28
    s_and_b64 exec, exec, vcc
    s_cbranch_execz L_el_done
    ds_read_b128 v[48:51], v27
    ds_read_b128 v[52:55], v27 offset:256
    v_add_u32 v27, 512, v27
    v_add_u32 v29, 512, v29
    s_waitcnt lgkmcnt(0)
    v_pk_add_f32 v[32:33], v[32:33], v[48:49]
    v_pk_add_f32 v[34:35], v[34:35], v[50:51]
    v_pk_add_f32 v[36:37], v[36:37], v[52:53]
    v_pk_add_f32 v[38:39], v[38:39], v[54:55]
    s_branch L_el""")
    A.label('L_el_done')
    A('s_mov_b64 exec, s[46:47]')
    for i in range(4): A(f'v_fma_f32 v{36+i}, v{36+i}, s43, v{56+i}')
    for i in range(4): A(f'v_rcp_f32 v{36+i}, v{36+i}')
    A('s_nop 0')
    for i in range(4): A(f'v_fmac_f32 v{40+i}, v{32+i}, v{36+i}')
    for i in range(4): A(f'v_mul_f32 v{32+i}, 0, v{40+i}')
    for i in range(4): A(f'v_max_f32 v{40+i}, v{40+i}, v{32+i}')
    for i in range(4): A(f'v_add_f32 v{40+i}, v{40+i}, v{44+i}')
    A("""v_cvt_pk_bf16_f32 v40, v40, v41
    v_cvt_pk_bf16_f32 v41, v42, v43
    buffer_store_dwordx2 v[40:41], v30, s[36:39], s45 offen""")
    A.label('L_fin')
    if OPT['stamps']:
        A('s_waitcnt vmcnt(0)'); stamp(9)
    stamp_flush()
    A.label('L_end')
    A('s_endpgm')
    for tag,sub in [(t,1) for t in tags]+[('z',None)]:
        A.label(f'L_evt_{tag}')
        A(f"""s_and_b64 s[52:53], s[46:47], s[48:49]
        s_cbranch_scc0 L_ev2_{tag}
        s_mul_i32 exec_lo, s52, 0xffff
        s_mul_i32 exec_hi, s53, 0xffff
        ds_write_b128 v{vB}, v[{vNUM}:{vNUM+3}] offset:{MID-VB0}
        ds_write_b128 v{vB}, v[{vDEN}:{vDEN+3}] offset:{MID-VB0+256}
        ds_read_b128 v[{vEA}:{vEA+3}], v{vB}
        ds_read_b128 v[{vNUM}:{vNUM+3}], v{vZ}
        ds_read_b128 v[{vDEN}:{vDEN+3}], v{vZ}
        v_add_u32 v{vB}, 512, v{vB}
        s_mov_b64 exec, -1""")
        A.label(f'L_ev2_{tag}')
        if sub is not None:
            A(f"""s_lshr_b64 s[46:47], s[46:47], 1
            s_and_b64 s[46:47], s[46:47], s[48:49]
            s_cbranch_scc0 L_eback_{tag}
            s_mul_i32 exec_lo, s46, 0xffff
            s_mul_i32 exec_hi, s47, 0xffff
            v_add_u32 v{vLB}, {LS}, v{vLB}
            v_subrev_u32 v{vA}, {16*sub}, v{vLB}
            s_mov_b64 exec, -1""")
        A(f's_branch L_eback_{tag}')
    A.label('L_gowait')
    A(f"""s_sleep 4
    global_load_dwordx2 v[50:51], v46, s[24:25] sc1
    s_add_u32 s43, s43, 1
    s_cmp_lt_u32 s43, {OPT['tmo']}
    s_cbranch_scc1 L_gop
    v_mov_b32 v16, {FLAGP}
    v_mov_b32 v17, 32
    ds_or_b32 v16, v17
    ds_or_b32 v16, v17 offset:{FLAGC-FLAGP}
    ds_or_b32 v16, v17 offset:{FLAGT-FLAGP}
    s_waitcnt vmcnt(0)
    s_branch L_goback""")
    A.label('L_repoll')
    A(f"""s_mov_b64 exec, vcc
    s_add_u32 s43, s43, 1
    s_cmp_gt_u32 s43, {OPT['tmo']}
    s_cbranch_scc1 L_timeout0
    s_sleep {OPT['slp']}""")
    poll1()
    A('s_branch L_poll')
    A.label('L_tpw')
    A(f"""v_xor_b32 v{vNEW}, 16, v{vNEW}
    v_cmp_eq_u64 vcc, v[{vTAG}:{vTAG+1}], v[{vNEW}:{vNEW+1}]
    s_cbranch_vccnz L_timeout
    s_add_u32 s43, s43, 1
    s_cmp_gt_u32 s43, {OPT['tmo']}
    s_cbranch_scc1 L_timeout
    s_sleep {OPT['slp']}
    global_load_dwordx2 v[{vNEW}:{vNEW+1}], v{vFT}, s[26:27] {OPT['pol']}
    s_branch L_tp""")
    A.label('L_ebad')
    setslow(FLAGP)
    A('s_branch L_ebad_back')
    A.label('L_timeout0')
    A(f"""s_mov_b64 exec, -1
    v_mov_b32 v{vNEW}, -1
    v_mov_b32 v2, 64
    s_branch L_r1""")
    A.label('L_timeout')
    A('s_mov_b64 exec, -1')
    A(f"""v_mov_b32 v10, {FLAGC}
    v_mov_b32 v11, 16
    ds_or_b32 v10, v11
    s_branch L_b4""")
    A.label('L_wbad')
    setslow(FLAGC)
    A('s_branch L_wbad_back')
    A.label('L_rare')
    A(f"""v_cmp_lt_u32 vcc, 0xffffff, v{vNEW}
    s_cbranch_vccnz L_timeout
    v_lshl_add_u32 v8, v10, 2, v114
    v_lshl_add_u32 v8, v9, 4, v8
    v_add_u32 v8, 128, v8
    v_lshlrev_b32 v7, 2, v9
    v_sub_u32 v7, v2, v7
    v_subrev_u32 v7, 32, v7""")
    A.label('L_rl')
    A("""v_cmp_lt_i32 vcc, 0, v7
    s_cbranch_vccz L_rare_back
    s_mov_b64 exec, vcc
    global_load_dwordx4 v[88:91], v8, s[26:27] sc1
    s_mov_b64 exec, -1
    s_waitcnt vmcnt(0)""")
    insert(list(range(88,92)),74,82,44,0,7)
    A('s_waitcnt lgkmcnt(0)')
    insert2(4,74,82,44)
    A("""v_add_u32 v8, 64, v8
    v_subrev_u32 v7, 16, v7
    s_branch L_rl""")
    A.label('L_slow')
    A(f"""s_setprio 0
    s_waitcnt lgkmcnt(0)
    s_barrier
    v_lshlrev_b32 v8, 4, v0
    v_lshlrev_b32 v10, 3, v0
    v_lshlrev_b32 v11, 1, v{vLANE}
    v_lshlrev_b32 v5, 2, v{vLANE}
    v_mov_b32 v9, v{vLANE}
    v_mov_b32 v60, 1.0
    v_mov_b32 v61, 1.0
    v_mov_b32 v62, 1.0
    v_mov_b32 v63, 1.0
    v_add_u32 v7, {LISTS}, v8
    s_mov_b32 s42, 0x05040100
    s_mov_b32 s43, 0x07060302
    global_load_dwordx2 v[20:21], v10, s[14:15]
    global_load_dwordx2 v[22:23], v10, s[20:21]
    global_load_ushort v4, v11, s[16:17]
    v_lshrrev_b32 v28, 4, v0
    v_lshl_add_u32 v28, v28, 9, v1
    ds_write_b128 v28, v[60:63] offset:{EA}
    s_cmp_lt_u32 s3, 12
    s_cbranch_scc1 L_s_noa
    v_add_u32 v120, {RAWA}, v120""")
    for r in range(4):
        A(f"""ds_write2_b32 v120, v{96+r}, v{100+r} offset0:{64*r} offset1:{64*r+1}
        ds_write2_b32 v120, v{104+r}, v{108+r} offset0:{64*r+2} offset1:{64*r+3}""")
    A.label('L_s_noa')
    A(f"""s_waitcnt vmcnt(0)
    v_perm_b32 v24, v22, v20, s42
    v_perm_b32 v25, v22, v20, s43
    v_perm_b32 v26, v23, v21, s42
    v_perm_b32 v27, v23, v21, s43
    ds_write_b128 v7, v[24:27]
    v_lshlrev_b32 v4, 16, v4
    v_add_u32 v6, {LISTS}, v5
    s_waitcnt lgkmcnt(0)
    s_barrier""")
    for k in range(64): A(f'ds_read_b32 v{64+k}, v6 offset:{256*k}')
    A(f"""s_mul_i32 s44, s3, {E//16}
    s_add_u32 s45, s44, {E//16}
    s_mov_b32 s53, {f2u(-L2E):#x}
    s_mov_b32 s54, {f2u(HS):#x}
    s_waitcnt lgkmcnt(0)""")
    A.label('L_s_scan')
    A(f"""v_add_u32 v30, s44, v9
    v_cmp_gt_u32 s[46:47], s45, v30
    v_min_u32 v30, {E-1}, v30
    v_lshlrev_b32 v31, 2, v30
    v_lshlrev_b32 v30, 1, v30
    global_load_dword v32, v31, s[10:11]
    global_load_dword v33, v31, s[8:9]
    global_load_ushort v34, v30, s[6:7]
    s_waitcnt vmcnt(0)
    v_subrev_u32 v32, {sROW}, v32
    v_cmp_gt_u32 vcc, {NB}, v32
    v_min_u32 v33, {N-1}, v33
    v_lshlrev_b32 v34, 16, v34
    s_and_b64 s[46:47], s[46:47], vcc""")
    A.label('L_s_edge')
    A(f"""s_cmp_eq_u64 s[46:47], 0
    s_cbranch_scc1 L_s_next
    s_ff1_i32_b64 s48, s[46:47]
    s_bitset0_b64 s[46:47], s48
    v_readlane_b32 s49, v32, s48
    v_readlane_b32 s50, v33, s48
    v_readlane_b32 s51, v34, s48
    s_nop 1
    s_lshl_b32 s50, s50, 7
    v_add_u32 v20, s50, v11
    global_load_ushort v21, v20, s[4:5]
    s_lshl_b32 s50, s49, 8
    s_add_u32 s50, s50, {RAWA}
    v_add_u32 v22, s50, v5
    ds_read_b32 v23, v22
    s_lshl_b32 s50, s49, 9
    s_add_u32 s50, s50, {MID}
    v_add_u32 v22, s50, v5
    v_mov_b32 v24, 0
    v_mov_b32 v25, 0
    s_waitcnt vmcnt(0) lgkmcnt(0)
    v_lshlrev_b32 v21, 16, v21
    v_fmac_f32 v23, s51, v4""")
    for k in range(64):
        A(f"""v_readlane_b32 s52, v21, {k}
        v_lshlrev_b32 v26, 16, v{64+k}
        v_and_b32 v27, 0xffff0000, v{64+k}
        v_fmac_f32 v24, s52, v26
        v_fmac_f32 v25, s52, v27""")
    A("""v_add_f32 v23, v23, v24
    v_mul_f32 v23, s53, v23
    v_exp_f32 v23, v23
    v_mul_f32 v25, s54, v25
    v_add_f32 v23, 1.0, v23
    v_rcp_f32 v23, v23
    s_nop 0
    v_mul_f32 v25, v25, v23
    ds_add_f32 v22, v25
    ds_add_f32 v22, v23 offset:256
    s_branch L_s_edge""")
    A.label('L_s_next')
    A(f"""s_add_u32 s44, s44, 64
    s_cmp_lt_u32 s44, s45
    s_cbranch_scc1 L_s_scan
    s_branch L_epi""")

hdr = open('standalone__edge_featured_mpnn_gatedgcn__graph.s.ref').read().split('; Override launch')[0]
kernel()
out = hdr + f"""; @launch grid=(256,1,1) block=(1024,1,1) lds={LDS}
.amdgcn_target "amdgcn-amd-amdhsa--gfx950"
.text
.globl {KN}
""" + A.text() + f""".section .rodata,"a"
.p2align 6
.amdhsa_kernel {KN}
  .amdhsa_next_free_vgpr 128
  .amdhsa_next_free_sgpr 100
  .amdhsa_accum_offset 128
  .amdhsa_group_segment_fixed_size 0
  .amdhsa_kernarg_size 96
  .amdhsa_user_sgpr_count 2
  .amdhsa_user_sgpr_kernarg_segment_ptr 1
  .amdhsa_system_sgpr_workgroup_id_x 1
  .amdhsa_float_denorm_mode_32 3
.end_amdhsa_kernel
"""
open(sys.argv[1],'w').write(out)
```

```python
import sys, struct
N=12500; E=800000; NB=49; CH=3128
WS_DAT=1<<17; DST=12544; WS_ENT=(4<<20)+(1<<17); WS_FLG=(4<<20)+(1<<16); WS_TAB=WS_ENT+(1<<19); WS_STAMP=16<<20
WS_SIZE=268435456
KN="standalone__edge_featured_mpnn_gatedgcn__graph_kernel"
def f2u(x): return struct.unpack('<I', struct.pack('<f', x))[0]
L2E=1.4426950408889634
KSH=11.0; HS=64.0
class Asm:
    def __init__(s): s.L=[]
    def __call__(s, x):
        for ln in x.strip('\n').split('\n'): s.L.append('    '+ln.strip())
    def label(s, n): s.L.append(n+':')
    def raw(s, x): s.L.append(x)
    def text(s): return '\n'.join(s.L)+'\n'
OPT = dict(stamps=0, fp=16, pfb=6, dc=26, dc2=2, dt=8, da=4, df=0, wsb=0, tlb=0, es=0, ftl=1, w4=1, pol='sc1', rp=8, d0=0, pfc=0, r2=5, r1=2, park=1, gsc='', slp=4, nogather=0, tmo=20000, cpf=1, unr=1, x='')
for a in sys.argv[2:]:
    k,v=a.split('=')
    assert k in OPT, k
    OPT[k] = int(v) if v.lstrip('-').isdigit() else v.replace('_',' ')
A=Asm()
WSB=OPT['wsb']<<20
WS_DAT+=WSB; WS_ENT+=WSB; WS_FLG+=WSB; WS_TAB+=WSB
SB=66
def stamp_init():
    if OPT['stamps']:
        for i in range(16): A(f's_mov_b64 s[{SB+2*i}:{SB+2*i+1}], 0')
def stamp(i, cyc=None):
    if OPT['stamps']:
        A(f's_memrealtime s[{SB+2*i}:{SB+2*i+1}]')
        if cyc is not None: A(f's_memtime s[{SB+2*cyc}:{SB+2*cyc+1}]')
def stamp_flush():
    if not OPT['stamps']: return
    A(f'''s_waitcnt lgkmcnt(0)
    s_mov_b64 exec, 1
    s_lshl_b32 s98, s2, 4
    s_add_u32 s98, s98, s3
    s_lshl_b32 s98, s98, 7
    s_add_u32 s98, s98, {WS_STAMP + 256*16*128}
    v_mov_b32 v1, s98''')
    for i in range(16):
        A(f'''v_mov_b32 v2, s{SB+2*i}
        v_mov_b32 v3, s{SB+2*i+1}
        global_store_dwordx2 v1, v[2:3], s[26:27] offset:{8*i}
        s_nop 1''')
def W(n): return 0 if OPT['stamps'] else n

CNT1=0; CNT2=1024; FLAGP=1536; FLAGC=1540; TCNT=1544; SCNT=1548; ZERO=1552; DCNT=1568; FLAGT=1572; NONCE=1576; ACNT=1584; ECNT=1588; TSLOW=1592
FL=1792
XS=2304; XST=136
T1=11008; T2=T1+32768
EA=T2+256
UU=T2+256+64*512
MID=T2+65536
LISTS=MID+50*512
LS=528
LDS=163840
WROW=160; WMAT=64*WROW
WBV=MID; WAU=WBV+2*WMAT; BASE=WAU+2*WMAT; SLOT=BASE+1024
VB0=EA+512
FIN=T1; RAWA=T1
assert XS+64*XST<=T1 and SLOT+12544<=LDS and LISTS+50*LS<=LDS and LDS<=163840 and MID+256-VB0<=65535-16
assert SLOT%16==0 and LISTS%16==0 and WAU%16==0
sROW='s60'; sBK='s61'
vWC=4; vEA=8; vDEN=12; vNUM=16; vT=20; vM=28; vSD=32; vSN=36; vR=40; vX=44; vTT=48; vD=64
vA=80; vLB=81; vB=82; vG=84
vZ=112; vFT=113; vNEW=94; vFA=115; vTAG=92; vLANE=116; vCA=117; vLL=118; vFOUR=119; vMAG=126
ACC0=96

PRIO=[1]
def secF():
    if 'f' in OPT['x']: return
    if OPT['park']:
        A('s_setprio 0')
        for i in range(4): A(f'v_fmac_f32 v{vDEN+i}, v{vSD+i}, v{vM+i}')
        for i in range(4): A(f'v_fmac_f32 v{vNUM+i}, v{vSN+i}, v{vM+i}')
        A(f's_setprio {PRIO[0]}')
    else:
        for i in range(2): A(f'v_pk_fma_f32 v[{vDEN+2*i}:{vDEN+2*i+1}], v[{vSD+2*i}:{vSD+2*i+1}], v[{vM+2*i}:{vM+2*i+1}], v[{vDEN+2*i}:{vDEN+2*i+1}]')
        for i in range(2): A(f'v_pk_fma_f32 v[{vNUM+2*i}:{vNUM+2*i+1}], v[{vSN+2*i}:{vSN+2*i+1}], v[{vM+2*i}:{vM+2*i+1}], v[{vNUM+2*i}:{vNUM+2*i+1}]')
def secPE():
    if 'p' in OPT['x']: return
    for i in range(4): A(f'v_pk_mul_f32 v[{vT+2*i}:{vT+2*i+1}], v[{vTT+2*i}:{vTT+2*i+1}], v[{vTT+8+2*i}:{vTT+9+2*i}]')
def readT(r0):
    if 't' in OPT['x']: return
    if 'a' in OPT['x']:
        A(f'''v_and_or_b32 v{vX}, v{r0}, s40, v1
        v_and_or_b32 v{vX+1}, v{r0+1}, s40, v1
        v_perm_b32 v{vX+2}, v{r0}, v1, s41
        v_perm_b32 v{vX+3}, v{r0+1}, v1, s41''')
        return
    A(f'''v_and_or_b32 v{vX}, v{r0}, s40, v1
    v_and_or_b32 v{vX+1}, v{r0+1}, s40, v1
    v_perm_b32 v{vX+2}, v{r0}, v1, s41
    v_perm_b32 v{vX+3}, v{r0+1}, v1, s41
    ds_read_b128 v[{vTT}:{vTT+3}], v{vX} offset:{T1}
    ds_read_b128 v[{vTT+4}:{vTT+7}], v{vX+1} offset:{T1}
    ds_read_b128 v[{vTT+8}:{vTT+11}], v{vX+2} offset:{T2}
    ds_read_b128 v[{vTT+12}:{vTT+15}], v{vX+3} offset:{T2}''')
def secRest(d0):
    if 'q' in OPT['x']: return
    for i in range(4):
        A(f'v_pk_fma_f32 v[{vT+2*i}:{vT+2*i+1}], v[{vT+2*i}:{vT+2*i+1}], v[{d0+2*i}:{d0+2*i+1}], v[{vEA+2*(i%2)}:{vEA+2*(i%2)+1}]')
    for i in range(2):
        A(f'v_pk_mul_f32 v[{vM+2*i}:{vM+2*i+1}], v[{vT+2*i}:{vT+2*i+1}], v[{vT+4+2*i}:{vT+5+2*i}]')
    if 'm' in OPT['x']: return
    for i in range(4): A(f'v_fma_mix_f32 v{vSN+i}, v{vT+4+i}, v{d0+i}, 0 op_sel_hi:[0,1,0]')
    for i in range(4): A(f'v_fma_mix_f32 v{vSN+i}, v{vT+i}, v{d0+4+i}, v{vSN+i} op_sel_hi:[0,1,0]')
def secTail():
    if 'r' in OPT['x']: return
    for i in range(4): A(f'v_rcp_f32 v{vM+i}, v{vM+i}')
    for i in range(2):
        A(f'v_pk_add_f32 v[{vSD+2*i}:{vSD+2*i+1}], v[{vT+2*i}:{vT+2*i+1}], v[{vT+4+2*i}:{vT+5+2*i}]')
def gpair(h):
    A(f'''v_perm_b32 v{vG}, v{vR+2*h}, v1, s44
    v_perm_b32 v{vG+1}, v{vR+2*h+1}, v1, s44''')
    if OPT['nogather']: return
    for i in range(2):
        A(f'buffer_load_dwordx4 v[{vD+8*h+4*i}:{vD+8*h+4*i+3}], v{vG+i}, s[32:35], 0 offen {OPT["gsc"]}')

def insert(recs, addr, pos, msk, r0, vrem, last=None):
    for i,r in enumerate(recs):
        c_,v_ = last if (last and i==len(recs)-1) else (r0+i, vrem)
        A(f'''v_cmp_lt_i32 s[{msk+2*i}:{msk+2*i+1}], {c_}, v{v_}
        v_alignbit_b32 v{addr+i}, v{r}, v{r}, 25
        v_and_b32 v{addr+i}, 0x1bc, v{addr+i}
        s_mov_b64 exec, s[{msk+2*i}:{msk+2*i+1}]
        ds_add_rtn_u32 v{pos+i}, v{addr+i}, v{vFOUR} offset:{CNT2}
        s_mov_b64 exec, -1''')
    for i,r in enumerate(recs): A(f'v_and_b32 v{addr+i}, 0x87ff0000, v{r}')
    for i,r in enumerate(recs): A(f'v_fma_f32 v{addr+i}, v{addr+i}, s64, v{vMAG}')
    for i,r in enumerate(recs): A(f'v_and_b32 v{addr+i}, 0x7ffe, v{addr+i}')
    for i,r in enumerate(recs): A(f'v_lshrrev_b32_sdwa v{addr+i}, s65, v{r} dst_sel:WORD_1 dst_unused:UNUSED_PRESERVE src0_sel:DWORD src1_sel:WORD_0')
def insert2(n, data, pos, msk):
    for i in range(n):
        A(f'''s_mov_b64 exec, s[{msk+2*i}:{msk+2*i+1}]
        ds_write_b32 v{pos+i}, v{data+i}''')
    A('s_mov_b64 exec, -1')

def part_a(D, B, Aa, P):
    for i in range(4):
        A(f'''v_mul_u32_u24 v{B+i}, 21400, v{D+i}
        v_lshrrev_b32 v{B+i}, 20, v{B+i}
        v_lshlrev_b32 v{Aa+i}, 2, v{B+i}
        ds_add_rtn_u32 v{P+i}, v{Aa+i}, v{vFOUR} offset:{CNT1}''')
    for i in range(4):
        A(f'v_mad_i32_i24 v{D+i}, v{B+i}, s44, v{D+i}')
    for i in range(4):
        A(f'v_add_u32 v{Aa+i}, {BASE}, v{Aa+i}')
def part_b(D, S, Ee, T, P, Q):
    A(f'''v_lshlrev_b32 v{T}, 16, v{Ee}
    v_lshlrev_b32 v{T+2}, 16, v{Ee+1}
    v_mul_f32 v{T}, s45, v{T}
    v_mul_f32 v{T+1}, s45, v{Ee}
    v_mul_f32 v{T+2}, s45, v{T+2}
    v_mul_f32 v{T+3}, s45, v{Ee+1}''')
    for i in range(4):
        A(f'''v_add_lshl_u32 v{S+i}, v{S+i}, 1, 2
        v_bfi_b32 v{S+i}, 3, v{D+i}, v{S+i}
        v_lshlrev_b32 v{D+i}, 25, v{D+i}
        v_bfi_b32 v{D+i}, s46, v{D+i}, v{T+i}
        v_bfi_b32 v{S+i}, s47, v{D+i}, v{S+i}''')
    A(f'''v_or3_b32 v{T}, v{T}, v{T+1}, v{T+2}
    v_or_b32 v{T}, v{T}, v{T+3}
    v_and_b32 v{T}, s46, v{T}
    v_cmp_ne_u32 vcc, 0, v{T}
    s_or_b64 s[52:53], s[52:53], vcc
    s_waitcnt lgkmcnt(0)''')
    for i in range(4): A(f'v_add_u32 v{P+i}, v{P+i}, v{Q+i}')
    for i in range(4): A(f'ds_write_b32 v{P+i}, v{S+i}')

def gemm_run(ACC1):
    A("""ds_read2_b64 v[84:87], v13 offset0:0 offset1:4
    ds_read2_b64 v[88:91], v13 offset0:8 offset1:12""")
    def rd(m,t):
        for mm in range(4):
            r=20+32*m+8*t+2*mm
            A(f'ds_read_b64_tr_b16 v[{r}:{r+1}], v12 offset:{m*WMAT+mm*16*WROW+t*32}')
    seq=[(m,t) for m in range(2) for t in range(4)]
    rd(*seq[0]); rd(*seq[1]); rd(*seq[2])
    for n,(m,t) in enumerate(seq):
        rem=min(len(seq)-1-n,2)
        A(f's_waitcnt lgkmcnt({0 if OPT["stamps"] and n==0 else 4*rem})')
        acc=(ACC0 if m==0 else ACC1)+4*t; f=20+32*m+8*t
        A(f"""v_mfma_f32_16x16x32_bf16 v[{acc}:{acc+3}], v[84:87], v[{f}:{f+3}], 0
        v_mfma_f32_16x16x32_bf16 v[{acc}:{acc+3}], v[88:91], v[{f+4}:{f+7}], v[{acc}:{acc+3}]""")
        if n+3<len(seq): rd(*seq[n+3])
    A(f"""v_mov_b32 v15, 256
    s_mov_b64 exec, 1
    ds_add_u32 v{vZ}, v15 offset:{DCNT-ZERO}
    s_mov_b64 exec, -1""")
def stageW(R, addr):
    A(f"""v_perm_b32 v40, v{R+2}, v{R}, s48
    v_perm_b32 v41, v{R+2}, v{R}, s49
    v_perm_b32 v42, v{R+3}, v{R+1}, s48
    v_perm_b32 v43, v{R+3}, v{R+1}, s49
    ds_write2_b32 v{addr}, v40, v41 offset0:0 offset1:8
    ds_write2_b32 v{addr}, v42, v43 offset0:16 offset1:24""")
def flagaddr(dst, src, tmp):
    FP=OPT['fp']; lgfp={1:0,2:1,4:2,8:3,16:4,32:5}[FP]
    A(f"""v_lshrrev_b32 v{tmp}, {lgfp}, v{src}
    v_and_b32 v{dst}, {FP-1}, v{src}
    v_lshlrev_b32 v{dst}, 3, v{dst}
    v_lshl_add_u32 v{dst}, v{tmp}, 7, v{dst}
    v_add_u32 v{dst}, {WS_FLG}, v{dst}""")
def setslow(addr):
    A(f"""v_mov_b32 v16, {addr}
    v_mov_b32 v17, 16
    ds_or_b32 v16, v17""")

def spin(label, addr, tmp, n, slp=0):
    A.label(label)
    A(f"""ds_read_b32 v{tmp}, v{addr}
    s_waitcnt lgkmcnt(0)
    v_cmp_gt_u32 vcc, {n}, v{tmp}""")
    if OPT['es']:
        A(f"""s_cbranch_vccz {label}_x
        s_sleep {OPT['es']}
        s_branch {label}""")
        A.label(label+'_x')
    else: A(f's_cbranch_vccnz {label}')

def scan(v, first=None):
    src = first if first is not None else v
    A(f"""s_nop 1
    v_add_u32_dpp v{v}, v{src}, v{src} row_shr:1 row_mask:0xf bank_mask:0xf bound_ctrl:0
    s_nop 1
    v_add_u32_dpp v{v}, v{v}, v{v} row_shr:2 row_mask:0xf bank_mask:0xf bound_ctrl:0
    s_nop 1
    v_add_u32_dpp v{v}, v{v}, v{v} row_shr:4 row_mask:0xf bank_mask:0xf bound_ctrl:0
    s_nop 1
    v_add_u32_dpp v{v}, v{v}, v{v} row_shr:8 row_mask:0xf bank_mask:0xf bound_ctrl:0
    s_nop 1
    v_add_u32_dpp v{v}, v{v}, v{v} row_bcast:15 row_mask:0xa bank_mask:0xf
    s_nop 1
    v_add_u32_dpp v{v}, v{v}, v{v} row_bcast:31 row_mask:0xc bank_mask:0xf""")
def ebar(label, n):
    A(f"""s_mov_b64 exec, 1
    s_waitcnt lgkmcnt(0)
    ds_add_u32 v19, v{vFOUR}""")
    spin(label,19,15,n)
    A('s_mov_b64 exec, -1')

def polladdr():
    A(f"""v_lshrrev_b32 v114, 2, v0
    s_lshl_b32 s41, {sBK}, 3
    s_add_u32 s41, s41, {WS_ENT}
    v_lshl_add_u32 v{vFA}, v114, 11, s41""")
def nodeconst():
    A(f"""v_and_b32 v17, 3, v{vLANE}
    v_and_b32 v{vCA}, 60, v{vLANE}
    v_lshl_add_u32 v{vCA}, v17, 7, v{vCA}
    v_min_u32 v16, 49, v{vLANE}
    v_mul_u32_u24 v{vLL}, {LS-16}, v16
    v_lshl_add_u32 v{vLL}, v{vLANE}, 4, v{vLL}
    v_add_u32 v{vLL}, {LISTS}, v{vLL}""")
def poll1():
    A(f"global_load_dwordx2 v[{vNEW}:{vNEW+1}], v{vFA}, s[26:27] {OPT['pol']}")
def readtag():
    A(f"ds_read_b64 v[{vTAG}:{vTAG+1}], v{vZ} offset:{NONCE-ZERO}")
def kernel():
    ACC1=20
    RPM=(1<<OPT['rp'])-1
    A.raw('.p2align 8'); A.raw(f'.type {KN},@function'); A.label(KN)
    A(f"""s_cmp_ge_u32 s2, 256
    s_cbranch_scc1 L_end
    s_load_dwordx16 s[4:19], s[0:1], 0
    s_load_dwordx8 s[20:27], s[0:1], 64
    v_lshrrev_b32 v1, 6, v0""")
    stamp_init(); stamp(1)
    A(f"""v_lshlrev_b32 v3, 4, v0
    v_readfirstlane_b32 s3, v1
    v_and_b32 v{vLANE}, 63, v0
    v_and_b32 v1, 15, v0
    s_and_b32 s40, s2, 7
    s_lshl_b32 s40, s40, 5
    s_lshr_b32 s59, s2, 3
    s_add_u32 {sBK}, s59, s40
    s_mul_i32 {sROW}, {sBK}, {NB}
    s_cmp_ge_u32 s3, 8
    s_cbranch_scc1 L_noedge
    s_mul_i32 s40, s2, {CH*4}
    v_add_u32 v12, s40, v3
    v_add_u32 v13, 8192, v12
    v_lshrrev_b32 v14, 1, v12
    v_lshrrev_b32 v15, 1, v13
    s_mul_i32 s41, s2, {CH//4}
    s_sub_u32 s41, {E//4-512}, s41
    s_min_u32 s41, s41, {CH//4-512}
    v_cmp_gt_u32 s[50:51], s41, v0
    s_or_b32 s40, s2, s3
    s_cbranch_scc1 L_nn
    s_memrealtime s[42:43]
    v_mov_b32 v18, 0
    s_waitcnt lgkmcnt(0)
    s_lshl_b64 s[42:43], s[42:43], 25
    s_or_b32 s42, s42, 1
    v_mov_b32 v16, s42
    v_mov_b32 v17, s43
    s_mov_b64 exec, 1
    global_store_dwordx2 v18, v[16:17], s[24:25] sc1
    s_mov_b64 exec, -1""")
    A.label('L_nn')
    A(f"""s_waitcnt lgkmcnt(0)
    global_load_dwordx4 v[20:23], v12, s[10:11]
    s_mov_b64 exec, s[50:51]
    s_cbranch_execz L_e1
    global_load_dwordx4 v[40:43], v13, s[10:11]""")
    A.label('L_e1')
    A(f"""s_cmp_eq_u32 s3, {4 if OPT['w4'] else 99}
    s_cbranch_scc1 L_e3
    s_barrier""")
    A.label('L_e3')
    A(f"""s_cbranch_execz L_e2
    global_load_dwordx4 v[44:47], v13, s[8:9]
    global_load_dwordx2 v[48:49], v15, s[6:7]""")
    A.label('L_e2')
    A(f"""s_mov_b64 exec, -1
    s_cbranch_scc0 L_e4
    s_barrier""")
    A.label('L_e4')
    A(f"""global_load_dwordx4 v[24:27], v12, s[8:9]
    global_load_dwordx2 v[28:29], v14, s[6:7]
    v_lshlrev_b32 v11, 3, v1
    global_load_dwordx2 v[4:5], v11, s[16:17]
    s_setprio 3
    s_branch L_common""")
    A.label('L_noedge')
    A(f"""v_mov_b32 v56, 0
    v_mov_b32 v57, 0
    v_mov_b32 v58, 0
    v_mov_b32 v59, 0
    s_cmp_lg_u32 s3, 9
    s_cbranch_scc1 L_n1
    v_lshlrev_b32 v16, 4, v{vLANE}
    v_lshlrev_b32 v17, 2, v{vLANE}
    ds_write_b128 v16, v[56:59] offset:{CNT1}
    ds_write_b32 v17, v56 offset:{FLAGP}""")
    A.label('L_n1')
    A(f"""s_cmp_lg_u32 s3, 8
    s_cbranch_scc1 L_n2
    s_getpc_b64 s[42:43]""")
    A.label('L_pc')
    A(f"""s_sub_u32 s42, s42, L_pc-{KN}
    s_subb_u32 s43, s43, 0
    s_lshl_b32 s41, s59, 9
    v_lshlrev_b32 v10, 7, v{vLANE}
    v_add_u32 v11, s41, v10
    s_lshl_b32 s41, s59, 8
    v_add_u32 v10, s41, v10
    s_mov_b64 exec, 15
    global_load_dword v60, v11, s[42:43]
    s_mov_b64 exec, 3
    s_waitcnt lgkmcnt(0)
    global_load_dword v61, v10, s[14:15]
    global_load_dword v62, v10, s[20:21]
    global_load_dword v63, v10, s[12:13]
    global_load_dword v64, v10, s[18:19]
    s_mov_b64 exec, -1""")
    A.label('L_n2')
    if OPT['tlb']:
        A(f"""s_cmp_lg_u32 s3, 10
        s_cbranch_scc1 L_n4
        s_mul_i32 s41, s2, {DST}
        s_add_u32 s41, s41, {WS_DAT}
        v_lshl_add_u32 v10, v{vLANE}, 12, s41
        s_lshl_b32 s41, {sROW}, 8
        s_add_u32 s41, s41, {WS_TAB+256}
        v_lshl_add_u32 v11, v{vLANE}, 12, s41
        s_lshl_b32 s41, s2, 11
        s_add_u32 s41, s41, {WS_ENT}
        v_mov_b32 v12, s41
        v_mov_b32 v13, {WS_FLG+2048}
        s_lshl_b32 s41, {sROW}, 7
        v_mov_b32 v16, s41
        s_mov_b64 exec, 15
        s_waitcnt lgkmcnt(0)
        global_load_dword v60, v10, s[26:27] sc1
        global_load_dword v61, v11, s[26:27] sc1
        s_mov_b64 exec, 1
        global_load_dword v62, v12, s[26:27] sc1
        global_load_dword v63, v13, s[26:27] sc1
        global_load_dword v64, v16, s[22:23] sc1
        s_mov_b64 exec, -1""")
        A.label('L_n4')
    A(f"""s_lshl_b32 s40, {sROW}, 7
    s_sub_u32 s40, s40, 8192
    v_add_u32 v14, s40, v3
    v_add_u32 v15, 4096, v14
    v_min_u32 v14, {N*128-16}, v14
    v_min_u32 v15, {N*128-16}, v15
    s_waitcnt lgkmcnt(0)
    s_barrier
    s_cmp_ge_u32 s3, 12
    s_cbranch_scc1 L_common
    global_load_dwordx4 v[88:91], v14, s[4:5]
    global_load_dwordx4 v[92:95], v15, s[4:5]""")
    A.label('L_common')
    stamp(2)
    A(f"""v_mov_b32 v{vFOUR}, 4
    v_lshlrev_b32 v1, 4, v1
    v_mov_b32 v{vZ}, {ZERO}
    s_mov_b32 s64, {f2u(2.0**125):#x}
    s_mov_b32 s65, 2
    s_mov_b64 s[62:63], 0
    s_mov_b32 s30, {WS_SIZE}
    s_mov_b32 s31, 0x20000
    s_mov_b32 s34, {12560*256}
    s_mov_b32 s35, 0x20000
    s_mov_b32 s38, {N*128}
    s_mov_b32 s39, 0x20000
    s_mov_b32 s28, s26
    s_mov_b32 s29, s27
    s_add_u32 s32, s26, {WS_TAB}
    s_addc_u32 s33, s27, 0
    s_mov_b32 s36, s22
    s_mov_b32 s37, s23
    s_cmp_ge_u32 s3, 8
    s_cbranch_scc1 L_gw
    s_mov_b32 s44, -49
    s_mov_b32 s45, {(127-113)<<23}
    s_mov_b32 s46, 0x78000000
    s_mov_b32 s47, 0xffff0000
    s_mov_b64 s[52:53], 0
    v_mov_b32 v19, {ECNT}
    v_lshlrev_b32 v18, 4, v{vLANE}
    v_lshlrev_b32 v14, 3, v{vLANE}
    v_add_u32 v12, {BASE}, v18
    v_add_u32 v13, {BASE}, v14
    v_add_u32 v11, {SLOT}, v3
    s_cmp_eq_u64 s[50:51], 0
    s_cbranch_scc1 L_a1
    s_waitcnt vmcnt(5)
    s_mov_b64 exec, s[50:51]""")
    part_a(40,50,54,68)
    A("""s_mov_b64 exec, -1
    s_branch L_a2""")
    A.label('L_a1')
    A('s_waitcnt vmcnt(3)')
    A.label('L_a2')
    part_a(20,30,34,64)
    stamp(3)
    ebar('L_eb1',32)
    A(f"""ds_read_b128 v[80:83], v18 offset:{CNT1}
    ds_read_b64 v[96:97], v14 offset:{CNT1}
    ds_read_b64 v[98:99], v14 offset:{CNT1+512}
    s_waitcnt lgkmcnt({W(2)})
    v_add_u32 v81, v80, v81
    v_add_u32 v82, v81, v82
    v_add_u32 v83, v82, v83""")
    scan(88,83)
    A(f"""v_sub_u32 v84, v88, v83
    v_add_u32 v84, {SLOT}, v84
    v_add_u32 v85, v84, v80
    v_add_u32 v86, v84, v81
    v_add_u32 v87, v84, v82
    ds_write_b128 v12, v[84:87]""")
    for i in range(4): A(f'ds_read_b32 v{72+i}, v{34+i}')
    A(f"""ds_read_b64 v[100:101], v13
    ds_read_b64 v[102:103], v13 offset:512
    s_cmp_eq_u64 s[50:51], 0
    s_cbranch_scc1 L_b1
    s_mov_b64 exec, s[50:51]""")
    for i in range(4): A(f'ds_read_b32 v{76+i}, v{54+i}')
    A('s_waitcnt vmcnt(3)')
    part_b(40,44,48,50,68,76)
    A('s_mov_b64 exec, -1')
    A.label('L_b1')
    A('s_waitcnt vmcnt(1)')
    part_b(20,24,28,30,64,72)
    A.label('L_b2')
    A(f"""s_cmp_lg_u64 s[52:53], 0
    s_cbranch_scc1 L_ebad""")
    A.label('L_ebad_back')
    stamp(4)
    A(f"""s_mul_i32 s54, s2, {DST}
    s_add_u32 s54, s54, {WS_DAT}
    s_add_u32 s55, s54, 8192""")
    ebar('L_eb2',64)
    stamp(5)
    A(f"""ds_read_b128 v[20:23], v11
    ds_read_b128 v[24:27], v11 offset:8192
    s_waitcnt lgkmcnt({W(1)})
    buffer_store_dwordx4 v[20:23], v3, s[28:31], s54 offen sc1
    s_mov_b64 exec, s[50:51]
    s_cbranch_execz L_c1
    s_waitcnt lgkmcnt(0)
    buffer_store_dwordx4 v[24:27], v3, s[28:31], s55 offen sc1""")
    A.label('L_c1')
    A('s_mov_b64 exec, -1')
    for i in range(4):
        A(f"""v_subrev_u32 v{100+i}, {SLOT}, v{100+i}
        v_lshrrev_b32 v{100+i}, 2, v{100+i}
        v_lshl_or_b32 v{104+2*i}, v{96+i}, 10, v{100+i}""")
    A(f"""v_mov_b32 v16, {FLAGP}
    s_lshl_b32 s54, s2, 11
    s_add_u32 s54, s54, {WS_ENT}""")
    A.label('L_sg')
    A(f"""ds_read_b64 v[{vTAG}:{vTAG+1}], v16 offset:{NONCE-FLAGP}
    s_waitcnt lgkmcnt(0)
    v_cmp_eq_u32 vcc, 0, v{vTAG}
    s_cbranch_vccnz L_sg
    v_and_b32 v{vTAG}, -2, v{vTAG}
    s_mov_b64 exec, 1
    s_waitcnt vmcnt(0)
    ds_add_rtn_u32 v17, v16, v{vFOUR} offset:{DCNT-FLAGP}
    s_mov_b64 exec, -1
    ds_read_b32 v20, v16
    s_waitcnt lgkmcnt(0)
    v_readfirstlane_b32 s42, v17
    v_cmp_gt_u32 vcc, 32, v20
    v_lshl_or_b32 v20, v20, 20, v{vTAG}
    s_and_b32 s42, s42, 255
    s_cmp_lg_u32 s42, 28
    s_cbranch_scc1 L_nosig""")
    for i in range(4):
        A(f"""v_or_b32 v{104+2*i}, v{104+2*i}, v20
        v_mov_b32 v{105+2*i}, v{vTAG+1}""")
    A(f"""s_cbranch_vccz L_nosig
    buffer_store_dwordx4 v[104:107], v18, s[28:31], s54 offen sc1
    buffer_store_dwordx4 v[108:111], v18, s[28:31], s54 offen offset:1024 sc1""")
    A.label('L_nosig')
    stamp(0)
    A(f"""s_setprio 0
    s_cmp_ge_u32 s3, 4
    s_cbranch_scc1 L_idle
    s_mov_b32 s44, {f2u(-L2E):#x}
    v_bfe_u32 v8, v0, 4, 4
    v_cvt_f32_u32 v9, v8
    v_mul_f32 v36, {f2u(1/16.0):#x}, v9
    v_add_f32 v37, -4.0, v36
    v_mul_f32 v38, {f2u(1/2048.0):#x}, v9
    v_mov_b32 v10, {f2u(-KSH):#x}
    v_lshl_add_u32 v9, v8, 8, v1
    v_lshl_add_u32 v8, v8, 9, v1
    v_add_u32 v8, {T2}, v8
    v_and_b32 v7, 0xffff0000, v5
    v_lshlrev_b32 v6, 16, v5
    v_and_b32 v5, 0xffff0000, v4
    v_lshlrev_b32 v4, 16, v4
    v_mul_f32 v4, s44, v4
    v_mul_f32 v5, s44, v5
    v_mul_f32 v6, s44, v6
    v_mul_f32 v7, s44, v7""")
    for i in range(4): A(f'v_fma_f32 v{20+i}, v{4+i}, v36, v10')
    for i in range(4): A(f'v_fma_f32 v{24+i}, v{4+i}, v37, v10')
    for i in range(4): A(f'v_mul_f32 v{28+i}, v{4+i}, v38')
    for i in range(4): A(f'v_mul_f32 v{44+i}, {f2u(1/128.0):#x}, v{4+i}')
    for i in range(12): A(f'v_exp_f32 v{20+i}, v{20+i}')
    for i in range(4): A(f'v_exp_f32 v{40+i}, v{4+i}')
    for i in range(4): A(f'v_exp_f32 v{44+i}, v{44+i}')
    A('v_max3_f32 v11, |v4|, |v5|, |v6|')
    def step(r, m):
        A(f"""v_pk_mul_f32 v[{r}:{r+1}], v[{r}:{r+1}], v[{m}:{m+1}]
        v_pk_mul_f32 v[{r+2}:{r+3}], v[{r+2}:{r+3}], v[{m+2}:{m+3}]""")
    for k in range(4):
        if k==OPT['dc2']:
            stamp(10); polladdr(); poll1()
        A(f"""ds_write_b128 v9, v[20:23] offset:{T1+4096*k}
        ds_write_b128 v9, v[24:27] offset:{T1+4096*(k+4)}
        ds_write_b128 v8, v[28:31] offset:{8192*2*k}""")
        step(28,44)
        A(f'ds_write_b128 v8, v[28:31] offset:{8192*(2*k+1)}')
        if k<3: step(20,40); step(24,40); step(28,44)
    A(f"""v_max_f32_e64 v11, v11, |v7|
    v_cmp_nge_f32 vcc, 4.0, v11
    s_cbranch_vccnz L_wbad""")
    A.label('L_wbad_back')
    A('s_branch L_prep')
    A.label('L_idle')
    if OPT['dc']: A(f's_sleep {OPT["dc"]}')
    polladdr()
    poll1()
    A('s_branch L_prep')
    A.label('L_gw')
    A(f"""s_cmp_lg_u32 s3, 13
    s_cbranch_scc1 L_g2""")
    nodeconst()
    A(f"""ds_write_b32 v{vCA}, v{vLL} offset:{CNT2}
    v_mov_b32 v57, -1
    v_lshlrev_b32 v18, 3, v{vLANE}
    ds_write_b64 v18, v[56:57] offset:{FL}""")
    A.label('L_g2')
    A(f"""v_and_b32 v2, 255, v0
    v_lshlrev_b32 v3, 4, v2
    v_lshrrev_b32 v12, 3, v2
    v_and_b32 v13, 7, v2
    v_mov_b32 v46, 0
    s_cmp_ge_u32 s3, 12
    s_cselect_b64 s[40:41], s[12:13], s[14:15]
    s_cselect_b64 s[42:43], s[18:19], s[20:21]
    s_cselect_b32 s55, {WAU-WBV}, 0
    s_cselect_b32 s57, {ACNT-SCNT}, 0
    s_add_u32 s55, s55, {WBV}
    s_add_u32 s57, s57, {SCNT}
    v_add_u32 v15, 4096, v3
    v_mov_b32 v50, 1
    global_load_dwordx4 v[72:75], v3, s[40:41]
    global_load_dwordx4 v[76:79], v15, s[40:41]
    global_load_dwordx4 v[80:83], v3, s[42:43]
    global_load_dwordx4 v[84:87], v15, s[42:43]
    s_cmp_lg_u32 s3, 15
    s_cbranch_scc1 L_t2
    global_load_dwordx2 v[50:51], v46, s[24:25] sc1""")
    A.label('L_t2')
    A(f"""s_setprio 1
    v_mul_u32_u24 v16, {WROW}, v12
    v_lshl_add_u32 v16, v13, 2, v16
    v_add_u32 v16, s55, v16
    v_mul_u32_u24 v17, {XST}, v12
    v_lshl_add_u32 v17, v13, 4, v17
    v_add_u32 v17, {XS}, v17
    v_add_u32 v18, {32*XST}, v17""")
    A(f"""    s_mov_b32 s48, 0x05040100
    s_mov_b32 s49, 0x07060302
    s_and_b32 s54, s3, 3
    v_bfe_u32 v12, v0, 2, 4
    v_and_b32 v13, 3, v0
    v_mul_u32_u24 v12, {WROW}, v12
    v_lshl_add_u32 v12, v13, 3, v12
    v_add_u32 v12, s55, v12
    v_and_b32 v13, 15, v0
    v_bfe_u32 v14, v0, 4, 2
    v_mul_u32_u24 v13, {XST}, v13
    v_lshl_add_u32 v13, v14, 3, v13
    s_mul_i32 s56, s54, {16*XST}
    s_add_u32 s56, s56, {XS}
    v_add_u32 v13, s56, v13
    s_lshl_b32 s56, s54, 2
    v_add_u32 v14, s56, v14
    v_mov_b32 v19, s57
    v_mov_b32 v47, {SCNT}
    s_mov_b32 s43, 0""")
    stamp(4)
    A(f"""s_waitcnt vmcnt(4)
    s_cmp_lt_u32 s3, 12
    s_cbranch_scc1 L_g7
    s_cmp_lg_u32 s3, 15
    s_cbranch_scc1 L_g6
    s_waitcnt vmcnt(0)
    ds_write_b64 v46, v[50:51] offset:{NONCE}
    s_branch L_g6""")
    A.label('L_g7')
    A(f"""ds_write2_b64 v17, v[88:89], v[90:91] offset0:0 offset1:1
    ds_write2_b64 v18, v[92:93], v[94:95] offset0:0 offset1:1""")
    A.label('L_g6')
    for m in range(4):
        A(f's_waitcnt vmcnt({3-m})')
        stageW(72+4*m,16)
        if m<3: A(f'v_add_u32 v16, {32*WROW}, v16')
    stamp(5)
    A.label('L_gop')
    A(f"""s_waitcnt vmcnt(0)
    v_cmp_eq_u32 vcc, 0, v50
    s_cbranch_vccnz L_gowait""")
    A.label('L_goback')
    A(f"""s_mov_b64 exec, 1
    s_cmp_lg_u32 s3, 15
    s_cbranch_scc1 L_g5
    v_or_b32 v50, 1, v50
    s_waitcnt lgkmcnt(0)
    ds_write_b64 v46, v[50:51] offset:{NONCE}""")
    A.label('L_g5')
    A(f"""s_waitcnt lgkmcnt(0)
    ds_add_u32 v19, v{vFOUR}""")
    spin('L_sb',19,15,16)
    A("""s_cmp_ge_u32 s3, 12
    s_cbranch_scc1 L_au
    s_mov_b64 exec, -1""")
    stamp(3)
    A('s_setprio 2')
    gemm_run(ACC1)
    A(f"""s_mov_b32 s44, {f2u(-L2E):#x}
    s_mov_b32 s45, {f2u(HS):#x}
    s_mov_b32 s46, 0x07060100
    s_lshl_b32 s47, {sROW}, 8
    s_add_u32 s47, s47, {WS_TAB+256}
    v_lshl_add_u32 v14, v14, 10, v1""")
    for i in range(16): A(f'v_mul_f32 v{ACC0+i}, s44, v{ACC0+i}')
    A("""s_cmp_eq_u32 s54, 3
    s_cselect_b32 exec_lo, 0xffff, -1
    s_cselect_b32 exec_hi, 0, -1""")
    for r in range(4):
        for t in range(4): A(f'v_exp_f32 v{64+4*r+t}, v{ACC0+4*t+r}')
        for t in range(4): A(f'v_fma_mixlo_f16 v{36+t}, v{ACC1+4*t+r}, s45, 0')
        for t in range(4): A(f'v_add_u32 v{64+4*r+t}, 0x8000, v{64+4*r+t}')
        for t in range(4): A(f'v_sub_u32_sdwa v{64+4*r+t}, v{64+4*r+t}, v{36+t} clamp dst_sel:DWORD dst_unused:UNUSED_PAD src0_sel:DWORD src1_sel:WORD_0')
        for t in range(4): A(f'v_perm_b32 v{64+4*r+t}, v{64+4*r+t}, v{36+t}, s46')
        A(f'buffer_store_dwordx4 v[{64+4*r}:{67+4*r}], v14, s[28:31], s47 offen offset:{r*256} sc1')
        if r==0: A('s_cbranch_scc1 L_tdone')
    A.label('L_tdone')
    A(f"""s_mov_b64 exec, -1
    s_or_b32 s56, s2, s54
    s_cmp_lg_u32 s56, 0
    s_cbranch_scc1 L_nodummy
    v_lshlrev_b32 v44, 2, v{vLANE}
    v_mov_b32 v45, {(127+81)<<23:#x}
    s_mov_b32 s56, {WS_TAB}
    buffer_store_dword v45, v44, s[28:31], s56 offen sc1""")
    A.label('L_nodummy')
    stamp(0)
    A.label('L_tg')
    readtag()
    A(f"""s_waitcnt lgkmcnt(0)
    v_cmp_eq_u32 vcc, 0, v{vTAG}
    s_cbranch_vccnz L_tg""")
    A(f"""v_max3_f32 v15, v{ACC0}, v{ACC0+1}, v{ACC0+2}
    v_max3_f32 v16, |v{ACC1}|, |v{ACC1+1}|, |v{ACC1+2}|""")
    for i in (3,5,7,9,11,13,14):
        A(f"""v_max3_f32 v15, v15, v{ACC0+i}, v{ACC0+i+1}
        v_max3_f32 v16, v16, |v{ACC1+i}|, |v{ACC1+i+1}|""")
    A(f"""v_cmp_lt_f32 vcc, {f2u(50.0):#x}, v15
    s_mov_b64 s[42:43], vcc
    v_cmp_lt_f32 vcc, {f2u(1000.0):#x}, v16
    s_or_b64 s[42:43], s[42:43], vcc
    s_cbranch_scc0 L_tok""")
    setslow(FLAGT)
    A.label('L_tok')
    A(f"""s_lshl_b32 s41, s2, 3
    s_add_u32 s41, s41, {WS_FLG}
    v_lshl_add_u32 v127, v{vLANE}, 12, s41""")
    if OPT['dt']: A(f's_sleep {OPT["dt"]}')
    polladdr()
    poll1()
    A(f"""v_mov_b32 v8, {TCNT}
    s_mov_b64 exec, 1
    s_waitcnt vmcnt(1) lgkmcnt(0)
    ds_add_rtn_u32 v9, v8, v{vFOUR}
    s_mov_b64 exec, -1
    v_and_b32 v{vTAG}, -2, v{vTAG}
    s_mov_b64 exec, {RPM}
    ds_read_b32 v11, v8 offset:{FLAGT-TCNT}
    s_waitcnt lgkmcnt(0)
    v_readfirstlane_b32 s42, v9
    v_cmp_gt_u32 vcc, 32, v11
    v_or_b32 v20, v{vTAG}, v11
    v_mov_b32 v21, v{vTAG+1}
    s_cmp_eq_u32 s42, 12
    s_cselect_b64 exec, vcc, 0
    s_cbranch_execz L_nosigt
    global_store_dwordx2 v127, v[20:21], s[26:27] sc1""")
    A.label('L_nosigt')
    A('s_mov_b64 exec, -1')
    stamp(10)
    A('s_branch L_prep')
    A.label('L_au')
    spin('L_sb2',47,15,16)
    A('s_mov_b64 exec, -1')
    stamp(3)
    gemm_run(ACC1)
    readtag()
    stamp(0)
    A(f"""s_waitcnt lgkmcnt(0)
    v_and_b32 v{vTAG}, -2, v{vTAG}""")
    A(f"""s_mov_b32 s44, {f2u(L2E):#x}
    v_mov_b32 v15, {f2u(-KSH):#x}
    v_lshl_add_u32 v120, v14, 10, v1
    v_lshl_add_u32 v14, v14, 11, v1
    v_add_u32 v13, {UU}, v14""")
    for r in range(4):
        for t in range(4): A(f'v_fma_f32 v{64+4*r+t}, v{ACC0+4*t+r}, s44, v15')
    for i in range(16): A(f'v_exp_f32 v{64+i}, v{64+i}')
    for r in range(4):
        for t in range(4): A(f'v_mov_b32 v{40+4*r+t}, v{ACC1+4*t+r}')
    if OPT['da']: A(f's_sleep {OPT["da"]}')
    polladdr()
    poll1()
    for r in range(4):
        A(f"""ds_write_b128 v14, v[{64+4*r}:{67+4*r}] offset:{EA+512*r}
        ds_write_b128 v13, v[{40+4*r}:{43+4*r}] offset:{512*r}""")
    A(f'v_max3_f32 v16, |v{ACC0}|, |v{ACC0+1}|, |v{ACC0+2}|')
    for i in (3,5,7,9,11,13,14): A(f'v_max3_f32 v16, v16, |v{ACC0+i}|, |v{ACC0+i+1}|')
    A(f"""v_cmp_nge_f32 vcc, {f2u(51.0/L2E):#x}, v16
    s_cbranch_vccz L_prep""")
    setslow(FLAGC)
    A.label('L_prep')
    nodeconst()
    A(f"""s_setprio 0
    v_mul_u32_u24 v114, {DST}, v114
    v_add_u32 v114, {WS_DAT}, v114
    v_mov_b32 v{vMAG}, {f2u(1.5*2**23):#x}
    s_mov_b32 s43, 0
    s_mov_b32 s40, 0x1ffffff
    s_mov_b32 s41, 0
    v_and_b32 v9, 3, v0
    v_lshl_add_u32 v6, v9, 4, v114
    v_lshl_add_u32 v20, v9, 2, v114
    v_mul_u32_u24 v5, 12, v9
    v_lshlrev_b32 v4, 2, v9
    v_mul_u32_u24 v3, 3, v9
    v_add_u32 v5, v5, v114""")
    for i in list(range(vDEN,vDEN+8))+list(range(vM,vM+12)): A(f'v_mov_b32 v{i}, 0')
    A.label('L_poll')
    A(f"""s_waitcnt vmcnt(0)
    v_xor_b32 v{vNEW}, v{vNEW}, v{vTAG}
    v_xor_b32 v{vNEW+1}, v{vNEW+1}, v{vTAG+1}
    v_cmp_lt_u64 vcc, s[40:41], v[{vNEW}:{vNEW+1}]
    s_cbranch_vccnz L_repoll""")
    A.label('L_ready')
    A(f"""s_mov_b64 exec, -1
    v_and_b32 v10, 0xfff, v{vNEW}
    v_lshl_add_u32 v6, v10, 2, v6
    v_lshrrev_b32 v2, 12, v{vNEW}
    v_sub_u32 v11, v2, v4
    v_cmp_lt_i32 vcc, 0, v11
    v_sub_u32 v21, v2, v9
    v_sub_u32 v3, v2, v3
    v_cmp_lt_i32 s[42:43], 16, v21
    v_cmp_lt_i32 s[40:41], 20, v3
    v_lshl_add_u32 v20, v10, 2, v20
    v_lshl_add_u32 v5, v10, 2, v5
    s_mov_b64 exec, vcc
    s_cbranch_execz L_r1
    global_load_dwordx4 v[64:67], v6, s[26:27] sc1
    s_mov_b64 exec, s[42:43]
    s_cbranch_execz L_r1
    global_load_dword v68, v20, s[26:27] offset:64 sc1
    s_mov_b64 exec, s[40:41]
    s_cbranch_execz L_r1
    global_load_dwordx3 v[70:72], v5, s[26:27] offset:80 sc1""")
    A.label('L_r1')
    A('s_mov_b64 exec, -1')
    A('v_cmp_lt_i32 vcc, 32, v2')
    stamp(11)
    A(f"""v_lshlrev_b32 v22, 4, v0
    v_add_u32 v22, {MID}, v22""")
    A.label('L_gate')
    A(f"""ds_read_b32 v23, v{vZ} offset:{DCNT-ZERO}
    s_waitcnt lgkmcnt(0)
    v_readfirstlane_b32 s44, v23
    s_cmp_lt_u32 s44, {32+2048}
    s_cbranch_scc1 L_gate""")
    A(f"""ds_write_b128 v22, v[{vDEN}:{vDEN+3}]
    s_cmp_ge_u32 s3, 9
    s_cbranch_scc1 L_z1
    ds_write_b128 v22, v[{vDEN}:{vDEN+3}] offset:16384""")
    A.label('L_z1')
    A('s_cbranch_vccnz L_rare')
    A.label('L_rare_back')
    A('s_waitcnt vmcnt(0)')
    stamp(12)
    insert(list(range(64,69)),74,82,44,0,11,(16,21))
    A("""s_cmp_eq_u64 s[40:41], 0
    s_cbranch_scc1 L_r2""")
    insert(list(range(70,73)),79,87,54,20,3)
    A('s_waitcnt lgkmcnt(0)')
    insert2(3,79,87,54)
    A.label('L_r2')
    A('s_waitcnt lgkmcnt(0)')
    insert2(5,74,82,44)
    A(f"""s_lshr_b32 s42, s3, 2
    s_cmp_lg_u32 s42, 2
    s_cbranch_scc1 L_b4
    s_and_b32 s41, s2, {OPT['rp']-1}
    s_lshl_b32 s41, s41, 12
    s_add_u32 s41, s41, {WS_FLG-4096}
    v_lshl_add_u32 v{vFT}, v0, 3, s41
    s_mov_b32 s43, 0""")
    if OPT['df']: A(f's_sleep {OPT["df"]}')
    A(f"global_load_dwordx2 v[{vNEW}:{vNEW+1}], v{vFT}, s[26:27] {OPT['pol']}")
    A.label('L_tp')
    A(f"""s_waitcnt vmcnt(0)
    v_cmp_ne_u64 vcc, v[{vTAG}:{vTAG+1}], v[{vNEW}:{vNEW+1}]
    s_cbranch_vccnz L_tpw""")
    A.label('L_b4')
    A(f"""v_mov_b32 v10, {FLAGC}
    s_mov_b32 s50, -1
    s_mov_b32 s51, 0x1ffff
    s_mov_b32 s48, 0x00010001
    s_mov_b32 s49, 0x00010001
    s_mov_b32 s40, 0x7f00
    s_mov_b32 s41, 0x0c0c0400
    s_setprio 3
    s_waitcnt lgkmcnt(0)
    s_barrier""")
    stamp(13)
    if OPT['pfb']:
        A(f"""s_lshr_b32 s42, s2, 3
        s_lshl_b32 s42, s42, 4
        s_add_u32 s42, s42, s3
        s_mul_i32 s42, s42, {49*128}
        v_lshlrev_b32 v11, 7, v{vLANE}
        s_mov_b64 exec, {hex((1<<OPT['pfb'])-1)}
        buffer_load_dword v113, v11, s[32:35], s42 offen
        s_mov_b64 exec, -1""")
    A(f'''ds_read_b32 v121, v{vCA} offset:{CNT2}
    ds_read_b32 v122, v10
    s_waitcnt lgkmcnt(0)
    ds_write2_b32 v121, v{vDEN}, v{vDEN} offset0:0 offset1:1
    ds_write2_b32 v121, v{vDEN}, v{vDEN} offset0:2 offset1:3
    v_sub_u32 v121, v121, v{vLL}
    v_cmp_lt_u32 vcc, 512, v121
    s_or_b64 s[62:63], s[62:63], vcc
    v_cmp_ne_u32 vcc, 0, v122
    v_add_u32 v121, 12, v121
    v_lshrrev_b32 v121, 4, v121
    v_max_u32 v121, 1, v121
    s_or_b64 s[62:63], s[62:63], vcc
    s_cbranch_scc1 L_slow
    v_cndmask_b32 v121, 0, v121, s[50:51]
    s_nop 1
    v_add_u32_dpp v122, v121, v121 row_shr:1 row_mask:0xf bank_mask:0xf bound_ctrl:0
    s_nop 1
    v_add_u32_dpp v122, v122, v122 row_shr:2 row_mask:0xf bank_mask:0xf bound_ctrl:0
    s_nop 1
    v_add_u32_dpp v122, v122, v122 row_shr:4 row_mask:0xf bank_mask:0xf bound_ctrl:0
    s_nop 1
    v_add_u32_dpp v122, v122, v122 row_shr:8 row_mask:0xf bank_mask:0xf bound_ctrl:0
    s_nop 1
    v_add_u32_dpp v122, v122, v122 row_bcast:15 row_mask:0xa bank_mask:0xf
    s_nop 1
    v_add_u32_dpp v122, v122, v122 row_bcast:31 row_mask:0xc bank_mask:0xf
    s_nop 0
    v_readlane_b32 s42, v122, 63
    v_sub_u32 v121, v122, v121
    v_lshlrev_b32 v124, 4, v121
    v_sub_u32 v124, v{vLL}, v124
    s_cmp_gt_u32 s42, 1024
    s_cbranch_scc1 L_slow
    s_add_u32 s42, s42, 3
    s_lshr_b32 s43, s42, 6
    s_bfe_u32 s44, s42, 0x40002
    s_cmp_lt_u32 s3, s44
    s_addc_u32 s45, s43, 0
    s_mul_i32 s46, s3, s43
    s_min_u32 s47, s3, s44
    s_add_u32 s46, s46, s47
    s_lshl_b32 s46, s46, 2
    s_lshl_b32 s47, s45, 2
    v_subrev_u32 v123, s46, v121
    v_cmp_gt_u32 vcc, s47, v123
    v_lshlrev_b32 v123, 2, v123
    s_and_b32 vcc_hi, vcc_hi, 0x3ffff
    v_cndmask_b32 v123, 0, v123, vcc
    ds_permute_b32 v125, v123, v{vFOUR}''')
    for g in range(4):
        if g: A('s_add_u32 s46, s46, s45')
        A(f"""v_cmp_ge_u32 vcc, s46, v122
        s_lshl_b32 s{56+g}, s46, 4
        s_and_b64 vcc, vcc, s[50:51]
        s_bcnt1_i32_b64 s{52+g}, vcc
        v_readlane_b32 s47, v124, s{52+g}
        s_add_u32 s{56+g}, s{56+g}, s47""")
    A(f"""v_mov_b32 v{vA}, s56
    v_mov_b32 v{vLB}, s52
    s_mov_b32 exec_lo, 0xffff0000
    v_mov_b32 v{vA}, s57
    v_mov_b32 v{vLB}, s53
    s_mov_b32 exec_lo, 0
    v_mov_b32 v{vA}, s58
    v_mov_b32 v{vLB}, s54
    s_mov_b32 exec_hi, 0xffff0000
    v_mov_b32 v{vA}, s59
    v_mov_b32 v{vLB}, s55
    s_mov_b64 exec, -1
    ds_read_b128 v[{vR}:{vR+3}], v{vA}
    v_lshl_add_u32 v{vB}, v{vLB}, 9, v1
    s_mov_b32 s44, 0x0c070600
    ds_read_b128 v[{vEA}:{vEA+3}], v{vB} offset:{EA}
    v_mul_u32_u24 v{vLB}, {LS}, v{vLB}
    v_add_u32 v{vLB}, {LISTS}, v{vLB}
    v_add_u32 v{vB}, {VB0}, v{vB}
    s_cmp_eq_u32 s45, 0
    s_cbranch_scc1 L_done
    s_waitcnt lgkmcnt({W(1)})""")
    gpair(0); gpair(1)
    readT(vR)
    A(f"""v_cmp_ne_u32 s[42:43], 0, v125
    s_mov_b32 s50, 0x00030003
    s_mov_b32 s51, 0x00030003
    s_lshr_b64 s[52:53], s[42:43], s45
    s_lshr_b64 s[54:55], s[52:53], s45
    s_lshr_b64 s[56:57], s[54:55], s45
    s_pack_ll_b32_b16 s42, s42, s52
    s_pack_ll_b32_b16 s43, s54, s56
    s_andn2_b64 s[42:43], s[42:43], s[48:49]""")
    stamp(6,14)
    A('s_setprio 1' if OPT['park'] else 's_setprio 0')
    def body(tag, last, sub, adv):
        secF()
        A(f"""s_and_b64 s[46:47], s[42:43], s[50:51]
        s_cbranch_scc1 L_evt_{tag}""")
        A.label(f'L_eback_{tag}')
        if not last: A('s_lshr_b64 s[42:43], s[42:43], 1')
        A('s_waitcnt lgkmcnt(0)')
        secPE()
        readT(vR+2)
        if not last: A(f'ds_read_b128 v[{vR}:{vR+3}], v{vA} offset:{16*sub}')
        A('s_waitcnt vmcnt(2)')
        secRest(vD)
        A('s_waitcnt lgkmcnt(0)')
        if not last: gpair(0)
        secTail()
        secF()
        secPE()
        if not last:
            readT(vR)
            if adv: A(f'v_add_u32 v{vA}, {adv}, v{vA}')
        A(f's_waitcnt vmcnt({0 if last else 2})')
        secRest(vD+8)
        if not last: gpair(1)
        secTail()
    U_=1
    phases=[(3,OPT['r2']),(2,OPT['r1']),(1,1)] if OPT['r2'] else [(1,1)]
    tags=[]
    for n,(pr,rem) in enumerate(phases):
        PRIO[0]=pr
        nxt = f'L_ph{n+1}' if n+1<len(phases) else 'L_last'
        A.label(f'L_ph{n}')
        A(f"""s_cmp_le_u32 s45, {rem}
        s_cbranch_scc1 {nxt}""")
        A.label(f'L_loop{n}')
        body(f'b{n}', False, 1, 16); tags.append(f'b{n}')
        A(f"""s_sub_u32 s45, s45, 1
        s_cmp_gt_u32 s45, {rem}
        s_cbranch_scc1 L_loop{n}""")
    A.label('L_last')
    body('z', True, 0, 0)
    secF()
    A(f"""s_setprio 0
    v_subrev_u32 v20, {VB0}, v{vB}
    v_lshrrev_b32 v20, 6, v20
    v_lshlrev_b32 v21, 5, v0
    v_add_u32 v21, {FIN}, v21
    s_mov_b64 exec, s[48:49]
    ds_max_u32 v20, v21 offset:{FL}
    ds_min_u32 v20, v21 offset:{FL+4}
    s_mov_b64 exec, -1""")
    A.label('L_done')
    stamp(7,15)
    A.label('L_epi')
    A(f"""v_lshrrev_b32 v24, 4, v0
    v_lshl_add_u32 v25, v24, 9, v1
    v_add_u32 v26, {UU}, v25
    v_lshlrev_b32 v30, 3, v0
    v_lshlrev_b32 v24, 3, v24
    v_add_u32 v31, v24, v30
    s_lshl_b32 s45, {sROW}, 7
    ds_read_b64 v[2:3], v31 offset:{XS}
    ds_read_b128 v[40:43], v26
    ds_read_b128 v[56:59], v25 offset:{EA}
    v_add_u32 v26, {MID}, v25
    s_mov_b32 s44, {f2u(1e-6*HS):#x}
    s_mov_b32 s43, {f2u(HS):#x}
    s_waitcnt lgkmcnt(0)
    s_barrier""")
    stamp(8)
    A(f"""ds_write_b128 v25, v[{vNUM}:{vNUM+3}] offset:{FIN}
    ds_write_b128 v25, v[{vDEN}:{vDEN+3}] offset:{FIN+256}
    ds_read_b64 v[28:29], v24 offset:{FL}
    ds_read_b128 v[32:35], v26
    ds_read_b128 v[36:39], v26 offset:256""")
    for i in range(4): A(f'v_rcp_f32 v{56+i}, v{56+i}')
    A(f"""v_lshlrev_b32 v44, 16, v2
    v_and_b32 v45, 0xffff0000, v2
    v_lshlrev_b32 v46, 16, v3
    v_and_b32 v47, 0xffff0000, v3""")
    for i in range(4): A(f'v_mul_f32 v{56+i}, s44, v{56+i}')
    A(f"""v_cmp_gt_u32 vcc, {NB*16}, v0
    s_and_b64 exec, exec, vcc
    s_mov_b64 s[46:47], exec
    s_waitcnt lgkmcnt(0)
    v_min_u32 v28, {FIN+63*512}, v28
    v_add_u32 v27, v29, v1
    s_barrier
    s_cbranch_execz L_fin""")
    A.label('L_el')
    A(f"""v_cmp_le_u32 vcc, v29, v28
    s_and_b64 exec, exec, vcc
    s_cbranch_execz L_el_done
    ds_read_b128 v[48:51], v27
    ds_read_b128 v[52:55], v27 offset:256
    v_add_u32 v27, 512, v27
    v_add_u32 v29, 512, v29
    s_waitcnt lgkmcnt(0)
    v_pk_add_f32 v[32:33], v[32:33], v[48:49]
    v_pk_add_f32 v[34:35], v[34:35], v[50:51]
    v_pk_add_f32 v[36:37], v[36:37], v[52:53]
    v_pk_add_f32 v[38:39], v[38:39], v[54:55]
    s_branch L_el""")
    A.label('L_el_done')
    A('s_mov_b64 exec, s[46:47]')
    for i in range(4): A(f'v_fma_f32 v{36+i}, v{36+i}, s43, v{56+i}')
    for i in range(4): A(f'v_rcp_f32 v{36+i}, v{36+i}')
    A('s_nop 0')
    for i in range(4): A(f'v_fmac_f32 v{40+i}, v{32+i}, v{36+i}')
    for i in range(4): A(f'v_mul_f32 v{32+i}, 0, v{40+i}')
    for i in range(4): A(f'v_max_f32 v{40+i}, v{40+i}, v{32+i}')
    for i in range(4): A(f'v_add_f32 v{40+i}, v{40+i}, v{44+i}')
    A("""v_cvt_pk_bf16_f32 v40, v40, v41
    v_cvt_pk_bf16_f32 v41, v42, v43
    buffer_store_dwordx2 v[40:41], v30, s[36:39], s45 offen""")
    A.label('L_fin')
    if OPT['stamps']:
        A('s_waitcnt vmcnt(0)'); stamp(9)
    stamp_flush()
    A.label('L_end')
    A('s_endpgm')
    for tag,sub in [(t,1) for t in tags]+[('z',None)]:
        A.label(f'L_evt_{tag}')
        A(f"""s_and_b64 s[52:53], s[46:47], s[48:49]
        s_cbranch_scc0 L_ev2_{tag}
        s_mul_i32 exec_lo, s52, 0xffff
        s_mul_i32 exec_hi, s53, 0xffff
        ds_write_b128 v{vB}, v[{vNUM}:{vNUM+3}] offset:{MID-VB0}
        ds_write_b128 v{vB}, v[{vDEN}:{vDEN+3}] offset:{MID-VB0+256}
        ds_read_b128 v[{vEA}:{vEA+3}], v{vB}
        ds_read_b128 v[{vNUM}:{vNUM+3}], v{vZ}
        ds_read_b128 v[{vDEN}:{vDEN+3}], v{vZ}
        v_add_u32 v{vB}, 512, v{vB}
        s_mov_b64 exec, -1""")
        A.label(f'L_ev2_{tag}')
        if sub is not None:
            A(f"""s_lshr_b64 s[46:47], s[46:47], 1
            s_and_b64 s[46:47], s[46:47], s[48:49]
            s_cbranch_scc0 L_eback_{tag}
            s_mul_i32 exec_lo, s46, 0xffff
            s_mul_i32 exec_hi, s47, 0xffff
            v_add_u32 v{vLB}, {LS}, v{vLB}
            v_subrev_u32 v{vA}, {16*sub}, v{vLB}
            s_mov_b64 exec, -1""")
        A(f's_branch L_eback_{tag}')
    A.label('L_gowait')
    A(f"""s_sleep 4
    global_load_dwordx2 v[50:51], v46, s[24:25] sc1
    s_add_u32 s43, s43, 1
    s_cmp_lt_u32 s43, {OPT['tmo']}
    s_cbranch_scc1 L_gop
    v_mov_b32 v16, {FLAGP}
    v_mov_b32 v17, 32
    ds_or_b32 v16, v17
    ds_or_b32 v16, v17 offset:{FLAGC-FLAGP}
    ds_or_b32 v16, v17 offset:{FLAGT-FLAGP}
    s_waitcnt vmcnt(0)
    s_branch L_goback""")
    A.label('L_repoll')
    A(f"""s_mov_b64 exec, vcc
    s_add_u32 s43, s43, 1
    s_cmp_gt_u32 s43, {OPT['tmo']}
    s_cbranch_scc1 L_timeout0
    s_sleep {OPT['slp']}""")
    poll1()
    A('s_branch L_poll')
    A.label('L_tpw')
    A(f"""v_xor_b32 v{vNEW}, 16, v{vNEW}
    v_cmp_eq_u64 vcc, v[{vTAG}:{vTAG+1}], v[{vNEW}:{vNEW+1}]
    s_cbranch_vccnz L_timeout
    s_add_u32 s43, s43, 1
    s_cmp_gt_u32 s43, {OPT['tmo']}
    s_cbranch_scc1 L_timeout
    s_sleep {OPT['slp']}
    global_load_dwordx2 v[{vNEW}:{vNEW+1}], v{vFT}, s[26:27] {OPT['pol']}
    s_branch L_tp""")
    A.label('L_ebad')
    setslow(FLAGP)
    A('s_branch L_ebad_back')
    A.label('L_timeout0')
    A(f"""s_mov_b64 exec, -1
    v_mov_b32 v{vNEW}, -1
    v_mov_b32 v2, 64
    s_branch L_r1""")
    A.label('L_timeout')
    A('s_mov_b64 exec, -1')
    A(f"""v_mov_b32 v10, {FLAGC}
    v_mov_b32 v11, 16
    ds_or_b32 v10, v11
    s_branch L_b4""")
    A.label('L_wbad')
    setslow(FLAGC)
    A('s_branch L_wbad_back')
    A.label('L_rare')
    A(f"""v_cmp_lt_u32 vcc, 0xffffff, v{vNEW}
    s_cbranch_vccnz L_timeout
    v_lshl_add_u32 v8, v10, 2, v114
    v_lshl_add_u32 v8, v9, 4, v8
    v_add_u32 v8, 128, v8
    v_lshlrev_b32 v7, 2, v9
    v_sub_u32 v7, v2, v7
    v_subrev_u32 v7, 32, v7""")
    A.label('L_rl')
    A("""v_cmp_lt_i32 vcc, 0, v7
    s_cbranch_vccz L_rare_back
    s_mov_b64 exec, vcc
    global_load_dwordx4 v[88:91], v8, s[26:27] sc1
    s_mov_b64 exec, -1
    s_waitcnt vmcnt(0)""")
    insert(list(range(88,92)),74,82,44,0,7)
    A('s_waitcnt lgkmcnt(0)')
    insert2(4,74,82,44)
    A("""v_add_u32 v8, 64, v8
    v_subrev_u32 v7, 16, v7
    s_branch L_rl""")
    A.label('L_slow')
    A(f"""s_setprio 0
    s_waitcnt lgkmcnt(0)
    s_barrier
    v_lshlrev_b32 v8, 4, v0
    v_lshlrev_b32 v10, 3, v0
    v_lshlrev_b32 v11, 1, v{vLANE}
    v_lshlrev_b32 v5, 2, v{vLANE}
    v_mov_b32 v9, v{vLANE}
    v_mov_b32 v60, 1.0
    v_mov_b32 v61, 1.0
    v_mov_b32 v62, 1.0
    v_mov_b32 v63, 1.0
    v_add_u32 v7, {LISTS}, v8
    s_mov_b32 s42, 0x05040100
    s_mov_b32 s43, 0x07060302
    global_load_dwordx2 v[20:21], v10, s[14:15]
    global_load_dwordx2 v[22:23], v10, s[20:21]
    global_load_ushort v4, v11, s[16:17]
    v_lshrrev_b32 v28, 4, v0
    v_lshl_add_u32 v28, v28, 9, v1
    ds_write_b128 v28, v[60:63] offset:{EA}
    s_cmp_lt_u32 s3, 12
    s_cbranch_scc1 L_s_noa
    v_add_u32 v120, {RAWA}, v120""")
    for r in range(4):
        A(f"""ds_write2_b32 v120, v{96+r}, v{100+r} offset0:{64*r} offset1:{64*r+1}
        ds_write2_b32 v120, v{104+r}, v{108+r} offset0:{64*r+2} offset1:{64*r+3}""")
    A.label('L_s_noa')
    A(f"""s_waitcnt vmcnt(0)
    v_perm_b32 v24, v22, v20, s42
    v_perm_b32 v25, v22, v20, s43
    v_perm_b32 v26, v23, v21, s42
    v_perm_b32 v27, v23, v21, s43
    ds_write_b128 v7, v[24:27]
    v_lshlrev_b32 v4, 16, v4
    v_add_u32 v6, {LISTS}, v5
    s_waitcnt lgkmcnt(0)
    s_barrier""")
    for k in range(64): A(f'ds_read_b32 v{64+k}, v6 offset:{256*k}')
    A(f"""s_mul_i32 s44, s3, {E//16}
    s_add_u32 s45, s44, {E//16}
    s_mov_b32 s53, {f2u(-L2E):#x}
    s_mov_b32 s54, {f2u(HS):#x}
    s_waitcnt lgkmcnt(0)""")
    A.label('L_s_scan')
    A(f"""v_add_u32 v30, s44, v9
    v_cmp_gt_u32 s[46:47], s45, v30
    v_min_u32 v30, {E-1}, v30
    v_lshlrev_b32 v31, 2, v30
    v_lshlrev_b32 v30, 1, v30
    global_load_dword v32, v31, s[10:11]
    global_load_dword v33, v31, s[8:9]
    global_load_ushort v34, v30, s[6:7]
    s_waitcnt vmcnt(0)
    v_subrev_u32 v32, {sROW}, v32
    v_cmp_gt_u32 vcc, {NB}, v32
    v_min_u32 v33, {N-1}, v33
    v_lshlrev_b32 v34, 16, v34
    s_and_b64 s[46:47], s[46:47], vcc""")
    A.label('L_s_edge')
    A(f"""s_cmp_eq_u64 s[46:47], 0
    s_cbranch_scc1 L_s_next
    s_ff1_i32_b64 s48, s[46:47]
    s_bitset0_b64 s[46:47], s48
    v_readlane_b32 s49, v32, s48
    v_readlane_b32 s50, v33, s48
    v_readlane_b32 s51, v34, s48
    s_nop 1
    s_lshl_b32 s50, s50, 7
    v_add_u32 v20, s50, v11
    global_load_ushort v21, v20, s[4:5]
    s_lshl_b32 s50, s49, 8
    s_add_u32 s50, s50, {RAWA}
    v_add_u32 v22, s50, v5
    ds_read_b32 v23, v22
    s_lshl_b32 s50, s49, 9
    s_add_u32 s50, s50, {MID}
    v_add_u32 v22, s50, v5
    v_mov_b32 v24, 0
    v_mov_b32 v25, 0
    s_waitcnt vmcnt(0) lgkmcnt(0)
    v_lshlrev_b32 v21, 16, v21
    v_fmac_f32 v23, s51, v4""")
    for k in range(64):
        A(f"""v_readlane_b32 s52, v21, {k}
        v_lshlrev_b32 v26, 16, v{64+k}
        v_and_b32 v27, 0xffff0000, v{64+k}
        v_fmac_f32 v24, s52, v26
        v_fmac_f32 v25, s52, v27""")
    A("""v_add_f32 v23, v23, v24
    v_mul_f32 v23, s53, v23
    v_exp_f32 v23, v23
    v_mul_f32 v25, s54, v25
    v_add_f32 v23, 1.0, v23
    v_rcp_f32 v23, v23
    s_nop 0
    v_mul_f32 v25, v25, v23
    ds_add_f32 v22, v25
    ds_add_f32 v22, v23 offset:256
    s_branch L_s_edge""")
    A.label('L_s_next')
    A(f"""s_add_u32 s44, s44, 64
    s_cmp_lt_u32 s44, s45
    s_cbranch_scc1 L_s_scan
    s_branch L_epi""")

hdr = open('standalone__edge_featured_mpnn_gatedgcn__graph.s.ref').read().split('; Override launch')[0]
kernel()
out = hdr + f"""; @launch grid=(256,1,1) block=(1024,1,1) lds={LDS}
.amdgcn_target "amdgcn-amd-amdhsa--gfx950"
.text
.globl {KN}
""" + A.text() + f""".section .rodata,"a"
.p2align 6
.amdhsa_kernel {KN}
  .amdhsa_next_free_vgpr 128
  .amdhsa_next_free_sgpr 100
  .amdhsa_accum_offset 128
  .amdhsa_group_segment_fixed_size 0
  .amdhsa_kernarg_size 96
  .amdhsa_user_sgpr_count 2
  .amdhsa_user_sgpr_kernarg_segment_ptr 1
  .amdhsa_system_sgpr_workgroup_id_x 1
  .amdhsa_float_denorm_mode_32 3
.end_amdhsa_kernel
"""
open(sys.argv[1],'w').write(out)
```

```python
import sys, struct
N=12500; E=800000; NB=49; CH=3128
WS_DAT=1<<17; DST=12544; WS_ENT=(4<<20)+(1<<17); WS_FLG=(4<<20)+(1<<16); WS_TAB=WS_ENT+(1<<19); WS_STAMP=16<<20
WS_SIZE=268435456
KN="standalone__edge_featured_mpnn_gatedgcn__graph_kernel"
def f2u(x): return struct.unpack('<I', struct.pack('<f', x))[0]
L2E=1.4426950408889634
KSH=11.0; HS=64.0
class Asm:
    def __init__(s): s.L=[]
    def __call__(s, x):
        for ln in x.strip('\n').split('\n'): s.L.append('    '+ln.strip())
    def label(s, n): s.L.append(n+':')
    def raw(s, x): s.L.append(x)
    def text(s): return '\n'.join(s.L)+'\n'
OPT = dict(stamps=0, fp=16, pfb=6, dc=26, dc2=2, dt=8, da=4, df=0, wsb=0, cas=0, tlb=0, es=0, ftl=1, w4=1, pol='sc1', rp=8, d0=0, pfc=0, r2=5, r1=2, park=1, gsc='', slp=4, nogather=0, tmo=20000, cpf=1, unr=1, x='')
for a in sys.argv[2:]:
    k,v=a.split('=')
    assert k in OPT, k
    OPT[k] = int(v) if v.lstrip('-').isdigit() else v.replace('_',' ')
A=Asm()
WSB=OPT['wsb']<<20
WS_DAT+=WSB; WS_ENT+=WSB; WS_FLG+=WSB; WS_TAB+=WSB
SB=66
def stamp_init():
    if OPT['stamps']:
        for i in range(16): A(f's_mov_b64 s[{SB+2*i}:{SB+2*i+1}], 0')
def stamp(i, cyc=None):
    if OPT['stamps']:
        A(f's_memrealtime s[{SB+2*i}:{SB+2*i+1}]')
        if cyc is not None: A(f's_memtime s[{SB+2*cyc}:{SB+2*cyc+1}]')
def stamp_flush():
    if not OPT['stamps']: return
    A(f'''s_waitcnt lgkmcnt(0)
    s_mov_b64 exec, 1
    s_lshl_b32 s98, s2, 4
    s_add_u32 s98, s98, s3
    s_lshl_b32 s98, s98, 7
    s_add_u32 s98, s98, {WS_STAMP + 256*16*128}
    v_mov_b32 v1, s98''')
    for i in range(16):
        A(f'''v_mov_b32 v2, s{SB+2*i}
        v_mov_b32 v3, s{SB+2*i+1}
        global_store_dwordx2 v1, v[2:3], s[26:27] offset:{8*i}
        s_nop 1''')
def W(n): return 0 if OPT['stamps'] else n

CNT1=0; CNT2=1024; FLAGP=1536; FLAGC=1540; TCNT=1544; SCNT=1548; ZERO=1552; DCNT=1568; FLAGT=1572; NONCE=1576; ACNT=1584; ECNT=1588; TSLOW=1592
FL=1792
XS=2304; XST=136
T1=11008; T2=T1+32768
EA=T2+256
UU=T2+256+64*512
MID=T2+65536
LISTS=MID+50*512
LS=528
LDS=163840
WROW=160; WMAT=64*WROW
WBV=MID; WAU=WBV+2*WMAT; BASE=WAU+2*WMAT; SLOT=BASE+1024
VB0=EA+512
FIN=T1; RAWA=T1
assert XS+64*XST<=T1 and SLOT+12544<=LDS and LISTS+50*LS<=LDS and LDS<=163840 and MID+256-VB0<=65535-16
assert SLOT%16==0 and LISTS%16==0 and WAU%16==0
sROW='s60'; sBK='s61'
vWC=4; vEA=8; vDEN=12; vNUM=16; vT=20; vM=28; vSD=32; vSN=36; vR=40; vX=44; vTT=48; vD=64
vA=80; vLB=81; vB=82; vG=84
vZ=112; vFT=113; vNEW=94; vFA=115; vTAG=92; vLANE=116; vCA=117; vLL=118; vFOUR=119; vMAG=126
ACC0=96

PRIO=[1]
def secF():
    if 'f' in OPT['x']: return
    if OPT['park']:
        A('s_setprio 0')
        for i in range(4): A(f'v_fmac_f32 v{vDEN+i}, v{vSD+i}, v{vM+i}')
        for i in range(4): A(f'v_fmac_f32 v{vNUM+i}, v{vSN+i}, v{vM+i}')
        A(f's_setprio {PRIO[0]}')
    else:
        for i in range(2): A(f'v_pk_fma_f32 v[{vDEN+2*i}:{vDEN+2*i+1}], v[{vSD+2*i}:{vSD+2*i+1}], v[{vM+2*i}:{vM+2*i+1}], v[{vDEN+2*i}:{vDEN+2*i+1}]')
        for i in range(2): A(f'v_pk_fma_f32 v[{vNUM+2*i}:{vNUM+2*i+1}], v[{vSN+2*i}:{vSN+2*i+1}], v[{vM+2*i}:{vM+2*i+1}], v[{vNUM+2*i}:{vNUM+2*i+1}]')
def secPE():
    if 'p' in OPT['x']: return
    for i in range(4): A(f'v_pk_mul_f32 v[{vT+2*i}:{vT+2*i+1}], v[{vTT+2*i}:{vTT+2*i+1}], v[{vTT+8+2*i}:{vTT+9+2*i}]')
def readT(r0):
    if 't' in OPT['x']: return
    if 'a' in OPT['x']:
        A(f'''v_and_or_b32 v{vX}, v{r0}, s40, v1
        v_and_or_b32 v{vX+1}, v{r0+1}, s40, v1
        v_perm_b32 v{vX+2}, v{r0}, v1, s41
        v_perm_b32 v{vX+3}, v{r0+1}, v1, s41''')
        return
    A(f'''v_and_or_b32 v{vX}, v{r0}, s40, v1
    v_and_or_b32 v{vX+1}, v{r0+1}, s40, v1
    v_perm_b32 v{vX+2}, v{r0}, v1, s41
    v_perm_b32 v{vX+3}, v{r0+1}, v1, s41
    ds_read_b128 v[{vTT}:{vTT+3}], v{vX} offset:{T1}
    ds_read_b128 v[{vTT+4}:{vTT+7}], v{vX+1} offset:{T1}
    ds_read_b128 v[{vTT+8}:{vTT+11}], v{vX+2} offset:{T2}
    ds_read_b128 v[{vTT+12}:{vTT+15}], v{vX+3} offset:{T2}''')
def secRest(d0):
    if 'q' in OPT['x']: return
    for i in range(4):
        A(f'v_pk_fma_f32 v[{vT+2*i}:{vT+2*i+1}], v[{vT+2*i}:{vT+2*i+1}], v[{d0+2*i}:{d0+2*i+1}], v[{vEA+2*(i%2)}:{vEA+2*(i%2)+1}]')
    for i in range(2):
        A(f'v_pk_mul_f32 v[{vM+2*i}:{vM+2*i+1}], v[{vT+2*i}:{vT+2*i+1}], v[{vT+4+2*i}:{vT+5+2*i}]')
    if 'm' in OPT['x']: return
    for i in range(4): A(f'v_fma_mix_f32 v{vSN+i}, v{vT+4+i}, v{d0+i}, 0 op_sel_hi:[0,1,0]')
    for i in range(4): A(f'v_fma_mix_f32 v{vSN+i}, v{vT+i}, v{d0+4+i}, v{vSN+i} op_sel_hi:[0,1,0]')
def secTail():
    if 'r' in OPT['x']: return
    for i in range(4): A(f'v_rcp_f32 v{vM+i}, v{vM+i}')
    for i in range(2):
        A(f'v_pk_add_f32 v[{vSD+2*i}:{vSD+2*i+1}], v[{vT+2*i}:{vT+2*i+1}], v[{vT+4+2*i}:{vT+5+2*i}]')
def gpair(h):
    A(f'''v_perm_b32 v{vG}, v{vR+2*h}, v1, s44
    v_perm_b32 v{vG+1}, v{vR+2*h+1}, v1, s44''')
    if OPT['nogather']: return
    for i in range(2):
        A(f'buffer_load_dwordx4 v[{vD+8*h+4*i}:{vD+8*h+4*i+3}], v{vG+i}, s[32:35], 0 offen {OPT["gsc"]}')

def insert(recs, addr, pos, msk, r0, vrem, last=None):
    for i,r in enumerate(recs):
        c_,v_ = last if (last and i==len(recs)-1) else (r0+i, vrem)
        A(f'''v_cmp_lt_i32 s[{msk+2*i}:{msk+2*i+1}], {c_}, v{v_}
        v_alignbit_b32 v{addr+i}, v{r}, v{r}, 25
        v_and_b32 v{addr+i}, 0x1bc, v{addr+i}
        s_mov_b64 exec, s[{msk+2*i}:{msk+2*i+1}]
        ds_add_rtn_u32 v{pos+i}, v{addr+i}, v{vFOUR} offset:{CNT2}
        s_mov_b64 exec, -1''')
    for i,r in enumerate(recs): A(f'v_and_b32 v{addr+i}, 0x87ff0000, v{r}')
    for i,r in enumerate(recs): A(f'v_fma_f32 v{addr+i}, v{addr+i}, s64, v{vMAG}')
    for i,r in enumerate(recs): A(f'v_and_b32 v{addr+i}, 0x7ffe, v{addr+i}')
    for i,r in enumerate(recs): A(f'v_lshrrev_b32_sdwa v{addr+i}, s65, v{r} dst_sel:WORD_1 dst_unused:UNUSED_PRESERVE src0_sel:DWORD src1_sel:WORD_0')
def insert2(n, data, pos, msk):
    for i in range(n):
        A(f'''s_mov_b64 exec, s[{msk+2*i}:{msk+2*i+1}]
        ds_write_b32 v{pos+i}, v{data+i}''')
    A('s_mov_b64 exec, -1')

def part_a(D, B, Aa, P):
    for i in range(4):
        A(f'''v_mul_u32_u24 v{B+i}, 21400, v{D+i}
        v_lshrrev_b32 v{B+i}, 20, v{B+i}
        v_lshlrev_b32 v{Aa+i}, 2, v{B+i}
        ds_add_rtn_u32 v{P+i}, v{Aa+i}, v{vFOUR} offset:{CNT1}''')
    for i in range(4):
        A(f'v_mad_i32_i24 v{D+i}, v{B+i}, s44, v{D+i}')
    for i in range(4):
        A(f'v_add_u32 v{Aa+i}, {BASE}, v{Aa+i}')
def part_b(D, S, Ee, T, P, Q):
    A(f'''v_lshlrev_b32 v{T}, 16, v{Ee}
    v_lshlrev_b32 v{T+2}, 16, v{Ee+1}
    v_mul_f32 v{T}, s45, v{T}
    v_mul_f32 v{T+1}, s45, v{Ee}
    v_mul_f32 v{T+2}, s45, v{T+2}
    v_mul_f32 v{T+3}, s45, v{Ee+1}''')
    for i in range(4):
        A(f'''v_add_lshl_u32 v{S+i}, v{S+i}, 1, 2
        v_bfi_b32 v{S+i}, 3, v{D+i}, v{S+i}
        v_lshlrev_b32 v{D+i}, 25, v{D+i}
        v_bfi_b32 v{D+i}, s46, v{D+i}, v{T+i}
        v_bfi_b32 v{S+i}, s47, v{D+i}, v{S+i}''')
    A(f'''v_or3_b32 v{T}, v{T}, v{T+1}, v{T+2}
    v_or_b32 v{T}, v{T}, v{T+3}
    v_and_b32 v{T}, s46, v{T}
    v_cmp_ne_u32 vcc, 0, v{T}
    s_or_b64 s[52:53], s[52:53], vcc
    s_waitcnt lgkmcnt(0)''')
    for i in range(4): A(f'v_add_u32 v{P+i}, v{P+i}, v{Q+i}')
    for i in range(4): A(f'ds_write_b32 v{P+i}, v{S+i}')

def gemm_run(ACC1):
    A("""ds_read2_b64 v[84:87], v13 offset0:0 offset1:4
    ds_read2_b64 v[88:91], v13 offset0:8 offset1:12""")
    def rd(m,t):
        for mm in range(4):
            r=20+32*m+8*t+2*mm
            A(f'ds_read_b64_tr_b16 v[{r}:{r+1}], v12 offset:{m*WMAT+mm*16*WROW+t*32}')
    seq=[(m,t) for m in range(2) for t in range(4)]
    rd(*seq[0]); rd(*seq[1]); rd(*seq[2])
    for n,(m,t) in enumerate(seq):
        rem=min(len(seq)-1-n,2)
        A(f's_waitcnt lgkmcnt({0 if OPT["stamps"] and n==0 else 4*rem})')
        acc=(ACC0 if m==0 else ACC1)+4*t; f=20+32*m+8*t
        A(f"""v_mfma_f32_16x16x32_bf16 v[{acc}:{acc+3}], v[84:87], v[{f}:{f+3}], 0
        v_mfma_f32_16x16x32_bf16 v[{acc}:{acc+3}], v[88:91], v[{f+4}:{f+7}], v[{acc}:{acc+3}]""")
        if n+3<len(seq): rd(*seq[n+3])
    A(f"""v_mov_b32 v15, 256
    s_mov_b64 exec, 1
    ds_add_u32 v{vZ}, v15 offset:{DCNT-ZERO}
    s_mov_b64 exec, -1""")
def stageW(R, addr):
    A(f"""v_perm_b32 v40, v{R+2}, v{R}, s48
    v_perm_b32 v41, v{R+2}, v{R}, s49
    v_perm_b32 v42, v{R+3}, v{R+1}, s48
    v_perm_b32 v43, v{R+3}, v{R+1}, s49
    ds_write2_b32 v{addr}, v40, v41 offset0:0 offset1:8
    ds_write2_b32 v{addr}, v42, v43 offset0:16 offset1:24""")
def flagaddr(dst, src, tmp):
    FP=OPT['fp']; lgfp={1:0,2:1,4:2,8:3,16:4,32:5}[FP]
    A(f"""v_lshrrev_b32 v{tmp}, {lgfp}, v{src}
    v_and_b32 v{dst}, {FP-1}, v{src}
    v_lshlrev_b32 v{dst}, 3, v{dst}
    v_lshl_add_u32 v{dst}, v{tmp}, 7, v{dst}
    v_add_u32 v{dst}, {WS_FLG}, v{dst}""")
def setslow(addr):
    A(f"""v_mov_b32 v16, {addr}
    v_mov_b32 v17, 16
    ds_or_b32 v16, v17""")

def spin(label, addr, tmp, n, slp=0):
    A.label(label)
    A(f"""ds_read_b32 v{tmp}, v{addr}
    s_waitcnt lgkmcnt(0)
    v_cmp_gt_u32 vcc, {n}, v{tmp}""")
    if OPT['es']:
        A(f"""s_cbranch_vccz {label}_x
        s_sleep {OPT['es']}
        s_branch {label}""")
        A.label(label+'_x')
    else: A(f's_cbranch_vccnz {label}')

def scan(v, first=None):
    src = first if first is not None else v
    A(f"""s_nop 1
    v_add_u32_dpp v{v}, v{src}, v{src} row_shr:1 row_mask:0xf bank_mask:0xf bound_ctrl:0
    s_nop 1
    v_add_u32_dpp v{v}, v{v}, v{v} row_shr:2 row_mask:0xf bank_mask:0xf bound_ctrl:0
    s_nop 1
    v_add_u32_dpp v{v}, v{v}, v{v} row_shr:4 row_mask:0xf bank_mask:0xf bound_ctrl:0
    s_nop 1
    v_add_u32_dpp v{v}, v{v}, v{v} row_shr:8 row_mask:0xf bank_mask:0xf bound_ctrl:0
    s_nop 1
    v_add_u32_dpp v{v}, v{v}, v{v} row_bcast:15 row_mask:0xa bank_mask:0xf
    s_nop 1
    v_add_u32_dpp v{v}, v{v}, v{v} row_bcast:31 row_mask:0xc bank_mask:0xf""")
def ebar(label, n):
    A(f"""s_mov_b64 exec, 1
    s_waitcnt lgkmcnt(0)
    ds_add_u32 v19, v{vFOUR}""")
    spin(label,19,15,n)
    A('s_mov_b64 exec, -1')

def polladdr():
    A(f"""v_lshrrev_b32 v114, 2, v0
    s_lshl_b32 s41, {sBK}, 3
    s_add_u32 s41, s41, {WS_ENT}
    v_lshl_add_u32 v{vFA}, v114, 11, s41""")
def nodeconst():
    A(f"""v_and_b32 v17, 3, v{vLANE}
    v_and_b32 v{vCA}, 60, v{vLANE}
    v_lshl_add_u32 v{vCA}, v17, 7, v{vCA}
    v_min_u32 v16, 49, v{vLANE}
    v_mul_u32_u24 v{vLL}, {LS-16}, v16
    v_lshl_add_u32 v{vLL}, v{vLANE}, 4, v{vLL}
    v_add_u32 v{vLL}, {LISTS}, v{vLL}""")
def poll1():
    A(f"global_load_dwordx2 v[{vNEW}:{vNEW+1}], v{vFA}, s[26:27] {OPT['pol']}")
def readtag():
    A(f"ds_read_b64 v[{vTAG}:{vTAG+1}], v{vZ} offset:{NONCE-ZERO}")
def kernel():
    ACC1=20
    RPM=(1<<OPT['rp'])-1
    A.raw('.p2align 8'); A.raw(f'.type {KN},@function'); A.label(KN)
    A(f"""s_cmp_ge_u32 s2, 256
    s_cbranch_scc1 L_end
    s_load_dwordx16 s[4:19], s[0:1], 0
    s_load_dwordx8 s[20:27], s[0:1], 64
    v_lshrrev_b32 v1, 6, v0""")
    stamp_init(); stamp(1)
    A(f"""v_lshlrev_b32 v3, 4, v0
    v_readfirstlane_b32 s3, v1
    v_and_b32 v{vLANE}, 63, v0
    v_and_b32 v1, 15, v0
    s_and_b32 s40, s2, 7
    s_lshl_b32 s40, s40, 5
    s_lshr_b32 s59, s2, 3
    s_add_u32 {sBK}, s59, s40
    s_mul_i32 {sROW}, {sBK}, {NB}
    s_cmp_ge_u32 s3, 8
    s_cbranch_scc1 L_noedge
    s_mul_i32 s40, s2, {CH*4}
    v_add_u32 v12, s40, v3
    v_add_u32 v13, 8192, v12
    v_lshrrev_b32 v14, 1, v12
    v_lshrrev_b32 v15, 1, v13
    s_mul_i32 s41, s2, {CH//4}
    s_sub_u32 s41, {E//4-512}, s41
    s_min_u32 s41, s41, {CH//4-512}
    v_cmp_gt_u32 s[50:51], s41, v0
    s_or_b32 s40, {'s59' if OPT['cas'] else 's2'}, s3
    s_cbranch_scc1 L_nn
    s_memrealtime s[42:43]
    v_mov_b32 v18, 0
    s_waitcnt lgkmcnt(0)
    s_lshl_b64 s[42:43], s[42:43], 25
    s_or_b32 s42, s42, 1
    v_mov_b32 v16, s42
    v_mov_b32 v17, s43
    s_mov_b64 exec, 1
    {'v_mov_b32 v19, 0'+chr(10)+'global_atomic_cmpswap_x2 v18, v[16:19], s[24:25]' if OPT['cas'] else 'global_store_dwordx2 v18, v[16:17], s[24:25] sc1'}
    s_mov_b64 exec, -1""")
    A.label('L_nn')
    A(f"""s_waitcnt lgkmcnt(0)
    global_load_dwordx4 v[20:23], v12, s[10:11]
    s_mov_b64 exec, s[50:51]
    s_cbranch_execz L_e1
    global_load_dwordx4 v[40:43], v13, s[10:11]""")
    A.label('L_e1')
    A(f"""s_cmp_eq_u32 s3, {4 if OPT['w4'] else 99}
    s_cbranch_scc1 L_e3
    s_barrier""")
    A.label('L_e3')
    A(f"""s_cbranch_execz L_e2
    global_load_dwordx4 v[44:47], v13, s[8:9]
    global_load_dwordx2 v[48:49], v15, s[6:7]""")
    A.label('L_e2')
    A(f"""s_mov_b64 exec, -1
    s_cbranch_scc0 L_e4
    s_barrier""")
    A.label('L_e4')
    A(f"""global_load_dwordx4 v[24:27], v12, s[8:9]
    global_load_dwordx2 v[28:29], v14, s[6:7]
    v_lshlrev_b32 v11, 3, v1
    global_load_dwordx2 v[4:5], v11, s[16:17]
    s_setprio 3
    s_branch L_common""")
    A.label('L_noedge')
    A(f"""v_mov_b32 v56, 0
    v_mov_b32 v57, 0
    v_mov_b32 v58, 0
    v_mov_b32 v59, 0
    s_cmp_lg_u32 s3, 9
    s_cbranch_scc1 L_n1
    v_lshlrev_b32 v16, 4, v{vLANE}
    v_lshlrev_b32 v17, 2, v{vLANE}
    ds_write_b128 v16, v[56:59] offset:{CNT1}
    ds_write_b32 v17, v56 offset:{FLAGP}""")
    A.label('L_n1')
    A(f"""s_cmp_lg_u32 s3, 8
    s_cbranch_scc1 L_n2
    s_getpc_b64 s[42:43]""")
    A.label('L_pc')
    A(f"""s_sub_u32 s42, s42, L_pc-{KN}
    s_subb_u32 s43, s43, 0
    s_lshl_b32 s41, s59, 9
    v_lshlrev_b32 v10, 7, v{vLANE}
    v_add_u32 v11, s41, v10
    s_lshl_b32 s41, s59, 8
    v_add_u32 v10, s41, v10
    s_mov_b64 exec, 15
    global_load_dword v60, v11, s[42:43]
    s_mov_b64 exec, 3
    s_waitcnt lgkmcnt(0)
    global_load_dword v61, v10, s[14:15]
    global_load_dword v62, v10, s[20:21]
    global_load_dword v63, v10, s[12:13]
    global_load_dword v64, v10, s[18:19]
    s_mov_b64 exec, -1""")
    A.label('L_n2')
    if OPT['tlb']:
        A(f"""s_cmp_lg_u32 s3, 10
        s_cbranch_scc1 L_n4
        s_mul_i32 s41, s2, {DST}
        s_add_u32 s41, s41, {WS_DAT}
        v_lshl_add_u32 v10, v{vLANE}, 12, s41
        s_lshl_b32 s41, {sROW}, 8
        s_add_u32 s41, s41, {WS_TAB+256}
        v_lshl_add_u32 v11, v{vLANE}, 12, s41
        s_lshl_b32 s41, s2, 11
        s_add_u32 s41, s41, {WS_ENT}
        v_mov_b32 v12, s41
        v_mov_b32 v13, {WS_FLG+2048}
        s_lshl_b32 s41, {sROW}, 7
        v_mov_b32 v16, s41
        s_mov_b64 exec, 15
        s_waitcnt lgkmcnt(0)
        global_load_dword v60, v10, s[26:27] sc1
        global_load_dword v61, v11, s[26:27] sc1
        s_mov_b64 exec, 1
        global_load_dword v62, v12, s[26:27] sc1
        global_load_dword v63, v13, s[26:27] sc1
        global_load_dword v64, v16, s[22:23] sc1
        s_mov_b64 exec, -1""")
        A.label('L_n4')
    A(f"""s_lshl_b32 s40, {sROW}, 7
    s_sub_u32 s40, s40, 8192
    v_add_u32 v14, s40, v3
    v_add_u32 v15, 4096, v14
    v_min_u32 v14, {N*128-16}, v14
    v_min_u32 v15, {N*128-16}, v15
    s_waitcnt lgkmcnt(0)
    s_barrier
    s_cmp_ge_u32 s3, 12
    s_cbranch_scc1 L_common
    global_load_dwordx4 v[88:91], v14, s[4:5]
    global_load_dwordx4 v[92:95], v15, s[4:5]""")
    A.label('L_common')
    stamp(2)
    A(f"""v_mov_b32 v{vFOUR}, 4
    v_lshlrev_b32 v1, 4, v1
    v_mov_b32 v{vZ}, {ZERO}
    s_mov_b32 s64, {f2u(2.0**125):#x}
    s_mov_b32 s65, 2
    s_mov_b64 s[62:63], 0
    s_mov_b32 s30, {WS_SIZE}
    s_mov_b32 s31, 0x20000
    s_mov_b32 s34, {12560*256}
    s_mov_b32 s35, 0x20000
    s_mov_b32 s38, {N*128}
    s_mov_b32 s39, 0x20000
    s_mov_b32 s28, s26
    s_mov_b32 s29, s27
    s_add_u32 s32, s26, {WS_TAB}
    s_addc_u32 s33, s27, 0
    s_mov_b32 s36, s22
    s_mov_b32 s37, s23
    s_cmp_ge_u32 s3, 8
    s_cbranch_scc1 L_gw
    s_mov_b32 s44, -49
    s_mov_b32 s45, {(127-113)<<23}
    s_mov_b32 s46, 0x78000000
    s_mov_b32 s47, 0xffff0000
    s_mov_b64 s[52:53], 0
    v_mov_b32 v19, {ECNT}
    v_lshlrev_b32 v18, 4, v{vLANE}
    v_lshlrev_b32 v14, 3, v{vLANE}
    v_add_u32 v12, {BASE}, v18
    v_add_u32 v13, {BASE}, v14
    v_add_u32 v11, {SLOT}, v3
    s_cmp_eq_u64 s[50:51], 0
    s_cbranch_scc1 L_a1
    s_waitcnt vmcnt(5)
    s_mov_b64 exec, s[50:51]""")
    part_a(40,50,54,68)
    A("""s_mov_b64 exec, -1
    s_branch L_a2""")
    A.label('L_a1')
    A('s_waitcnt vmcnt(3)')
    A.label('L_a2')
    part_a(20,30,34,64)
    stamp(3)
    ebar('L_eb1',32)
    A(f"""ds_read_b128 v[80:83], v18 offset:{CNT1}
    ds_read_b64 v[96:97], v14 offset:{CNT1}
    ds_read_b64 v[98:99], v14 offset:{CNT1+512}
    s_waitcnt lgkmcnt({W(2)})
    v_add_u32 v81, v80, v81
    v_add_u32 v82, v81, v82
    v_add_u32 v83, v82, v83""")
    scan(88,83)
    A(f"""v_sub_u32 v84, v88, v83
    v_add_u32 v84, {SLOT}, v84
    v_add_u32 v85, v84, v80
    v_add_u32 v86, v84, v81
    v_add_u32 v87, v84, v82
    ds_write_b128 v12, v[84:87]""")
    for i in range(4): A(f'ds_read_b32 v{72+i}, v{34+i}')
    A(f"""ds_read_b64 v[100:101], v13
    ds_read_b64 v[102:103], v13 offset:512
    s_cmp_eq_u64 s[50:51], 0
    s_cbranch_scc1 L_b1
    s_mov_b64 exec, s[50:51]""")
    for i in range(4): A(f'ds_read_b32 v{76+i}, v{54+i}')
    A('s_waitcnt vmcnt(3)')
    part_b(40,44,48,50,68,76)
    A('s_mov_b64 exec, -1')
    A.label('L_b1')
    A('s_waitcnt vmcnt(1)')
    part_b(20,24,28,30,64,72)
    A.label('L_b2')
    A(f"""s_cmp_lg_u64 s[52:53], 0
    s_cbranch_scc1 L_ebad""")
    A.label('L_ebad_back')
    stamp(4)
    A(f"""s_mul_i32 s54, s2, {DST}
    s_add_u32 s54, s54, {WS_DAT}
    s_add_u32 s55, s54, 8192""")
    ebar('L_eb2',64)
    stamp(5)
    A(f"""v_mov_b32 v13, 0
    global_load_dwordx2 v[{vTAG}:{vTAG+1}], v13, s[24:25] sc1
    ds_read_b128 v[20:23], v11
    ds_read_b128 v[24:27], v11 offset:8192
    s_waitcnt lgkmcnt({W(1)})
    buffer_store_dwordx4 v[20:23], v3, s[28:31], s54 offen sc1
    s_mov_b64 exec, s[50:51]
    s_cbranch_execz L_c1
    s_waitcnt lgkmcnt(0)
    buffer_store_dwordx4 v[24:27], v3, s[28:31], s55 offen sc1""")
    A.label('L_c1')
    A('s_mov_b64 exec, -1')
    for i in range(4):
        A(f"""v_subrev_u32 v{100+i}, {SLOT}, v{100+i}
        v_lshrrev_b32 v{100+i}, 2, v{100+i}
        v_lshl_or_b32 v{104+2*i}, v{96+i}, 10, v{100+i}""")
    A(f"""v_mov_b32 v16, {FLAGP}
    s_lshl_b32 s54, s2, 11
    s_add_u32 s54, s54, {WS_ENT}""")
    A('s_mov_b32 s43, 0')
    A.label('L_gop')
    A(f"""s_waitcnt vmcnt(0)
    v_cmp_eq_u32 vcc, 0, v{vTAG}
    s_cbranch_vccnz L_gowait""")
    A.label('L_goback')
    A(f"""s_mov_b64 exec, 1
    s_waitcnt lgkmcnt(0)
    ds_add_rtn_u32 v17, v16, v{vFOUR} offset:{DCNT-FLAGP}
    ds_write_b64 v16, v[{vTAG}:{vTAG+1}] offset:{NONCE-FLAGP}
    s_mov_b64 exec, -1
    v_and_b32 v{vTAG}, -2, v{vTAG}
    ds_read_b32 v20, v16
    s_waitcnt lgkmcnt(0)
    v_readfirstlane_b32 s42, v17
    v_cmp_gt_u32 vcc, 32, v20
    v_lshl_or_b32 v20, v20, 20, v{vTAG}
    s_and_b32 s42, s42, 255
    s_cmp_lg_u32 s42, 28
    s_cbranch_scc1 L_nosig""")
    for i in range(4):
        A(f"""v_or_b32 v{104+2*i}, v{104+2*i}, v20
        v_mov_b32 v{105+2*i}, v{vTAG+1}""")
    A(f"""s_cbranch_vccz L_nosig
    buffer_store_dwordx4 v[104:107], v18, s[28:31], s54 offen sc1
    buffer_store_dwordx4 v[108:111], v18, s[28:31], s54 offen offset:1024 sc1""")
    A.label('L_nosig')
    stamp(0)
    A(f"""s_setprio 0
    s_cmp_ge_u32 s3, 4
    s_cbranch_scc1 L_idle
    s_mov_b32 s44, {f2u(-L2E):#x}
    v_bfe_u32 v8, v0, 4, 4
    v_cvt_f32_u32 v9, v8
    v_mul_f32 v36, {f2u(1/16.0):#x}, v9
    v_add_f32 v37, -4.0, v36
    v_mul_f32 v38, {f2u(1/2048.0):#x}, v9
    v_mov_b32 v10, {f2u(-KSH):#x}
    v_lshl_add_u32 v9, v8, 8, v1
    v_lshl_add_u32 v8, v8, 9, v1
    v_add_u32 v8, {T2}, v8
    v_and_b32 v7, 0xffff0000, v5
    v_lshlrev_b32 v6, 16, v5
    v_and_b32 v5, 0xffff0000, v4
    v_lshlrev_b32 v4, 16, v4
    v_mul_f32 v4, s44, v4
    v_mul_f32 v5, s44, v5
    v_mul_f32 v6, s44, v6
    v_mul_f32 v7, s44, v7""")
    for i in range(4): A(f'v_fma_f32 v{20+i}, v{4+i}, v36, v10')
    for i in range(4): A(f'v_fma_f32 v{24+i}, v{4+i}, v37, v10')
    for i in range(4): A(f'v_mul_f32 v{28+i}, v{4+i}, v38')
    for i in range(4): A(f'v_mul_f32 v{44+i}, {f2u(1/128.0):#x}, v{4+i}')
    for i in range(12): A(f'v_exp_f32 v{20+i}, v{20+i}')
    for i in range(4): A(f'v_exp_f32 v{40+i}, v{4+i}')
    for i in range(4): A(f'v_exp_f32 v{44+i}, v{44+i}')
    A('v_max3_f32 v11, |v4|, |v5|, |v6|')
    def step(r, m):
        A(f"""v_pk_mul_f32 v[{r}:{r+1}], v[{r}:{r+1}], v[{m}:{m+1}]
        v_pk_mul_f32 v[{r+2}:{r+3}], v[{r+2}:{r+3}], v[{m+2}:{m+3}]""")
    for k in range(4):
        if k==OPT['dc2']:
            stamp(10); polladdr(); poll1()
        A(f"""ds_write_b128 v9, v[20:23] offset:{T1+4096*k}
        ds_write_b128 v9, v[24:27] offset:{T1+4096*(k+4)}
        ds_write_b128 v8, v[28:31] offset:{8192*2*k}""")
        step(28,44)
        A(f'ds_write_b128 v8, v[28:31] offset:{8192*(2*k+1)}')
        if k<3: step(20,40); step(24,40); step(28,44)
    A(f"""v_max_f32_e64 v11, v11, |v7|
    v_cmp_nge_f32 vcc, 4.0, v11
    s_cbranch_vccnz L_wbad""")
    A.label('L_wbad_back')
    A('s_branch L_prep')
    A.label('L_idle')
    if OPT['dc']: A(f's_sleep {OPT["dc"]}')
    polladdr()
    poll1()
    A('s_branch L_prep')
    A.label('L_gw')
    A(f"""s_cmp_lg_u32 s3, 13
    s_cbranch_scc1 L_g2""")
    nodeconst()
    A(f"""ds_write_b32 v{vCA}, v{vLL} offset:{CNT2}
    v_mov_b32 v57, -1
    v_lshlrev_b32 v18, 3, v{vLANE}
    ds_write_b64 v18, v[56:57] offset:{FL}""")
    A.label('L_g2')
    A(f"""v_and_b32 v2, 255, v0
    v_lshlrev_b32 v3, 4, v2
    v_lshrrev_b32 v12, 3, v2
    v_and_b32 v13, 7, v2
    s_cmp_ge_u32 s3, 12
    s_cselect_b64 s[40:41], s[12:13], s[14:15]
    s_cselect_b64 s[42:43], s[18:19], s[20:21]
    s_cselect_b32 s55, {WAU-WBV}, 0
    s_cselect_b32 s57, {ACNT-SCNT}, 0
    s_add_u32 s55, s55, {WBV}
    s_add_u32 s57, s57, {SCNT}
    v_add_u32 v15, 4096, v3
    global_load_dwordx4 v[72:75], v3, s[40:41]
    global_load_dwordx4 v[76:79], v15, s[40:41]
    global_load_dwordx4 v[80:83], v3, s[42:43]
    global_load_dwordx4 v[84:87], v15, s[42:43]
""")
    A(f"""s_setprio 1
    v_mul_u32_u24 v16, {WROW}, v12
    v_lshl_add_u32 v16, v13, 2, v16
    v_add_u32 v16, s55, v16
    v_mul_u32_u24 v17, {XST}, v12
    v_lshl_add_u32 v17, v13, 4, v17
    v_add_u32 v17, {XS}, v17
    v_add_u32 v18, {32*XST}, v17""")
    A(f"""    s_mov_b32 s48, 0x05040100
    s_mov_b32 s49, 0x07060302
    s_and_b32 s54, s3, 3
    v_bfe_u32 v12, v0, 2, 4
    v_and_b32 v13, 3, v0
    v_mul_u32_u24 v12, {WROW}, v12
    v_lshl_add_u32 v12, v13, 3, v12
    v_add_u32 v12, s55, v12
    v_and_b32 v13, 15, v0
    v_bfe_u32 v14, v0, 4, 2
    v_mul_u32_u24 v13, {XST}, v13
    v_lshl_add_u32 v13, v14, 3, v13
    s_mul_i32 s56, s54, {16*XST}
    s_add_u32 s56, s56, {XS}
    v_add_u32 v13, s56, v13
    s_lshl_b32 s56, s54, 2
    v_add_u32 v14, s56, v14
    v_mov_b32 v19, s57
    v_mov_b32 v47, {SCNT}
    s_mov_b32 s43, 0""")
    stamp(4)
    A(f"""s_waitcnt vmcnt(4)
    s_cmp_ge_u32 s3, 12
    s_cbranch_scc1 L_g6""")
    A(f"""ds_write2_b64 v17, v[88:89], v[90:91] offset0:0 offset1:1
    ds_write2_b64 v18, v[92:93], v[94:95] offset0:0 offset1:1""")
    A.label('L_g6')
    for m in range(4):
        A(f's_waitcnt vmcnt({3-m})')
        stageW(72+4*m,16)
        if m<3: A(f'v_add_u32 v16, {32*WROW}, v16')
    stamp(5)
    A('s_mov_b64 exec, 1')
    A(f"""s_waitcnt lgkmcnt(0)
    ds_add_u32 v19, v{vFOUR}""")
    spin('L_sb',19,15,16)
    A("""s_cmp_ge_u32 s3, 12
    s_cbranch_scc1 L_au
    s_mov_b64 exec, -1""")
    stamp(3)
    A('s_setprio 2')
    gemm_run(ACC1)
    A(f"""s_mov_b32 s44, {f2u(-L2E):#x}
    s_mov_b32 s45, {f2u(HS):#x}
    s_mov_b32 s46, 0x07060100
    s_lshl_b32 s47, {sROW}, 8
    s_add_u32 s47, s47, {WS_TAB+256}
    v_lshl_add_u32 v14, v14, 10, v1""")
    for i in range(16): A(f'v_mul_f32 v{ACC0+i}, s44, v{ACC0+i}')
    A("""s_cmp_eq_u32 s54, 3
    s_cselect_b32 exec_lo, 0xffff, -1
    s_cselect_b32 exec_hi, 0, -1""")
    for r in range(4):
        for t in range(4): A(f'v_exp_f32 v{64+4*r+t}, v{ACC0+4*t+r}')
        for t in range(4): A(f'v_fma_mixlo_f16 v{36+t}, v{ACC1+4*t+r}, s45, 0')
        for t in range(4): A(f'v_add_u32 v{64+4*r+t}, 0x8000, v{64+4*r+t}')
        for t in range(4): A(f'v_sub_u32_sdwa v{64+4*r+t}, v{64+4*r+t}, v{36+t} clamp dst_sel:DWORD dst_unused:UNUSED_PAD src0_sel:DWORD src1_sel:WORD_0')
        for t in range(4): A(f'v_perm_b32 v{64+4*r+t}, v{64+4*r+t}, v{36+t}, s46')
        A(f'buffer_store_dwordx4 v[{64+4*r}:{67+4*r}], v14, s[28:31], s47 offen offset:{r*256} sc1')
        if r==0: A('s_cbranch_scc1 L_tdone')
    A.label('L_tdone')
    A(f"""s_mov_b64 exec, -1
    s_or_b32 s56, s2, s54
    s_cmp_lg_u32 s56, 0
    s_cbranch_scc1 L_nodummy
    v_lshlrev_b32 v44, 2, v{vLANE}
    v_mov_b32 v45, {(127+81)<<23:#x}
    s_mov_b32 s56, {WS_TAB}
    buffer_store_dword v45, v44, s[28:31], s56 offen sc1""")
    A.label('L_nodummy')
    stamp(0)
    A.label('L_tg')
    readtag()
    A(f"""s_waitcnt lgkmcnt(0)
    v_cmp_eq_u32 vcc, 0, v{vTAG}
    s_cbranch_vccnz L_tg""")
    A(f"""v_max3_f32 v15, v{ACC0}, v{ACC0+1}, v{ACC0+2}
    v_max3_f32 v16, |v{ACC1}|, |v{ACC1+1}|, |v{ACC1+2}|""")
    for i in (3,5,7,9,11,13,14):
        A(f"""v_max3_f32 v15, v15, v{ACC0+i}, v{ACC0+i+1}
        v_max3_f32 v16, v16, |v{ACC1+i}|, |v{ACC1+i+1}|""")
    A(f"""v_cmp_lt_f32 vcc, {f2u(50.0):#x}, v15
    s_mov_b64 s[42:43], vcc
    v_cmp_lt_f32 vcc, {f2u(1000.0):#x}, v16
    s_or_b64 s[42:43], s[42:43], vcc
    s_cbranch_scc0 L_tok""")
    setslow(FLAGT)
    A.label('L_tok')
    A(f"""s_lshl_b32 s41, s2, 3
    s_add_u32 s41, s41, {WS_FLG}
    v_lshl_add_u32 v127, v{vLANE}, 12, s41""")
    if OPT['dt']: A(f's_sleep {OPT["dt"]}')
    polladdr()
    poll1()
    A(f"""v_mov_b32 v8, {TCNT}
    s_mov_b64 exec, 1
    s_waitcnt vmcnt(1) lgkmcnt(0)
    ds_add_rtn_u32 v9, v8, v{vFOUR}
    s_mov_b64 exec, -1
    v_and_b32 v{vTAG}, -2, v{vTAG}
    s_mov_b64 exec, {RPM}
    ds_read_b32 v11, v8 offset:{FLAGT-TCNT}
    s_waitcnt lgkmcnt(0)
    v_readfirstlane_b32 s42, v9
    v_cmp_gt_u32 vcc, 32, v11
    v_or_b32 v20, v{vTAG}, v11
    v_mov_b32 v21, v{vTAG+1}
    s_cmp_eq_u32 s42, 12
    s_cselect_b64 exec, vcc, 0
    s_cbranch_execz L_nosigt
    global_store_dwordx2 v127, v[20:21], s[26:27] sc1""")
    A.label('L_nosigt')
    A('s_mov_b64 exec, -1')
    stamp(10)
    A('s_branch L_prep')
    A.label('L_au')
    spin('L_sb2',47,15,16)
    A('s_mov_b64 exec, -1')
    stamp(3)
    gemm_run(ACC1)
    stamp(0)
    A(f"""s_mov_b32 s44, {f2u(L2E):#x}
    v_mov_b32 v15, {f2u(-KSH):#x}
    v_lshl_add_u32 v120, v14, 10, v1
    v_lshl_add_u32 v14, v14, 11, v1
    v_add_u32 v13, {UU}, v14""")
    for r in range(4):
        for t in range(4): A(f'v_fma_f32 v{64+4*r+t}, v{ACC0+4*t+r}, s44, v15')
    for i in range(16): A(f'v_exp_f32 v{64+i}, v{64+i}')
    for r in range(4):
        for t in range(4): A(f'v_mov_b32 v{40+4*r+t}, v{ACC1+4*t+r}')
    A.label('L_tg2')
    readtag()
    A(f"""s_waitcnt lgkmcnt(0)
    v_cmp_eq_u32 vcc, 0, v{vTAG}
    s_cbranch_vccnz L_tg2
    v_and_b32 v{vTAG}, -2, v{vTAG}""")
    if OPT['da']: A(f's_sleep {OPT["da"]}')
    polladdr()
    poll1()
    for r in range(4):
        A(f"""ds_write_b128 v14, v[{64+4*r}:{67+4*r}] offset:{EA+512*r}
        ds_write_b128 v13, v[{40+4*r}:{43+4*r}] offset:{512*r}""")
    A(f'v_max3_f32 v16, |v{ACC0}|, |v{ACC0+1}|, |v{ACC0+2}|')
    for i in (3,5,7,9,11,13,14): A(f'v_max3_f32 v16, v16, |v{ACC0+i}|, |v{ACC0+i+1}|')
    A(f"""v_cmp_nge_f32 vcc, {f2u(51.0/L2E):#x}, v16
    s_cbranch_vccz L_prep""")
    setslow(FLAGC)
    A.label('L_prep')
    nodeconst()
    A(f"""s_setprio 0
    v_mul_u32_u24 v114, {DST}, v114
    v_add_u32 v114, {WS_DAT}, v114
    v_mov_b32 v{vMAG}, {f2u(1.5*2**23):#x}
    s_mov_b32 s43, 0
    s_mov_b32 s40, 0x1ffffff
    s_mov_b32 s41, 0
    v_and_b32 v9, 3, v0
    v_lshl_add_u32 v6, v9, 4, v114
    v_lshl_add_u32 v20, v9, 2, v114
    v_mul_u32_u24 v5, 12, v9
    v_lshlrev_b32 v4, 2, v9
    v_mul_u32_u24 v3, 3, v9
    v_add_u32 v5, v5, v114""")
    for i in list(range(vDEN,vDEN+8))+list(range(vM,vM+12)): A(f'v_mov_b32 v{i}, 0')
    A.label('L_poll')
    A(f"""s_waitcnt vmcnt(0)
    v_xor_b32 v{vNEW}, v{vNEW}, v{vTAG}
    v_xor_b32 v{vNEW+1}, v{vNEW+1}, v{vTAG+1}
    v_cmp_lt_u64 vcc, s[40:41], v[{vNEW}:{vNEW+1}]
    s_cbranch_vccnz L_repoll""")
    A.label('L_ready')
    A(f"""s_mov_b64 exec, -1
    v_and_b32 v10, 0xfff, v{vNEW}
    v_lshl_add_u32 v6, v10, 2, v6
    v_lshrrev_b32 v2, 12, v{vNEW}
    v_sub_u32 v11, v2, v4
    v_cmp_lt_i32 vcc, 0, v11
    v_sub_u32 v21, v2, v9
    v_sub_u32 v3, v2, v3
    v_cmp_lt_i32 s[42:43], 16, v21
    v_cmp_lt_i32 s[40:41], 20, v3
    v_lshl_add_u32 v20, v10, 2, v20
    v_lshl_add_u32 v5, v10, 2, v5
    s_mov_b64 exec, vcc
    s_cbranch_execz L_r1
    global_load_dwordx4 v[64:67], v6, s[26:27] sc1
    s_mov_b64 exec, s[42:43]
    s_cbranch_execz L_r1
    global_load_dword v68, v20, s[26:27] offset:64 sc1
    s_mov_b64 exec, s[40:41]
    s_cbranch_execz L_r1
    global_load_dwordx3 v[70:72], v5, s[26:27] offset:80 sc1""")
    A.label('L_r1')
    A('s_mov_b64 exec, -1')
    A('v_cmp_lt_i32 vcc, 32, v2')
    stamp(11)
    A(f"""v_lshlrev_b32 v22, 4, v0
    v_add_u32 v22, {MID}, v22""")
    A.label('L_gate')
    A(f"""ds_read_b32 v23, v{vZ} offset:{DCNT-ZERO}
    s_waitcnt lgkmcnt(0)
    v_readfirstlane_b32 s44, v23
    s_cmp_lt_u32 s44, {32+2048}
    s_cbranch_scc1 L_gate""")
    A(f"""ds_write_b128 v22, v[{vDEN}:{vDEN+3}]
    s_cmp_ge_u32 s3, 9
    s_cbranch_scc1 L_z1
    ds_write_b128 v22, v[{vDEN}:{vDEN+3}] offset:16384""")
    A.label('L_z1')
    A('s_cbranch_vccnz L_rare')
    A.label('L_rare_back')
    A('s_waitcnt vmcnt(0)')
    stamp(12)
    insert(list(range(64,69)),74,82,44,0,11,(16,21))
    A("""s_cmp_eq_u64 s[40:41], 0
    s_cbranch_scc1 L_r2""")
    insert(list(range(70,73)),79,87,54,20,3)
    A('s_waitcnt lgkmcnt(0)')
    insert2(3,79,87,54)
    A.label('L_r2')
    A('s_waitcnt lgkmcnt(0)')
    insert2(5,74,82,44)
    A(f"""s_lshr_b32 s42, s3, 2
    s_cmp_lg_u32 s42, 2
    s_cbranch_scc1 L_b4
    s_and_b32 s41, s2, {OPT['rp']-1}
    s_lshl_b32 s41, s41, 12
    s_add_u32 s41, s41, {WS_FLG-4096}
    v_lshl_add_u32 v{vFT}, v0, 3, s41
    s_mov_b32 s43, 0""")
    if OPT['df']: A(f's_sleep {OPT["df"]}')
    A(f"global_load_dwordx2 v[{vNEW}:{vNEW+1}], v{vFT}, s[26:27] {OPT['pol']}")
    A.label('L_tp')
    A(f"""s_waitcnt vmcnt(0)
    v_cmp_ne_u64 vcc, v[{vTAG}:{vTAG+1}], v[{vNEW}:{vNEW+1}]
    s_cbranch_vccnz L_tpw""")
    A.label('L_b4')
    A(f"""v_mov_b32 v10, {FLAGC}
    s_mov_b32 s50, -1
    s_mov_b32 s51, 0x1ffff
    s_mov_b32 s48, 0x00010001
    s_mov_b32 s49, 0x00010001
    s_mov_b32 s40, 0x7f00
    s_mov_b32 s41, 0x0c0c0400
    s_setprio 3
    s_waitcnt lgkmcnt(0)
    s_barrier""")
    stamp(13)
    if OPT['pfb']:
        A(f"""s_lshr_b32 s42, s2, 3
        s_lshl_b32 s42, s42, 4
        s_add_u32 s42, s42, s3
        s_mul_i32 s42, s42, {49*128}
        v_lshlrev_b32 v11, 7, v{vLANE}
        s_mov_b64 exec, {hex((1<<OPT['pfb'])-1)}
        buffer_load_dword v113, v11, s[32:35], s42 offen
        s_mov_b64 exec, -1""")
    A(f'''ds_read_b32 v121, v{vCA} offset:{CNT2}
    ds_read_b32 v122, v10
    s_waitcnt lgkmcnt(0)
    ds_write2_b32 v121, v{vDEN}, v{vDEN} offset0:0 offset1:1
    ds_write2_b32 v121, v{vDEN}, v{vDEN} offset0:2 offset1:3
    v_sub_u32 v121, v121, v{vLL}
    v_cmp_lt_u32 vcc, 512, v121
    s_or_b64 s[62:63], s[62:63], vcc
    v_cmp_ne_u32 vcc, 0, v122
    v_add_u32 v121, 12, v121
    v_lshrrev_b32 v121, 4, v121
    v_max_u32 v121, 1, v121
    s_or_b64 s[62:63], s[62:63], vcc
    s_cbranch_scc1 L_slow
    v_cndmask_b32 v121, 0, v121, s[50:51]
    s_nop 1
    v_add_u32_dpp v122, v121, v121 row_shr:1 row_mask:0xf bank_mask:0xf bound_ctrl:0
    s_nop 1
    v_add_u32_dpp v122, v122, v122 row_shr:2 row_mask:0xf bank_mask:0xf bound_ctrl:0
    s_nop 1
    v_add_u32_dpp v122, v122, v122 row_shr:4 row_mask:0xf bank_mask:0xf bound_ctrl:0
    s_nop 1
    v_add_u32_dpp v122, v122, v122 row_shr:8 row_mask:0xf bank_mask:0xf bound_ctrl:0
    s_nop 1
    v_add_u32_dpp v122, v122, v122 row_bcast:15 row_mask:0xa bank_mask:0xf
    s_nop 1
    v_add_u32_dpp v122, v122, v122 row_bcast:31 row_mask:0xc bank_mask:0xf
    s_nop 0
    v_readlane_b32 s42, v122, 63
    v_sub_u32 v121, v122, v121
    v_lshlrev_b32 v124, 4, v121
    v_sub_u32 v124, v{vLL}, v124
    s_cmp_gt_u32 s42, 1024
    s_cbranch_scc1 L_slow
    s_add_u32 s42, s42, 3
    s_lshr_b32 s43, s42, 6
    s_bfe_u32 s44, s42, 0x40002
    s_cmp_lt_u32 s3, s44
    s_addc_u32 s45, s43, 0
    s_mul_i32 s46, s3, s43
    s_min_u32 s47, s3, s44
    s_add_u32 s46, s46, s47
    s_lshl_b32 s46, s46, 2
    s_lshl_b32 s47, s45, 2
    v_subrev_u32 v123, s46, v121
    v_cmp_gt_u32 vcc, s47, v123
    v_lshlrev_b32 v123, 2, v123
    s_and_b32 vcc_hi, vcc_hi, 0x3ffff
    v_cndmask_b32 v123, 0, v123, vcc
    ds_permute_b32 v125, v123, v{vFOUR}''')
    for g in range(4):
        if g: A('s_add_u32 s46, s46, s45')
        A(f"""v_cmp_ge_u32 vcc, s46, v122
        s_lshl_b32 s{56+g}, s46, 4
        s_and_b64 vcc, vcc, s[50:51]
        s_bcnt1_i32_b64 s{52+g}, vcc
        v_readlane_b32 s47, v124, s{52+g}
        s_add_u32 s{56+g}, s{56+g}, s47""")
    A(f"""v_mov_b32 v{vA}, s56
    v_mov_b32 v{vLB}, s52
    s_mov_b32 exec_lo, 0xffff0000
    v_mov_b32 v{vA}, s57
    v_mov_b32 v{vLB}, s53
    s_mov_b32 exec_lo, 0
    v_mov_b32 v{vA}, s58
    v_mov_b32 v{vLB}, s54
    s_mov_b32 exec_hi, 0xffff0000
    v_mov_b32 v{vA}, s59
    v_mov_b32 v{vLB}, s55
    s_mov_b64 exec, -1
    ds_read_b128 v[{vR}:{vR+3}], v{vA}
    v_lshl_add_u32 v{vB}, v{vLB}, 9, v1
    s_mov_b32 s44, 0x0c070600
    ds_read_b128 v[{vEA}:{vEA+3}], v{vB} offset:{EA}
    v_mul_u32_u24 v{vLB}, {LS}, v{vLB}
    v_add_u32 v{vLB}, {LISTS}, v{vLB}
    v_add_u32 v{vB}, {VB0}, v{vB}
    s_cmp_eq_u32 s45, 0
    s_cbranch_scc1 L_done
    s_waitcnt lgkmcnt({W(1)})""")
    gpair(0); gpair(1)
    readT(vR)
    A(f"""v_cmp_ne_u32 s[42:43], 0, v125
    s_mov_b32 s50, 0x00030003
    s_mov_b32 s51, 0x00030003
    s_lshr_b64 s[52:53], s[42:43], s45
    s_lshr_b64 s[54:55], s[52:53], s45
    s_lshr_b64 s[56:57], s[54:55], s45
    s_pack_ll_b32_b16 s42, s42, s52
    s_pack_ll_b32_b16 s43, s54, s56
    s_andn2_b64 s[42:43], s[42:43], s[48:49]""")
    stamp(6,14)
    A('s_setprio 1' if OPT['park'] else 's_setprio 0')
    def body(tag, last, sub, adv):
        secF()
        A(f"""s_and_b64 s[46:47], s[42:43], s[50:51]
        s_cbranch_scc1 L_evt_{tag}""")
        A.label(f'L_eback_{tag}')
        if not last: A('s_lshr_b64 s[42:43], s[42:43], 1')
        A('s_waitcnt lgkmcnt(0)')
        secPE()
        readT(vR+2)
        if not last: A(f'ds_read_b128 v[{vR}:{vR+3}], v{vA} offset:{16*sub}')
        A('s_waitcnt vmcnt(2)')
        secRest(vD)
        A('s_waitcnt lgkmcnt(0)')
        if not last: gpair(0)
        secTail()
        secF()
        secPE()
        if not last:
            readT(vR)
            if adv: A(f'v_add_u32 v{vA}, {adv}, v{vA}')
        A(f's_waitcnt vmcnt({0 if last else 2})')
        secRest(vD+8)
        if not last: gpair(1)
        secTail()
    U_=1
    phases=[(3,OPT['r2']),(2,OPT['r1']),(1,1)] if OPT['r2'] else [(1,1)]
    tags=[]
    for n,(pr,rem) in enumerate(phases):
        PRIO[0]=pr
        nxt = f'L_ph{n+1}' if n+1<len(phases) else 'L_last'
        A.label(f'L_ph{n}')
        A(f"""s_cmp_le_u32 s45, {rem}
        s_cbranch_scc1 {nxt}""")
        A.label(f'L_loop{n}')
        body(f'b{n}', False, 1, 16); tags.append(f'b{n}')
        A(f"""s_sub_u32 s45, s45, 1
        s_cmp_gt_u32 s45, {rem}
        s_cbranch_scc1 L_loop{n}""")
    A.label('L_last')
    body('z', True, 0, 0)
    secF()
    A(f"""s_setprio 0
    v_subrev_u32 v20, {VB0}, v{vB}
    v_lshrrev_b32 v20, 6, v20
    v_lshlrev_b32 v21, 5, v0
    v_add_u32 v21, {FIN}, v21
    s_mov_b64 exec, s[48:49]
    ds_max_u32 v20, v21 offset:{FL}
    ds_min_u32 v20, v21 offset:{FL+4}
    s_mov_b64 exec, -1""")
    A.label('L_done')
    stamp(7,15)
    A.label('L_epi')
    A(f"""v_lshrrev_b32 v24, 4, v0
    v_lshl_add_u32 v25, v24, 9, v1
    v_add_u32 v26, {UU}, v25
    v_lshlrev_b32 v30, 3, v0
    v_lshlrev_b32 v24, 3, v24
    v_add_u32 v31, v24, v30
    s_lshl_b32 s45, {sROW}, 7
    ds_read_b64 v[2:3], v31 offset:{XS}
    ds_read_b128 v[40:43], v26
    ds_read_b128 v[56:59], v25 offset:{EA}
    v_add_u32 v26, {MID}, v25
    s_mov_b32 s44, {f2u(1e-6*HS):#x}
    s_mov_b32 s43, {f2u(HS):#x}
    s_waitcnt lgkmcnt(0)
    s_barrier""")
    stamp(8)
    A(f"""ds_write_b128 v25, v[{vNUM}:{vNUM+3}] offset:{FIN}
    ds_write_b128 v25, v[{vDEN}:{vDEN+3}] offset:{FIN+256}
    ds_read_b64 v[28:29], v24 offset:{FL}
    ds_read_b128 v[32:35], v26
    ds_read_b128 v[36:39], v26 offset:256""")
    for i in range(4): A(f'v_rcp_f32 v{56+i}, v{56+i}')
    A(f"""v_lshlrev_b32 v44, 16, v2
    v_and_b32 v45, 0xffff0000, v2
    v_lshlrev_b32 v46, 16, v3
    v_and_b32 v47, 0xffff0000, v3""")
    for i in range(4): A(f'v_mul_f32 v{56+i}, s44, v{56+i}')
    A(f"""v_cmp_gt_u32 vcc, {NB*16}, v0
    s_and_b64 exec, exec, vcc
    s_mov_b64 s[46:47], exec
    s_waitcnt lgkmcnt(0)
    v_min_u32 v28, {FIN+63*512}, v28
    v_add_u32 v27, v29, v1
    s_barrier
    s_cbranch_execz L_fin""")
    A.label('L_el')
    A(f"""v_cmp_le_u32 vcc, v29, v28
    s_and_b64 exec, exec, vcc
    s_cbranch_execz L_el_done
    ds_read_b128 v[48:51], v27
    ds_read_b128 v[52:55], v27 offset:256
    v_add_u32 v27, 512, v27
    v_add_u32 v29, 512, v29
    s_waitcnt lgkmcnt(0)
    v_pk_add_f32 v[32:33], v[32:33], v[48:49]
    v_pk_add_f32 v[34:35], v[34:35], v[50:51]
    v_pk_add_f32 v[36:37], v[36:37], v[52:53]
    v_pk_add_f32 v[38:39], v[38:39], v[54:55]
    s_branch L_el""")
    A.label('L_el_done')
    A('s_mov_b64 exec, s[46:47]')
    for i in range(4): A(f'v_fma_f32 v{36+i}, v{36+i}, s43, v{56+i}')
    for i in range(4): A(f'v_rcp_f32 v{36+i}, v{36+i}')
    A('s_nop 0')
    for i in range(4): A(f'v_fmac_f32 v{40+i}, v{32+i}, v{36+i}')
    for i in range(4): A(f'v_mul_f32 v{32+i}, 0, v{40+i}')
    for i in range(4): A(f'v_max_f32 v{40+i}, v{40+i}, v{32+i}')
    for i in range(4): A(f'v_add_f32 v{40+i}, v{40+i}, v{44+i}')
    A("""v_cvt_pk_bf16_f32 v40, v40, v41
    v_cvt_pk_bf16_f32 v41, v42, v43
    buffer_store_dwordx2 v[40:41], v30, s[36:39], s45 offen""")
    A.label('L_fin')
    if OPT['stamps']:
        A('s_waitcnt vmcnt(0)'); stamp(9)
    stamp_flush()
    A.label('L_end')
    A('s_endpgm')
    for tag,sub in [(t,1) for t in tags]+[('z',None)]:
        A.label(f'L_evt_{tag}')
        A(f"""s_and_b64 s[52:53], s[46:47], s[48:49]
        s_cbranch_scc0 L_ev2_{tag}
        s_mul_i32 exec_lo, s52, 0xffff
        s_mul_i32 exec_hi, s53, 0xffff
        ds_write_b128 v{vB}, v[{vNUM}:{vNUM+3}] offset:{MID-VB0}
        ds_write_b128 v{vB}, v[{vDEN}:{vDEN+3}] offset:{MID-VB0+256}
        ds_read_b128 v[{vEA}:{vEA+3}], v{vB}
        ds_read_b128 v[{vNUM}:{vNUM+3}], v{vZ}
        ds_read_b128 v[{vDEN}:{vDEN+3}], v{vZ}
        v_add_u32 v{vB}, 512, v{vB}
        s_mov_b64 exec, -1""")
        A.label(f'L_ev2_{tag}')
        if sub is not None:
            A(f"""s_lshr_b64 s[46:47], s[46:47], 1
            s_and_b64 s[46:47], s[46:47], s[48:49]
            s_cbranch_scc0 L_eback_{tag}
            s_mul_i32 exec_lo, s46, 0xffff
            s_mul_i32 exec_hi, s47, 0xffff
            v_add_u32 v{vLB}, {LS}, v{vLB}
            v_subrev_u32 v{vA}, {16*sub}, v{vLB}
            s_mov_b64 exec, -1""")
        A(f's_branch L_eback_{tag}')
    A.label('L_gowait')
    A(f"""s_sleep 4
    global_load_dwordx2 v[{vTAG}:{vTAG+1}], v13, s[24:25] sc1
    s_add_u32 s43, s43, 1
    s_cmp_lt_u32 s43, {OPT['tmo']}
    s_cbranch_scc1 L_gop
    v_mov_b32 v16, {FLAGP}
    v_mov_b32 v17, 32
    ds_or_b32 v16, v17
    ds_or_b32 v16, v17 offset:{FLAGC-FLAGP}
    ds_or_b32 v16, v17 offset:{FLAGT-FLAGP}
    s_waitcnt vmcnt(0)
    v_or_b32 v{vTAG}, 1, v{vTAG}
    s_branch L_goback""")
    A.label('L_repoll')
    A(f"""s_mov_b64 exec, vcc
    s_add_u32 s43, s43, 1
    s_cmp_gt_u32 s43, {OPT['tmo']}
    s_cbranch_scc1 L_timeout0
    s_sleep {OPT['slp']}""")
    poll1()
    A('s_branch L_poll')
    A.label('L_tpw')
    A(f"""v_xor_b32 v{vNEW}, 16, v{vNEW}
    v_cmp_eq_u64 vcc, v[{vTAG}:{vTAG+1}], v[{vNEW}:{vNEW+1}]
    s_cbranch_vccnz L_timeout
    s_add_u32 s43, s43, 1
    s_cmp_gt_u32 s43, {OPT['tmo']}
    s_cbranch_scc1 L_timeout
    s_sleep {OPT['slp']}
    global_load_dwordx2 v[{vNEW}:{vNEW+1}], v{vFT}, s[26:27] {OPT['pol']}
    s_branch L_tp""")
    A.label('L_ebad')
    setslow(FLAGP)
    A('s_branch L_ebad_back')
    A.label('L_timeout0')
    A(f"""s_mov_b64 exec, -1
    v_mov_b32 v{vNEW}, -1
    v_mov_b32 v2, 64
    s_branch L_r1""")
    A.label('L_timeout')
    A('s_mov_b64 exec, -1')
    A(f"""v_mov_b32 v10, {FLAGC}
    v_mov_b32 v11, 16
    ds_or_b32 v10, v11
    s_branch L_b4""")
    A.label('L_wbad')
    setslow(FLAGC)
    A('s_branch L_wbad_back')
    A.label('L_rare')
    A(f"""v_cmp_lt_u32 vcc, 0xffffff, v{vNEW}
    s_cbranch_vccnz L_timeout
    v_lshl_add_u32 v8, v10, 2, v114
    v_lshl_add_u32 v8, v9, 4, v8
    v_add_u32 v8, 128, v8
    v_lshlrev_b32 v7, 2, v9
    v_sub_u32 v7, v2, v7
    v_subrev_u32 v7, 32, v7""")
    A.label('L_rl')
    A("""v_cmp_lt_i32 vcc, 0, v7
    s_cbranch_vccz L_rare_back
    s_mov_b64 exec, vcc
    global_load_dwordx4 v[88:91], v8, s[26:27] sc1
    s_mov_b64 exec, -1
    s_waitcnt vmcnt(0)""")
    insert(list(range(88,92)),74,82,44,0,7)
    A('s_waitcnt lgkmcnt(0)')
    insert2(4,74,82,44)
    A("""v_add_u32 v8, 64, v8
    v_subrev_u32 v7, 16, v7
    s_branch L_rl""")
    A.label('L_slow')
    A(f"""s_setprio 0
    s_waitcnt lgkmcnt(0)
    s_barrier
    v_lshlrev_b32 v8, 4, v0
    v_lshlrev_b32 v10, 3, v0
    v_lshlrev_b32 v11, 1, v{vLANE}
    v_lshlrev_b32 v5, 2, v{vLANE}
    v_mov_b32 v9, v{vLANE}
    v_mov_b32 v60, 1.0
    v_mov_b32 v61, 1.0
    v_mov_b32 v62, 1.0
    v_mov_b32 v63, 1.0
    v_add_u32 v7, {LISTS}, v8
    s_mov_b32 s42, 0x05040100
    s_mov_b32 s43, 0x07060302
    global_load_dwordx2 v[20:21], v10, s[14:15]
    global_load_dwordx2 v[22:23], v10, s[20:21]
    global_load_ushort v4, v11, s[16:17]
    v_lshrrev_b32 v28, 4, v0
    v_lshl_add_u32 v28, v28, 9, v1
    ds_write_b128 v28, v[60:63] offset:{EA}
    s_cmp_lt_u32 s3, 12
    s_cbranch_scc1 L_s_noa
    v_add_u32 v120, {RAWA}, v120""")
    for r in range(4):
        A(f"""ds_write2_b32 v120, v{96+r}, v{100+r} offset0:{64*r} offset1:{64*r+1}
        ds_write2_b32 v120, v{104+r}, v{108+r} offset0:{64*r+2} offset1:{64*r+3}""")
    A.label('L_s_noa')
    A(f"""s_waitcnt vmcnt(0)
    v_perm_b32 v24, v22, v20, s42
    v_perm_b32 v25, v22, v20, s43
    v_perm_b32 v26, v23, v21, s42
    v_perm_b32 v27, v23, v21, s43
    ds_write_b128 v7, v[24:27]
    v_lshlrev_b32 v4, 16, v4
    v_add_u32 v6, {LISTS}, v5
    s_waitcnt lgkmcnt(0)
    s_barrier""")
    for k in range(64): A(f'ds_read_b32 v{64+k}, v6 offset:{256*k}')
    A(f"""s_mul_i32 s44, s3, {E//16}
    s_add_u32 s45, s44, {E//16}
    s_mov_b32 s53, {f2u(-L2E):#x}
    s_mov_b32 s54, {f2u(HS):#x}
    s_waitcnt lgkmcnt(0)""")
    A.label('L_s_scan')
    A(f"""v_add_u32 v30, s44, v9
    v_cmp_gt_u32 s[46:47], s45, v30
    v_min_u32 v30, {E-1}, v30
    v_lshlrev_b32 v31, 2, v30
    v_lshlrev_b32 v30, 1, v30
    global_load_dword v32, v31, s[10:11]
    global_load_dword v33, v31, s[8:9]
    global_load_ushort v34, v30, s[6:7]
    s_waitcnt vmcnt(0)
    v_subrev_u32 v32, {sROW}, v32
    v_cmp_gt_u32 vcc, {NB}, v32
    v_min_u32 v33, {N-1}, v33
    v_lshlrev_b32 v34, 16, v34
    s_and_b64 s[46:47], s[46:47], vcc""")
    A.label('L_s_edge')
    A(f"""s_cmp_eq_u64 s[46:47], 0
    s_cbranch_scc1 L_s_next
    s_ff1_i32_b64 s48, s[46:47]
    s_bitset0_b64 s[46:47], s48
    v_readlane_b32 s49, v32, s48
    v_readlane_b32 s50, v33, s48
    v_readlane_b32 s51, v34, s48
    s_nop 1
    s_lshl_b32 s50, s50, 7
    v_add_u32 v20, s50, v11
    global_load_ushort v21, v20, s[4:5]
    s_lshl_b32 s50, s49, 8
    s_add_u32 s50, s50, {RAWA}
    v_add_u32 v22, s50, v5
    ds_read_b32 v23, v22
    s_lshl_b32 s50, s49, 9
    s_add_u32 s50, s50, {MID}
    v_add_u32 v22, s50, v5
    v_mov_b32 v24, 0
    v_mov_b32 v25, 0
    s_waitcnt vmcnt(0) lgkmcnt(0)
    v_lshlrev_b32 v21, 16, v21
    v_fmac_f32 v23, s51, v4""")
    for k in range(64):
        A(f"""v_readlane_b32 s52, v21, {k}
        v_lshlrev_b32 v26, 16, v{64+k}
        v_and_b32 v27, 0xffff0000, v{64+k}
        v_fmac_f32 v24, s52, v26
        v_fmac_f32 v25, s52, v27""")
    A("""v_add_f32 v23, v23, v24
    v_mul_f32 v23, s53, v23
    v_exp_f32 v23, v23
    v_mul_f32 v25, s54, v25
    v_add_f32 v23, 1.0, v23
    v_rcp_f32 v23, v23
    s_nop 0
    v_mul_f32 v25, v25, v23
    ds_add_f32 v22, v25
    ds_add_f32 v22, v23 offset:256
    s_branch L_s_edge""")
    A.label('L_s_next')
    A(f"""s_add_u32 s44, s44, 64
    s_cmp_lt_u32 s44, s45
    s_cbranch_scc1 L_s_scan
    s_branch L_epi""")

hdr = open('standalone__edge_featured_mpnn_gatedgcn__graph.s.ref').read().split('; Override launch')[0]
kernel()
out = hdr + f"""; @launch grid=(256,1,1) block=(1024,1,1) lds={LDS}
.amdgcn_target "amdgcn-amd-amdhsa--gfx950"
.text
.globl {KN}
""" + A.text() + f""".section .rodata,"a"
.p2align 6
.amdhsa_kernel {KN}
  .amdhsa_next_free_vgpr 128
  .amdhsa_next_free_sgpr 100
  .amdhsa_accum_offset 128
  .amdhsa_group_segment_fixed_size 0
  .amdhsa_kernarg_size 96
  .amdhsa_user_sgpr_count 2
  .amdhsa_user_sgpr_kernarg_segment_ptr 1
  .amdhsa_system_sgpr_workgroup_id_x 1
  .amdhsa_float_denorm_mode_32 3
.end_amdhsa_kernel
"""
open(sys.argv[1],'w').write(out)
```

```python
import sys, re
s = open(sys.argv[1]).read()
KN="standalone__edge_featured_mpnn_gatedgcn__graph_kernel"
KD = open('probe2.py').read().split('KD = """')[1].split('"""')[0]
def loop(lbl, base, K):
    return f"""{lbl}:
    s_memrealtime s[6:7]
    s_mov_b32 s11, 0
    s_waitcnt lgkmcnt(0)
""" + "".join(f"""    v_sub_u32 v3, s6, v{base+i}
    v_cmp_le_u32 vcc, s14, v3
    s_bcnt1_i32_b64 s12, vcc
    s_add_u32 s11, s11, s12
""" for i in range(4)) + f"""    s_add_u32 s10, s10, 1
    s_cmp_gt_u32 s10, 100000
    s_cbranch_scc1 k9_end
    s_cmp_lt_u32 s11, {K}
    s_cbranch_scc1 {lbl}
"""
for spec in sys.argv[3:]:
    x, K, w = map(int, spec.split(':'))
    body = f"""
    s_cmp_ge_u32 s2, 1
    s_cbranch_scc1 k9_end
    s_load_dwordx2 s[4:5], s[0:1], 88
    v_lshlrev_b32 v1, 11, v0
    v_add_u32 v2, {(16<<20) + 4096*128 + 8}, v1
    v_add_u32 v1, {(16<<20) + 4096*128 + w*128 + x*8}, v1
    s_mov_b32 s10, 0
    s_movk_i32 s14, 6000
    s_waitcnt lgkmcnt(0)
""" + "".join(f"""    global_load_dword v{8+i}, v1, s[4:5]
    global_load_dword v{12+i}, v2, s[4:5]
    v_add_u32 v1, 0x20000, v1
    v_add_u32 v2, 0x20000, v2
""" for i in range(4)) + "    s_waitcnt vmcnt(0)\n" + loop('k9_b', 12, 1) + "    s_mov_b32 s15, s6\n" + loop('k9_a', 8, K) + """    s_sub_u32 s16, s6, s15
    s_min_u32 s16, s16, 3000
    s_mul_i32 s16, s16, 10
k9_c:
    s_memrealtime s[6:7]
    s_waitcnt lgkmcnt(0)
    s_sub_u32 s17, s6, s15
    s_cmp_lt_u32 s17, s16
    s_cbranch_scc1 k9_c
k9_end:
"""
    m = re.search(r"; @launch (grid=.*)\n", s)
    t = s.replace(m.group(0), f"; @launch kernel={KN} {m.group(1)}\n; @launch kernel=k9_kernel grid=(1,1,1) block=(64,1,1) lds=0\n")
    t = t.replace('.section .rodata', '.p2align 8\n.globl k9_kernel\n.type k9_kernel,@function\nk9_kernel:\n' + body + '\n    s_endpgm\n.section .rodata', 1)
    open(f'{sys.argv[2]}_{x}_{K}_{w}.s', 'w').write(t + KD)
```
